```python
import torch

def _softmax(x, axis=-1):
    return torch.softmax(x, dim=axis)
def _gelu(x):
    return torch.nn.functional.gelu(x, approximate="tanh")
def _silu(x):
    return torch.nn.functional.silu(x)
def _sigmoid(x):
    return torch.sigmoid(x)
def _layernorm(x, axis=-1, eps=1e-5):
    m = x.mean(dim=axis, keepdim=True)
    v = x.var(dim=axis, keepdim=True, unbiased=False)
    return (x - m) / torch.sqrt(v + eps)
def _scatter_add(tgt, idx, src, axis=0):
    return tgt.clone().index_add_(axis, idx, src)
def _segment_sum(src, seg, n):
    out = torch.zeros((n,) + src.shape[1:], dtype=src.dtype)
    return out.index_add_(0, seg, src)
def _pad(x, pw):
    flat = tuple(v for pair in reversed(pw) for v in pair)
    return torch.nn.functional.pad(x, flat)

kernel_name = 'gated_mix__spectral_fnet__sliding_block__prompt'

def setup_inputs():

    _w = (lambda a: (lambda t: t.to(torch.bfloat16) if t.is_floating_point() else t)(torch.as_tensor(a)))
    def _A_setup():
        B, S, D = 1, 2048, 512
        ns = torch.arange(S)[:, None] * torch.arange(S)[None, :]
        nd = torch.arange(D)[:, None] * torch.arange(D)[None, :]
        Ws_re = torch.cos(-2.0 * torch.pi * ns / S).to(float)
        Ws_im = torch.sin(-2.0 * torch.pi * ns / S).to(float)
        Wd_re = torch.cos(-2.0 * torch.pi * nd / D).to(float)
        Wd_im = torch.sin(-2.0 * torch.pi * nd / D).to(float)
        return {
            "x": _w((lambda *s: torch.randn(*s, dtype=torch.bfloat16) * 0.05)(B, S, D)),
            "dft_seq_re": _w(Ws_re),
            "dft_seq_im": _w(Ws_im),
            "dft_hid_re": _w(Wd_re),
            "dft_hid_im": _w(Wd_im),
        }
    _A_in = _A_setup()

    def _B_setup():
        B, S, D = 1, 2048, 512
        return {
            "x": _w((lambda *s: torch.randn(*s, dtype=torch.bfloat16) * 0.05)(B, S, D)),
            "wqkv": _w((lambda *s: torch.randn(*s, dtype=torch.bfloat16) * 1.6)(D, 3 * D)),
            "wo": _w((lambda *s: torch.randn(*s, dtype=torch.bfloat16) * 1.6)(D, D)),
        }
    _B_in = _B_setup()

    return {
        "A_x": _A_in["x"],
        "A_dft_seq_re": _A_in["dft_seq_re"],
        "A_dft_seq_im": _A_in["dft_seq_im"],
        "A_dft_hid_re": _A_in["dft_hid_re"],
        "A_dft_hid_im": _A_in["dft_hid_im"],
        "B_x": _B_in["x"],
        "B_wqkv": _B_in["wqkv"],
        "B_wo": _B_in["wo"],
        "gate_w": _w((lambda *s: torch.randn(*s, dtype=torch.bfloat16) * 0.05)(512) * 16.0),
    }

def reference(A_x, A_dft_seq_re, A_dft_seq_im, A_dft_hid_re, A_dft_hid_im, B_x, B_wqkv, B_wo, gate_w):
    def _A_ref(x, dft_seq_re, dft_seq_im, dft_hid_re, dft_hid_im):
        a = torch.einsum("bsd,ed->bse", x, dft_hid_re)
        b = torch.einsum("bsd,ed->bse", x, dft_hid_im)
        y = torch.einsum("ts,bse->bte", dft_seq_re, a) - torch.einsum("ts,bse->bte", dft_seq_im, b)
        return y

    def _B_ref(x, wqkv, wo):
        B, S, D = x.shape
        H = 32; Dh = D // H; W = 256
        qkv = (lambda x, *d: x.permute(*d))((x @ wqkv).reshape(B, S, 3, H, Dh), 2, 0, 3, 1, 4)
        q, k, v = qkv[0], qkv[1], qkv[2]
        scores = torch.einsum("bhqd,bhkd->bhqk", q, k) * (Dh ** -0.5)
        idx = torch.arange(S)
        mask = (idx[:, None] - idx[None, :] >= 0) & (idx[:, None] - idx[None, :] < W)
        scores = torch.where(mask[None, None], scores, -1e9)
        p = _softmax(scores, axis=-1)
        o = torch.einsum("bhqk,bhkd->bhqd", p, v)
        return (lambda x, *d: x.permute(*d))(o, 0, 2, 1, 3).reshape(B, S, D) @ wo

    x = A_x
    g = _sigmoid((x * gate_w).sum(-1, keepdims=True))
    a = _A_ref(x, A_dft_seq_re, A_dft_seq_im, A_dft_hid_re, A_dft_hid_im)
    b = _B_ref(x, B_wqkv, B_wo)
    return g * a + (1 - g) * b
```

```python
import re

def regs_of(tok):
    tok = tok.strip()
    neg = tok.lstrip('-')
    m = re.fullmatch(r'(?:abs\()?\|?([vsa])(\d+)\|?\)?', neg)
    if m: return {(m.group(1), int(m.group(2)))}
    m = re.fullmatch(r'([vsa])\[(\d+):(\d+)\]', neg)
    if m: return {(m.group(1), i) for i in range(int(m.group(2)), int(m.group(3)) + 1)}
    if neg in ('vcc',): return {('s', 106), ('s', 107)}
    if neg == 'vcc_lo': return {('s', 106)}
    if neg == 'vcc_hi': return {('s', 107)}
    if neg == 'exec': return {('s', 126), ('s', 127)}
    if neg == 'exec_lo': return {('s', 126)}
    if neg == 'exec_hi': return {('s', 127)}
    if neg == 'm0': return {('s', 124)}
    return set()

TRANS = ('v_exp_', 'v_log_', 'v_rcp_', 'v_rsq_', 'v_sqrt_', 'v_sin_', 'v_cos_')
class Ins:
    def __init__(s, text):
        s.text = text
        t = text.split(';')[0].strip()
        s.label = None; s.mn = ''; s.defs = set(); s.uses = set(); s.kind = 'other'
        s.target = None; s.srcC = set(); s.srcAB = set(); s.passes = 0; s.stdata = set(); s.ws = 1
        if t.endswith(':'): s.label = t[:-1]; s.kind = 'label'; s.ws = 0; return
        if t.startswith('.') or not t: s.kind = 'dir'; s.ws = 0; return
        p = t.split(None, 1); s.mn = p[0]
        rest = p[1] if len(p) > 1 else ''
        ops = []
        depth = 0; cur = ''
        for ch in rest:
            if ch == '[': depth += 1
            if ch == ']': depth -= 1
            if ch == ',' and depth == 0: ops.append(cur.strip()); cur = ''
            else: cur += ch
        if cur.strip(): ops.append(cur.strip())
        mods = ''
        if ops:
            q = ops[-1].split(None, 1); ops[-1] = q[0]; mods = q[1] if len(q) > 1 else ''
        s.ops = ops; s.mods = mods
        mn = s.mn
        R = [regs_of(o) for o in ops]
        if mn == 's_nop': s.kind = 'nop'; s.ws = int(ops[0], 0) + 1; return
        if mn.startswith('s_cbranch') or mn == 's_branch': s.kind = 'branch'; s.target = ops[0]; return
        if mn == 's_endpgm': s.kind = 'end'; return
        if mn.startswith('v_mfma'):
            s.kind = 'mfma'; s.defs = R[0]; s.srcAB = R[1] | R[2]; s.srcC = R[3]; s.uses = s.srcAB | s.srcC
            s.passes = 8 if '32x32' in mn else 4
            return
        if mn.startswith('v_'):
            s.kind = 'valu'
            if mn.startswith('v_cmp'):
                s.defs = R[0]; s.uses = set().union(*R[1:]) if len(R) > 1 else set()
                if mn.startswith('v_cmpx'): s.defs = s.defs | {('s', 126), ('s', 127)}
            elif mn.startswith('v_permlane') and 'swap' in mn:
                s.defs = R[0] | R[1]; s.uses = R[0] | R[1]
            elif re.match(r'v_(add|sub|subrev)_co_|v_(addc|subb)_co', mn):
                s.defs = R[0] | R[1]; s.uses = set().union(*R[2:])
            else:
                s.defs = R[0]; s.uses = set().union(*R[1:]) if len(R) > 1 else set()
                if mn.startswith(('v_fmac', 'v_dot2c', 'v_writelane')) or 'dpp' in mn or 'row_' in mods or 'quad_perm' in mods: s.uses |= R[0]
                if mn.startswith('v_cndmask') and len(ops) == 3: s.uses |= {('s', 106), ('s', 107)}
            s.trans = mn.startswith(TRANS)
            s.dpp = ('dpp' in mn) or ('row_' in mods) or ('quad_perm' in mods) or ('wave_' in mods)
            return
        if mn.startswith(('buffer_', 'global_', 'flat_', 'scratch_')):
            s.kind = 'vmem'
            islds = (' lds' in ' ' + mods) or '_lds_' in mn
            s.islds = islds
            if mn.startswith('buffer_inv') or mn.startswith('buffer_wbl2'): return
            if 'load' in mn and not islds:
                s.defs = R[0]; s.uses = set().union(*R[1:])
            elif islds:
                s.uses = set().union(*R) | {('s', 124)}
            else:
                s.uses = set().union(*R)
                data = R[0] if mn.startswith('buffer_') else R[1]
                if 'atomic' in mn and 'sc0' in mods:
                    s.defs = R[0]
                if len(data) >= 3: s.stdata = data
            return
        if mn.startswith('ds_'):
            s.kind = 'ds'
            if mn.startswith(('ds_read', 'ds_bpermute', 'ds_permute', 'ds_swizzle')) or '_rtn' in mn:
                s.defs = R[0]; s.uses = set().union(*R[1:])
            else: s.uses = set().union(*R)
            return
        if mn.startswith('s_'):
            s.kind = 'salu'
            if mn.startswith(('s_cmp', 's_waitcnt', 's_barrier', 's_setprio', 's_sleep', 's_bitcmp')):
                s.uses = set().union(*R) if R else set()
            else:
                s.defs = R[0] if R else set(); s.uses = set().union(*R[1:]) if len(R) > 1 else set()
                if 'saveexec' in mn: s.defs = s.defs | {('s', 126), ('s', 127)}
            if mn.startswith(('s_load', 's_buffer_load', 's_memtime', 's_memrealtime', 's_atomic')): s.kind = 'smem'
            return

def V(S): return {r for r in S if r[0] in 'va'}
def Sg(S): return {r for r in S if r[0] == 's'}
EXEC = {('s', 126), ('s', 127)}

def need(p, c):
    n = 0
    if p.kind == 'valu':
        if c.kind == 'mfma' and V(p.defs) & c.uses: n = max(n, 2)
        if c.kind == 'mfma' and p.defs & EXEC: n = max(n, 4)
        if c.kind == 'valu':
            if p.trans and not c.trans and V(p.defs) & c.uses: n = max(n, 1)
            if p.trans and c.trans and V(p.defs) & c.uses: n = max(n, 1)
            if Sg(p.defs) & c.uses:
                n = max(n, 2)
                if c.mn.startswith(('v_readlane', 'v_writelane')): n = max(n, 4)
            if c.mn.startswith(('v_readfirstlane', 'v_readlane')) and V(p.defs) & c.uses: n = max(n, 1)
            if c.mn.startswith('v_permlane') and V(p.defs) & c.uses: n = max(n, 2)
            if c.dpp and V(p.defs) & c.uses: n = max(n, 2)
            if p.defs & EXEC:
                if c.dpp: n = max(n, 5)
                if c.mn.startswith(('v_readlane', 'v_readfirstlane', 'v_writelane', 'v_permlane')): n = max(n, 4)
            if p.mn.startswith('v_dot') and V(p.defs) & (c.uses | c.defs):
                same = p.mn == c.mn
                if not same: n = max(n, 3)
                else:
                    srcs = set().union(*[regs_of(o) for o in c.ops[1:3]])
                    if V(p.defs) & srcs: n = max(n, 3)
        if c.kind == 'vmem' and Sg(p.defs) & c.uses: n = max(n, 5)
        if c.kind in ('salu', 'smem', 'branch') and Sg(p.defs) & c.uses: n = max(n, 1)
        if c.kind in ('vmem', 'ds') and p.trans and V(p.defs) & c.uses: n = max(n, 1)
    if p.kind == 'mfma':
        big = p.passes == 8
        if c.kind == 'mfma':
            if p.defs & c.srcAB: n = max(n, 12 if big else 8)
            if p.defs & c.srcC:
                if not (p.defs == c.srcC and p.passes == c.passes): n = max(n, 10 if big else 6)
        if c.kind == 'valu':
            if p.defs & (c.uses | c.defs): n = max(n, 12 if big else 8)
            if p.srcC & c.defs: n = max(n, 7 if big else 3)
        if c.kind in ('vmem', 'ds'):
            if p.defs & (c.uses | c.defs): n = max(n, 12 if big else 8)
    if p.kind == 'salu':
        if ('s', 124) in p.defs and ((c.kind == 'vmem' and getattr(c, 'islds', False)) or 'addtid' in c.mn): n = max(n, 1)
    if p.kind == 'vmem' and p.stdata:
        if c.kind in ('valu', 'mfma') and p.stdata & c.defs: n = max(n, 2)
        elif p.stdata & c.defs: n = max(n, 1)
    return n

def fix_hazards(lines, verbose=True):
    ins = [Ins(l) for l in lines]
    total = 0
    for it in range(50):
        labels = {x.label: i for i, x in enumerate(ins) if x.kind == 'label'}
        preds = {}
        for i, x in enumerate(ins):
            if x.kind == 'branch' and x.target in labels: preds.setdefault(labels[x.target], []).append(i)
        changed = False
        i = 0
        while i < len(ins):
            c = ins[i]
            if c.kind in ('valu', 'mfma', 'vmem', 'ds', 'salu', 'smem', 'branch'):
                worst = 0; why = None
                stack = [(i - 1, 0)]; seen = set()
                while stack:
                    j, d = stack.pop()
                    if j < 0 or d >= 13 or (j, d) in seen: continue
                    seen.add((j, d))
                    p = ins[j]
                    if p.kind == 'end': continue
                    if p.kind == 'label':
                        for b in preds.get(j, []): stack.append((b, d))
                        k = j - 1
                        while k >= 0 and ins[k].kind in ('dir',): k -= 1
                        if k >= 0 and not (ins[k].mn == 's_branch'): stack.append((j - 1, d))
                        continue
                    if p.kind != 'dir':
                        r = need(p, c) - d
                        if r > worst: worst = r; why = p
                    stack.append((j - 1, d + p.ws))
                if worst > 0:
                    if verbose: print(f"  [hazard] +{worst} before '{c.text.strip()}' after '{why.text.strip()}'")
                    ins.insert(i, Ins(f"  s_nop {worst - 1}"))
                    total += worst; changed = True
                    break
            i += 1
        if not changed: break
        if it == 49: return fix_hazards([x.text for x in ins], verbose)
    return [x.text for x in ins]

class Asm:
    def __init__(s): s.lines = []
    def __call__(s, t):
        for l in t.split('\n'):
            l = l.strip()
            if l: s.lines.append(('' if l.endswith(':') else '  ') + l)
    def label(s, l): s.lines.append(l + ':')
    def c(s, t): s.lines.append('  ; ' + t)

def vr(a, n=1): return f"v{a}" if n == 1 else f"v[{a}:{a+n-1}]"
def sr(a, n=1): return f"s{a}" if n == 1 else f"s[{a}:{a+n-1}]"

def kernel_text(name, lines, vgpr, sgpr):
    body = "\n".join(lines)
    acc = (vgpr + 3) // 4 * 4
    code = f""".text
.globl {name}
.p2align 8
.type {name},@function
{name}:
{body}
"""
    kd = f""".p2align 6
.amdhsa_kernel {name}
  .amdhsa_next_free_vgpr {vgpr}
  .amdhsa_next_free_sgpr {sgpr}
  .amdhsa_accum_offset {min(acc,256)}
  .amdhsa_group_segment_fixed_size 0
  .amdhsa_kernarg_size 96
  .amdhsa_user_sgpr_count 2
  .amdhsa_user_sgpr_kernarg_segment_ptr 1
  .amdhsa_system_sgpr_workgroup_id_x 1
.end_amdhsa_kernel
"""
    return code, kd
```

```python
import sys, math, struct
sys.path.insert(0, "work")
from asmlib import *

MB = 1 << 20
Q_OFF, K_OFF, V_OFF, G_OFF, O_OFF, GT_OFF = 0, 2 * MB, 4 * MB, 6 * MB, 9 * MB, 11 * MB
WS_SIZE = 12 * MB
G_ROW = 264 * 16
G_T1 = 16 * G_ROW
NAME = "gated_mix__spectral_fnet__sliding_block__prompt"
def f2u(f): return struct.unpack("<I", struct.pack("<f", f))[0]

def srd(a, d, base, size):
    a(f"s_mov_b32 s{d}, s{base}")
    a(f"s_mov_b32 s{d+1}, s{base+1}")
    a(f"s_mov_b32 s{d+2}, {size:#x}")
    a(f"s_mov_b32 s{d+3}, 0x20000")

def csel(a, d, x, y):
    a(f"s_mov_b32 s{d}, {y:#x}")
    a(f"s_cselect_b32 s{d}, {x:#x}, s{d}")

def perm23(a, dst, src, t1, t2):
    a(f"v_and_b32 v{t1}, 0x13, v{src}")
    a(f"v_and_b32 v{t2}, 4, v{src}")
    a(f"v_lshl_or_b32 v{t1}, v{t2}, 1, v{t1}")
    a(f"v_and_b32 v{t2}, 8, v{src}")
    a(f"v_lshrrev_b32 v{t2}, 1, v{t2}")
    a(f"v_or_b32 v{dst}, v{t1}, v{t2}")

def gen_k1():
    a = Asm()
    R = 4
    XO, BO, AX, AB, PA, PV, ST = 10, 14, 18, 22, 23, 24, 25
    F = [28, 44]
    ACC = 64
    T = 128
    PK = 152
    def acc(b, j): return ACC + 32 * b + 16 * j
    a("s_cmp_ge_u32 s2, 256")
    a("s_cbranch_scc1 K1_done")
    a("s_load_dwordx2 s[4:5], s[0:1], 0")
    a("s_load_dwordx4 s[8:11], s[0:1], 24")
    a("s_load_dwordx2 s[12:13], s[0:1], 48")
    a("s_load_dwordx2 s[14:15], s[0:1], 88")
    a("v_lshrrev_b32 v1, 6, v0")
    a("v_and_b32 v0, 63, v0")
    a("v_readfirstlane_b32 s16, v1")
    a("s_bfe_u32 s17, s2, 0x20001")
    a("s_and_b32 s18, s2, 1")
    a("s_lshl_b32 s18, s18, 3")
    a("s_bfe_u32 s39, s2, 0x30003")
    a("s_or_b32 s18, s18, s39")
    a("s_lshr_b32 s19, s2, 6")
    a("s_lshl_b32 s40, s18, 7")
    a("s_lshl_b32 s41, s16, 5")
    a("s_add_u32 s40, s40, s41")
    a("s_lshl_b32 s41, s18, 2")
    a("s_add_u32 s41, s41, s16")
    a("s_cmp_eq_u32 s17, 3")
    a("s_cselect_b32 s40, s41, s40")
    a("s_cselect_b32 s41, 16, 10")
    csel(a, 42, 0x7fc00, 0x1c00)
    csel(a, 43, 0x400, 0xc00)
    a("s_lshl_b32 s40, s40, 10")
    a("v_lshrrev_b32 v2, 3, v0")
    a("v_and_b32 v3, 7, v0")
    a("v_lshlrev_b32 v4, s41, v2")
    a("v_add_u32 v4, s40, v4")
    a("v_lshrrev_b32 v5, 1, v2")
    a("v_xor_b32 v6, v3, v5")
    a("v_lshl_add_u32 v%d, v6, 4, v4" % XO)
    a("v_xor_b32 v6, 4, v6")
    a("v_lshl_add_u32 v%d, v6, 4, v4" % (XO + 1))
    a("v_add_u32 v%d, s42, v%d" % (XO + 1, XO + 1))
    a("s_lshl_b32 s44, s42, 1")
    a("v_add_u32 v%d, s44, v%d" % (XO + 2, XO))
    a("v_add_u32 v%d, s44, v%d" % (XO + 3, XO + 1))
    a("s_and_b32 s45, s16, 1")
    a("s_lshr_b32 s46, s16, 1")
    a("s_lshl_b32 s47, s17, 10")
    a("s_lshl_b32 s48, s19, 8")
    a("s_add_u32 s47, s47, s48")
    a("s_lshl_b32 s48, s46, 7")
    a("s_add_u32 s47, s47, s48")
    a("s_lshl_b32 s48, s19, 7")
    a("s_cmp_eq_u32 s17, 3")
    a("s_cselect_b32 s47, s48, s47")
    a("s_lshl_b32 s48, s45, 5")
    a("s_mul_i32 s48, s48, s43")
    a("s_add_u32 s47, s47, s48")
    a("v_mul_lo_u32 v4, v2, s43")
    a("v_add_u32 v4, s47, v4")
    a("v_and_b32 v5, 1, v5")
    a("v_lshlrev_b32 v5, 2, v5")
    a("v_xor_b32 v5, v3, v5")
    a("v_lshl_add_u32 v%d, v5, 4, v4" % BO)
    a("s_lshl_b32 s48, s43, 3")
    a("s_sub_u32 s48, s48, 0x400")
    for i in range(1, 4):
        a("v_add_u32 v%d, s48, v%d" % (BO + i, BO + i - 1))
    a("s_lshl_b32 s34, s43, 6")
    a("s_lshl_b32 s35, s16, 12")
    a("s_mov_b32 s32, 0")
    a("s_mov_b32 s33, 0")
    a("s_waitcnt lgkmcnt(0)")
    srd(a, 20, 4, 2 * MB)
    srd(a, 28, 14, WS_SIZE)
    a("s_cmp_eq_u32 s46, 0")
    a("s_cselect_b32 s24, s8, s10")
    a("s_cselect_b32 s25, s9, s11")
    a("s_cmp_eq_u32 s17, 3")
    a("s_cselect_b32 s24, s24, s12")
    a("s_cselect_b32 s25, s25, s13")
    csel(a, 26, 0x80000, 0x180000)
    a("s_mov_b32 s27, 0x20000")
    a("v_and_b32 v7, 31, v0")
    a("v_lshrrev_b32 v8, 5, v0")
    a("s_cbranch_scc0 K1_noT")
    a("v_lshlrev_b32 v4, 14, v7")
    a("v_lshl_add_u32 v4, v8, 4, v4")
    a(f"global_load_dwordx4 {vr(T,4)}, v4, s[8:9]")
    a(f"global_load_dwordx4 {vr(T+4,4)}, v4, s[8:9] offset:32")
    a(f"global_load_dwordx4 {vr(T+8,4)}, v4, s[10:11]")
    a(f"global_load_dwordx4 {vr(T+12,4)}, v4, s[10:11] offset:32")
    a.label("K1_noT")
    def dma_x(i): return f"buffer_load_dwordx4 v{XO+i}, s[20:23], s32 offen offset:{1024*i} lds"
    def dma_b(i): return f"buffer_load_dwordx4 v{BO+i}, s[24:27], s33 offen offset:{1024*i} lds"
    for c in range(R):
        a("s_mov_b32 m0, s35")
        a("s_add_u32 s35, s35, 0x4000")
        for i in range(4): a(dma_x(i))
        a("s_mov_b32 m0, s35")
        a("s_add_u32 s35, s35, 0x4000")
        for i in range(4): a(dma_b(i))
        a("s_add_u32 s32, s32, 128")
        a("s_add_u32 s33, s33, s34")
    a("s_sub_u32 s35, s35, %d" % (R * 0x8000))
    perm23(a, 9, 7, 4, 5)
    a("s_lshl_b32 s47, s46, 13")
    a("v_lshlrev_b32 v4, 7, v9")
    a("v_add_u32 v4, s47, v4")
    a("v_lshrrev_b32 v5, 1, v9")
    a("v_and_b32 v5, 7, v5")
    a("v_xor_b32 v5, v5, v8")
    for ks in range(4):
        a(f"v_xor_b32 v6, {2*ks}, v5")
        a(f"v_lshl_add_u32 v{AX+ks}, v6, 4, v4")
    a("v_lshrrev_b32 v4, 2, v0")
    a("v_and_b32 v4, 3, v4")
    a("v_lshl_add_u32 v5, v8, 3, v4")
    a("v_lshlrev_b32 v5, 7, v5")
    a("v_lshrrev_b32 v4, 1, v4")
    a("v_xor_b32 v4, s45, v4")
    a("v_lshl_add_u32 v5, v4, 6, v5")
    a("v_and_b32 v4, 16, v0")
    a("v_lshl_add_u32 v5, v4, 1, v5")
    a("v_and_b32 v4, 1, v0")
    a("v_lshl_add_u32 v5, v4, 4, v5")
    a("v_and_b32 v4, 2, v0")
    a("v_lshl_add_u32 v5, v4, 2, v5")
    a(f"v_add_u32 v{AB}, 0x4000, v5")
    a("v_lshlrev_b32 v4, 7, v7")
    a("v_and_b32 v5, 2, v7")
    a("v_lshl_add_u32 v4, v5, 5, v4")
    a("s_add_u32 s47, s35, 0x4000")
    a(f"v_add_u32 v{PA}, s47, v4")
    a("v_and_b32 v5, 1, v7")
    a("v_lshlrev_b32 v5, 15, v5")
    a(f"v_or_b32 v{PV}, 0x3f80, v5")
    a("s_lshl_b32 s38, s19, 2")
    a("s_or_b32 s38, s38, s17")
    a("s_lshl_b32 s38, s38, 1")
    a("s_or_b32 s38, s38, s46")
    for i in range(64): a(f"v_mov_b32 v{ACC+i}, 0")
    a("s_mov_b32 s36, 0")

    def reads(f, ks):
        r = []
        for b in range(2): r.append(f"ds_read_b128 {vr(f+4*b,4)}, v{AX+ks} offset:{4096*b}")
        for j in range(2):
            for q in range(2): r.append(f"ds_read_b64_tr_b16 {vr(f+8+4*j+2*q,2)}, v{AB} offset:{8192*j+2048*ks+512*q}")
        return [r[0], r[2], r[3], r[1], r[4], r[5]]
    def mf(var, f, b, j):
        X = vr(f + 4 * b, 4); B = vr(f + 8 + 4 * j, 4); D = vr(acc(b, j), 16)
        return f"v_mfma_f32_32x32x16_bf16 {D}, {B}, {X}, {D}" if var == 0 else f"v_mfma_f32_32x32x16_bf16 {D}, {X}, {B}, {D}"
    def patch(lbl):
        a("s_cmp_lg_u32 s38, 7")
        a(f"s_cbranch_scc1 {lbl}")
        a(f"ds_write_b16 v{PA}, v{PV}")
        a.label(lbl)
    a("s_waitcnt vmcnt(%d)" % (8 * (R - 1)))
    patch("K1_p0")
    a("s_waitcnt lgkmcnt(0)")
    a("s_barrier")
    for r in reads(F[0], 0): a(r)
    a("s_cmp_ge_u32 s17, 2")
    a("s_cbranch_scc1 K1_loop1")
    for var in range(2):
        L = f"K1_loop{var}"
        a.label(L)
        for ks in range(3):
            cur, nxt = F[ks & 1], F[(ks + 1) & 1]
            rd = reads(nxt, ks + 1)
            a("s_waitcnt lgkmcnt(0)")
            a(mf(var, cur, 0, 0))
            for r in rd[:3]: a(r)
            a(mf(var, cur, 1, 0))
            for r in rd[3:]: a(r)
            a(mf(var, cur, 0, 1))
            a(mf(var, cur, 1, 1))
        cur, nxt = F[1], F[0]
        a("s_cmp_eq_u32 s36, 7")
        a(f"s_cbranch_scc1 {L}_last")
        a("s_add_u32 s36, s36, 1")
        a(f"s_and_b32 s37, s36, {R-1}")
        csel(a, 37, 0x8000, (-(R-1)*0x8000) & 0xffffffff)
        for ks in range(4): a(f"v_add_u32 v{AX+ks}, s37, v{AX+ks}")
        a(f"v_add_u32 v{AB}, s37, v{AB}")
        a(f"v_add_u32 v{PA}, s37, v{PA}")
        a("s_cmp_lt_u32 s36, 6")
        a(f"s_cbranch_scc1 {L}_w16")
        a("s_cmp_eq_u32 s36, 6")
        a(f"s_cbranch_scc1 {L}_w8")
        a("s_waitcnt vmcnt(0)")
        a.label(f"{L}_w8")
        a("s_waitcnt vmcnt(8)")
        a.label(f"{L}_w16")
        a("s_waitcnt vmcnt(16)")
        patch(f"{L}_p")
        a("s_add_u32 s47, s35, 0x4000")
        a("s_waitcnt lgkmcnt(0)")
        a("s_barrier")
        rd = reads(nxt, 0)
        a("s_cmp_lt_u32 s36, %d" % (8 - R + 1))
        a(mf(var, cur, 0, 0))
        for r in rd[:3]: a(r)
        a(mf(var, cur, 1, 0))
        for r in rd[3:]: a(r)
        a(f"s_cbranch_scc0 {L}_nodma")
        a("s_mov_b32 m0, s35")
        a(mf(var, cur, 0, 1))
        for i in range(4): a(dma_x(i))
        a("s_mov_b32 m0, s47")
        a(mf(var, cur, 1, 1))
        for i in range(4): a(dma_b(i))
        a("s_add_u32 s35, s35, 0x8000")
        a("s_add_u32 s32, s32, 128")
        a("s_add_u32 s33, s33, s34")
        a(f"s_branch {L}")
        a.label(f"{L}_nodma")
        a(mf(var, cur, 0, 1))
        a(mf(var, cur, 1, 1))
        a(f"s_branch {L}")
        a.label(f"{L}_last")
        a("s_waitcnt lgkmcnt(0)")
        for (b, j) in ((0, 0), (1, 0), (0, 1), (1, 1)): a(mf(var, cur, b, j))
        if var == 0:
            a("s_lshl_b32 s47, s46, 11")
            a("s_lshl_b32 s48, s45, 17")
            a("s_add_u32 s47, s47, s48")
            a("v_lshlrev_b32 v4, 5, v9")
            a("v_lshl_add_u32 v4, v8, 4, v4")
            a(f"v_add_u32 v{ST}, s47, v4")
            a("s_lshl_b32 s47, s17, 21")
            a("s_lshl_b32 s48, s19, 19")
            a("s_add_u32 s47, s47, s48")
            a("s_lshl_b32 s48, s18, 12")
            a("s_add_u32 s50, s47, s48")
            a("s_add_u32 s51, s50, 0x10000")
            a("s_add_u32 s52, s50, 0x40000")
            a("s_add_u32 s53, s50, 0x50000")
            n = 0
            for j in range(2):
                for b in range(2):
                    for hh in range(2):
                        d = PK + 4 * (n % 8); n += 1
                        for u in range(4):
                            s = acc(b, j) + 8 * hh + 2 * u
                            a(f"v_cvt_pk_bf16_f32 v{d+u}, v{s}, v{s+1}")
                        a(f"buffer_store_dwordx4 {vr(d,4)}, v{ST}, s[28:31], s{50+2*j+hh} offen offset:{1024*b}")
            a("s_endpgm")
    a("s_cmp_eq_u32 s17, 3")
    a("s_cbranch_scc1 K1_epiA")
    a("s_lshl_b32 s47, s46, 11")
    a("s_lshl_b32 s48, s45, 17")
    a("s_add_u32 s47, s47, s48")
    a("v_and_b32 v4, 15, v9")
    a("v_lshlrev_b32 v4, 5, v4")
    a("v_lshl_add_u32 v4, v8, 4, v4")
    a("v_lshrrev_b32 v5, 4, v9")
    a("v_lshl_add_u32 v4, v5, 16, v4")
    a(f"v_add_u32 v{ST}, s47, v4")
    a("s_lshl_b32 s48, s19, 19")
    a(f"s_add_u32 s47, s48, {V_OFF:#x}")
    a("s_lshl_b32 s48, s18, 12")
    a("s_add_u32 s50, s47, s48")
    a("s_add_u32 s51, s50, 0x40000")
    n = 0
    for j in range(2):
        for b in range(2):
            for u2 in range(2):
                d = PK + 4 * (n % 8); n += 1
                for u in range(4):
                    s = acc(b, j) + 8 * u2 + 2 * u
                    a(f"v_cvt_pk_bf16_f32 v{d+u}, v{s}, v{s+1}")
                a(f"buffer_store_dwordx4 {vr(d,4)}, v{ST}, s[28:31], s{50+j} offen offset:{512*(2*b+u2)}")
    a("s_endpgm")
    a.label("K1_epiA")
    for i in range(8): a(f"v_xor_b32 v{T+16+i}, 0x80008000, v{T+8+i}")
    a("s_lshl_b32 s47, s19, 10")
    a("s_lshl_b32 s48, s45, 9")
    a("s_add_u32 s47, s47, s48")
    a("s_lshl_b32 s48, s46, 3")
    a(f"s_mov_b32 s49, {4*G_T1:#x}")
    a("v_mul_lo_u32 v4, v8, s49")
    a("v_add_u32 v4, s48, v4")
    a("v_lshl_add_u32 v5, v9, 4, v4")
    a(f"v_add_u32 v{ST}, s47, v5")
    a(f"v_add_u32 v{ST+1}, {256*16}, v4")
    a(f"s_mul_i32 s50, s18, {G_ROW}")
    a(f"s_add_u32 s50, s50, {G_OFF:#x}")
    def pk(b, j): return PK + 16 * b + 8 * j
    for j in range(2):
        for b in range(2):
            for u in range(8):
                s = acc(b, j) + 2 * u
                a(f"v_cvt_pk_bf16_f32 v{pk(b,j)+u}, v{s}, v{s+1}")
    C0, N0, NN0 = T, T + 8, T + 16
    def mfT(D, A, B, first): return f"v_mfma_f32_32x32x16_bf16 {vr(D,16)}, {vr(A,4)}, {vr(B,4)}, {'0' if first else vr(D,16)}"
    def gstore(vo):
        a("s_mov_b32 s51, s50")
        for r in range(16):
            d = F[0] + 2 * r
            a(f"v_cvt_pk_bf16_f32 v{d}, v{acc(0,0)+r}, v{acc(1,0)+r}")
            a(f"v_cvt_pk_bf16_f32 v{d+1}, v{acc(0,1)+r}, v{acc(1,1)+r}")
            a(f"buffer_store_dwordx2 {vr(d,2)}, v{vo}, s[28:31], s51 offen")
            if r < 15: a(f"s_add_u32 s51, s51, {(G_T1 * 5 if (r & 3) == 3 else G_T1):#x}")
    a("s_or_b32 s47, s19, s45")
    a("s_cmp_lg_u32 s47, 0")
    a("s_cbranch_scc1 K1_epiA2")
    for b in range(2):
        a(mfT(acc(b, 0), C0, pk(b, 1), True)); a(mfT(acc(b, 1), N0, pk(b, 1), True))
    for b in range(2):
        a(mfT(acc(b, 0), C0 + 4, pk(b, 1) + 4, False)); a(mfT(acc(b, 1), N0 + 4, pk(b, 1) + 4, False))
    a("s_mov_b32 exec_lo, 1")
    a("s_mov_b32 exec_hi, 1")
    gstore(ST + 1)
    for b in range(2):
        for u in range(8): a(f"v_mov_b32 v{pk(b,1)+u}, 0")
    a("s_mov_b64 exec, -1")
    a.label("K1_epiA2")
    for kk in range(2):
        for b in range(2):
            a(mfT(acc(b, 0), C0 + 4 * kk, pk(b, 0) + 4 * kk, kk == 0))
            a(mfT(acc(b, 1), N0 + 4 * kk, pk(b, 0) + 4 * kk, kk == 0))
    for kk in range(2):
        for b in range(2):
            a(mfT(acc(b, 0), NN0 + 4 * kk, pk(b, 1) + 4 * kk, False))
            a(mfT(acc(b, 1), C0 + 4 * kk, pk(b, 1) + 4 * kk, False))
    gstore(ST)
    a.label("K1_done")
    a("s_endpgm")
    return a.lines, 184, 64

def gen_k2():
    a = Asm()
    KF = 8
    VF = 44
    QF = 116
    SD = 120
    SB = [136, 152, 168]
    Z = 184
    PM = 200
    P = [208, 216]
    O = 224
    GX, GW = 240, 244
    M = 248
    NINF = 249
    a("s_cmp_ge_u32 s2, 256")
    a("s_cbranch_scc1 K2_done")
    a("s_load_dwordx2 s[4:5], s[0:1], 0")
    a("s_load_dwordx2 s[6:7], s[0:1], 64")
    a("s_load_dwordx2 s[14:15], s[0:1], 88")
    a("v_lshrrev_b32 v1, 6, v0")
    a("v_and_b32 v0, 63, v0")
    a("v_readfirstlane_b32 s16, v1")
    a("s_and_b32 s17, s2, 7")
    a("s_lshl_b32 s17, s17, 2")
    a("s_and_b32 s18, s16, 3")
    a("s_or_b32 s17, s17, s18")
    a("s_lshr_b32 s18, s2, 3")
    a("s_lshl_b32 s18, s18, 1")
    a("s_lshr_b32 s19, s16, 2")
    a("s_or_b32 s18, s18, s19")
    a("s_lshl_b32 s19, s2, 3")
    a("s_or_b32 s19, s19, s16")
    a("v_and_b32 v2, 31, v0")
    a("v_lshrrev_b32 v3, 5, v0")
    perm23(a, 4, 2, 5, 6)
    a("v_lshlrev_b32 v5, 4, v3")
    a("v_lshl_add_u32 v6, v2, 5, v5")
    a("v_lshl_add_u32 v7, v4, 5, v5")
    a("s_lshl_b32 s20, s17, 16")
    a("s_lshl_b32 s21, s18, 10")
    a("s_add_u32 s20, s20, s21")
    a(f"s_add_u32 s21, s20, {K_OFF - 8192:#x}")
    a(f"s_add_u32 s22, s20, {K_OFF - 4096:#x}")
    a(f"s_add_u32 s23, s20, {K_OFF:#x}")
    a(f"s_add_u32 s24, s20, {V_OFF - 8192:#x}")
    a(f"s_add_u32 s25, s20, {V_OFF - 4096:#x}")
    a(f"s_add_u32 s26, s20, {V_OFF:#x}")
    a("s_lshl_b32 s27, s19, 10")
    a("v_lshlrev_b32 v1, 4, v0")
    a("v_add_u32 v5, s27, v1")
    a("s_waitcnt lgkmcnt(0)")
    srd(a, 28, 14, WS_SIZE)
    a(f"global_load_dwordx4 {vr(GX,4)}, v5, s[4:5]")
    a(f"global_load_dwordx4 {vr(GW,4)}, v1, s[6:7]")
    a(f"buffer_load_dwordx4 {vr(QF,4)}, v6, s[28:31], s20 offen")
    def kv(base, j, extra=0):
        o = (8 - j) * 1024 + extra
        return base + o // 4096, o % 4096
    for j in range(9):
        s, o = kv(21, j)
        a(f"buffer_load_dwordx4 {vr(KF+4*j,4)}, v7, s[28:31], s{s} offen offset:{o}")
    a("s_mov_b32 exec_lo, 0xffff")
    a("s_mov_b32 exec_hi, 0xffff")
    order = [1, 2, 3, 4, 5, 6, 7, 0, 8]
    for j in order:
        for u in range(2):
            s, o = kv(24, j, 512 * u)
            a(f"buffer_load_dwordx4 {vr(VF+8*j+4*u,4)}, v7, s[28:31], s{s} offen offset:{o}")
    a("s_mov_b32 exec_lo, 0xffff0000")
    a("s_mov_b32 exec_hi, 0xffff0000")
    a("s_mov_b32 s33, 0x3f803f80")
    for i in range(72): a(f"v_mov_b32 v{VF+i}, s33")
    a("s_mov_b64 exec, -1")
    a("v_lshlrev_b32 v5, 3, v3")
    a("v_sub_u32 v5, v2, v5")
    MK = 40
    for r in range(16):
        a(f"v_cmp_le_i32 {sr(MK+2*r,2)}, {16*(r>>3)+(r&7)}, v5")
    a("v_mov_b32 v1, 0xffff")
    a(f"v_mov_b32 v{M}, 0xffff0000")
    for u in range(8):
        a(f"v_cndmask_b32 v{PM+u}, 0, v1, {sr(MK+4*u,2)}")
        a(f"v_cndmask_b32 v{P[0]}, 0, v{M}, {sr(MK+4*u+2,2)}")
        a(f"v_or_b32 v{PM+u}, v{PM+u}, v{P[0]}")
    for i in range(16): a(f"v_mov_b32 v{Z+i}, 0")
    a(f"v_mov_b32 v{NINF}, 0xff800000")
    a("s_waitcnt vmcnt(28)")
    a("v_mov_b32 v1, 0")
    for i in range(4): a(f"v_dot2c_f32_bf16 v1, v{GX+i}, v{GW+i}")
    for sh in (1, 2, 4, 8):
        a(f"v_add_f32_dpp v1, v1, v1 row_shr:{sh} row_mask:0xf bank_mask:0xf bound_ctrl:0")
    a("v_add_f32_dpp v1, v1, v1 row_bcast:15 row_mask:0xa bank_mask:0xf")
    a("v_add_f32_dpp v1, v1, v1 row_bcast:31 row_mask:0xc bank_mask:0xf")
    a(f"v_mul_f32 v1, {f2u(-math.log2(math.e)):#x}, v1")
    a("v_exp_f32 v1, v1")
    a("v_add_f32 v1, 1.0, v1")
    a("v_rcp_f32 v1, v1")
    a("s_lshl_b32 s27, s19, 2")
    a(f"s_add_u32 s27, s27, {GT_OFF:#x}")
    a(f"v_mov_b32 v{GX}, 0")
    a("s_mov_b32 exec_lo, 0")
    a("s_mov_b32 exec_hi, 0x80000000")
    a(f"buffer_store_dword v1, v{GX}, s[28:31], s27 offen")
    a("s_mov_b64 exec, -1")
    a("s_waitcnt vmcnt(28)")
    a(f"s_mov_b32 s34, {f2u(0.25*math.log2(math.e)):#x}")
    for i in range(4):
        a(f"v_lshlrev_b32 v{GX}, 16, v{QF+i}")
        a(f"v_and_b32 v{GX+1}, 0xffff0000, v{QF+i}")
        a(f"v_mul_f32 v{GX}, s34, v{GX}")
        a(f"v_mul_f32 v{GX+1}, s34, v{GX+1}")
        a(f"v_cvt_pk_bf16_f32 v{QF+i}, v{GX}, v{GX+1}")
    def smf(D, j, C): return f"v_mfma_f32_32x32x16_bf16 {vr(D,16)}, {vr(KF+4*j,4)}, {vr(QF,4)}, {C}"
    def zswitch(j, tag):
        a(f"s_cmp_lg_u32 s18, {j-1}")
        a(f"s_cbranch_scc1 K2_z{tag}{j}")
        a("s_nop 6")
        for i in range(16): a(f"v_mov_b32 v{Z+i}, v{NINF}")
        a("s_nop 1")
        a.label(f"K2_z{tag}{j}")
    def maxtile(S, first):
        if first:
            a(f"v_max3_f32 v{M}, v{S}, v{S+1}, v{S+2}")
            rest = list(range(3, 16))
        else: rest = list(range(16))
        while len(rest) >= 2:
            a(f"v_max3_f32 v{M}, v{M}, v{S+rest[0]}, v{S+rest[1]}"); rest = rest[2:]
        if rest: a(f"v_max_f32 v{M}, v{M}, v{S+rest[0]}")
    a("s_waitcnt vmcnt(27)")
    a(smf(SD, 0, "0"))
    for j in range(1, 9):
        a(f"s_waitcnt vmcnt({27-j})")
        zswitch(j, "a")
        a(smf(SB[j % 3], j, vr(Z, 16)))
        if j >= 3: maxtile(SB[(j - 2) % 3], j == 3)
    maxtile(SB[7 % 3], False)
    So = SB[8 % 3]
    for r in range(16): a(f"v_cndmask_b32 v{SD+r}, v{So+r}, v{SD+r}, {sr(MK+2*r,2)}")
    maxtile(SD, False)
    a(f"v_mov_b32 v1, v{M}")
    a(f"v_permlane32_swap_b32 v1, v{M}")
    a(f"v_max_f32 v{M}, v1, v{M}")
    for i in range(16): a(f"v_sub_f32 v{Z+i}, 0, v{M}")
    def pv(j, Pb, u, first=False):
        return f"v_mfma_f32_32x32x16_bf16 {vr(O,16)}, {vr(VF+8*j+4*u,4)}, {vr(Pb+4*u,4)}, {'0' if first else vr(O,16)}"
    zswitch(1, "b")
    a(smf(SB[1], 1, vr(Z, 16)))
    zswitch(2, "b")
    a(smf(SB[2], 2, vr(Z, 16)))
    for r in range(16): a(f"v_sub_f32 v{SD+r}, v{SD+r}, v{M}")
    for n, j in enumerate(range(1, 8)):
        S = SB[j % 3]; Pb = P[n & 1]
        for r in range(8): a(f"v_exp_f32 v{S+r}, v{S+r}")
        if n > 0:
            a(pv(j - 1, P[(n - 1) & 1], 1))
        for u in range(4): a(f"v_cvt_pk_bf16_f32 v{Pb+u}, v{S+2*u}, v{S+2*u+1}")
        for r in range(8, 16): a(f"v_exp_f32 v{S+r}, v{S+r}")
        a(f"s_waitcnt vmcnt({1 + 16 - 2*n})")
        a(pv(j, Pb, 0, n == 0))
        for u in range(4, 8): a(f"v_cvt_pk_bf16_f32 v{Pb+u}, v{S+2*u}, v{S+2*u+1}")
        if j + 2 <= 7:
            zswitch(j + 2, "b")
            a(smf(SB[(j + 2) % 3], j + 2, vr(Z, 16)))
    for r in range(8): a(f"v_exp_f32 v{SD+r}, v{SD+r}")
    a(pv(7, P[0], 1))
    for r in range(8, 16): a(f"v_exp_f32 v{SD+r}, v{SD+r}")
    Pd, Po = P[1], SB[0]
    for u in range(8): a(f"v_cvt_pk_bf16_f32 v{Po+u}, v{SD+2*u}, v{SD+2*u+1}")
    for u in range(8): a(f"v_and_b32 v{Pd+u}, v{Po+u}, v{PM+u}")
    a("s_waitcnt vmcnt(1)")
    a(pv(0, Pd, 0))
    for u in range(8): a(f"v_xor_b32 v{Po+u}, v{Po+u}, v{Pd+u}")
    a(pv(0, Pd, 1))
    a(pv(8, Po, 0))
    a(pv(8, Po, 1))
    a("v_lshlrev_b32 v5, 4, v3")
    a("v_lshl_add_u32 v5, v2, 10, v5")
    a("s_lshl_b32 s20, s18, 15")
    a("s_lshl_b32 s21, s17, 5")
    a("s_add_u32 s20, s20, s21")
    a(f"s_add_u32 s20, s20, {O_OFF:#x}")
    a(f"v_rcp_f32 v1, v{O+8}")
    for i in range(8): a(f"v_mul_f32 v{O+i}, v{O+i}, v1")
    for u in range(4): a(f"v_cvt_pk_bf16_f32 v{P[0]+u}, v{O+2*u}, v{O+2*u+1}")
    a(f"buffer_store_dwordx4 {vr(P[0],4)}, v5, s[28:31], s20 offen")
    a.label("K2_done")
    a("s_endpgm")
    return a.lines, 256, 80

def gen_k3():
    a = Asm()
    CR, CI, GF, WF = 16, 32, 48, 80
    Y, B = 112, 128
    F = [144, 152]
    GT = 12
    OO, WO = 8, 10
    AO, AW = 160, 164
    a("s_cmp_ge_u32 s2, 256")
    a("s_cbranch_scc1 K3_done")
    a("s_load_dwordx4 s[4:7], s[0:1], 8")
    a("s_load_dwordx2 s[8:9], s[0:1], 56")
    a("s_load_dwordx2 s[10:11], s[0:1], 72")
    a("s_load_dwordx2 s[14:15], s[0:1], 88")
    a("v_lshrrev_b32 v1, 6, v0")
    a("v_and_b32 v0, 63, v0")
    a("v_readfirstlane_b32 s16, v1")
    a("s_and_b32 s17, s2, 7")
    a("s_lshl_b32 s17, s17, 1")
    a("s_bfe_u32 s18, s2, 0x10003")
    a("s_or_b32 s17, s17, s18")
    a("s_sub_u32 s18, 32, s17")
    a("s_cmp_eq_u32 s17, 0")
    a("s_cselect_b32 s18, 16, s18")
    a("s_bitcmp1_b32 s2, 4")
    a("s_cselect_b32 s17, s18, s17")
    a("s_lshr_b32 s18, s2, 5")
    a("s_and_b32 s19, s16, 1")
    a("s_lshr_b32 s20, s16, 1")
    a("v_and_b32 v2, 31, v0")
    a("v_lshrrev_b32 v3, 5, v0")
    a("s_lshl_b32 s21, s20, 10")
    a("s_add_u32 s21, s21, s17")
    a("v_lshl_add_u32 v4, v2, 5, s21")
    a("v_lshlrev_b32 v5, 12, v4")
    a("v_lshl_add_u32 v5, v3, 6, v5")
    a("v_lshlrev_b32 v13, 2, v4")
    a("v_and_b32 v6, 4, v2")
    a("v_lshlrev_b32 v6, 2, v6")
    a("v_lshrrev_b32 v7, 3, v2")
    a("v_lshl_add_u32 v6, v7, 2, v6")
    a("v_and_b32 v7, 3, v2")
    a("v_add_u32 v6, v6, v7")
    a("s_lshl_b32 s22, s18, 6")
    a("s_lshl_b32 s23, s19, 5")
    a("s_add_u32 s22, s22, s23")
    a("v_add_u32 v6, s22, v6")
    a("v_sub_u32 v7, 0x200, v6")
    a("s_sub_u32 s23, 32, s17")
    a("s_and_b32 s23, s23, 31")
    a("s_cmp_ge_u32 s18, 4")
    a("s_cselect_b64 vcc, -1, 0")
    a("s_cselect_b32 s23, s23, s17")
    a("s_cselect_b32 s24, 0, 0x80008000")
    a("v_cndmask_b32 v6, v6, v7, vcc")
    a(f"v_mul_u32_u24 v7, {8*264}, v3")
    a("v_add_lshl_u32 v6, v6, v7, 4")
    a(f"s_mul_i32 s23, s23, {G_T1}")
    a(f"s_add_u32 s23, s23, {G_OFF:#x}")
    a("v_lshrrev_b32 v14, 3, v0")
    a("v_and_b32 v15, 7, v0")
    a("v_lshrrev_b32 v1, 1, v14")
    a("v_and_b32 v7, 1, v1")
    a("v_lshlrev_b32 v7, 2, v7")
    a("v_xor_b32 v7, v15, v7")
    a("v_lshlrev_b32 v7, 4, v7")
    a("v_lshl_add_u32 v7, v14, 10, v7")
    a("s_lshl_b32 s25, s16, 14")
    a("s_lshl_b32 s26, s18, 7")
    a("s_add_u32 s25, s25, s26")
    a(f"v_add_u32 v{WO}, s25, v7")
    a(f"v_add_u32 v{WO+1}, {7*1024}, v{WO}")
    a("v_xor_b32 v7, v15, v1")
    a("v_lshlrev_b32 v1, 15, v14")
    a("s_lshl_b32 s25, s16, 19")
    a("s_lshl_b32 s26, s17, 10")
    a("s_add_u32 s25, s25, s26")
    a(f"s_add_u32 s25, s25, {O_OFF - 2048:#x}")
    a("v_add_u32 v1, s25, v1")
    a(f"v_lshl_add_u32 v{OO}, v7, 4, v1")
    a("v_xor_b32 v7, 4, v7")
    a(f"v_lshl_add_u32 v{OO+1}, v7, 4, v1")
    a(f"v_add_u32 v{OO+1}, {8*32*1024 - 1024:#x}, v{OO+1}")
    a("s_waitcnt lgkmcnt(0)")
    srd(a, 28, 14, WS_SIZE)
    srd(a, 32, 8, 512 * 1024)
    srd(a, 36, 10, 2 * MB)
    for u in range(4): a(f"global_load_dwordx4 {vr(CR+4*u,4)}, v5, s[4:5] offset:{16*u}")
    for u in range(4): a(f"global_load_dwordx4 {vr(CI+4*u,4)}, v5, s[6:7] offset:{16*u}")
    for kk in range(8):
        a(f"buffer_load_dwordx4 {vr(GF+4*kk,4)}, v6, s[28:31], s23 offen")
        if kk < 7: a(f"s_add_u32 s23, s23, {G_ROW}")
    a(f"s_mov_b32 s25, {GT_OFF:#x}")
    a(f"buffer_load_dword v{GT}, v13, s[28:31], s25 offen")
    a("s_lshl_b32 s25, s16, 12")
    a("s_mov_b32 s26, 0")
    a("s_mov_b32 s27, 0")
    for c in range(8):
        a("s_mov_b32 m0, s25")
        a("s_add_u32 s25, s25, 0x4000")
        a(f"buffer_load_dwordx4 v{WO}, s[32:35], s27 offen lds")
        a(f"buffer_load_dwordx4 v{WO+1}, s[32:35], s27 offen offset:1024 lds")
        a(f"buffer_load_dwordx4 v{OO}, s[28:31], s26 offen offset:2048 lds")
        a(f"buffer_load_dwordx4 v{OO+1}, s[28:31], s26 offen offset:3072 lds")
        a("s_add_u32 s26, s26, 128")
        a("s_add_u32 s27, s27, 0x10000")
    a("v_lshrrev_b32 v1, 4, v2")
    a("v_lshlrev_b32 v1, 12, v1")
    a("v_and_b32 v7, 15, v2")
    a("v_lshl_add_u32 v1, v7, 7, v1")
    a("s_lshl_b32 s25, s20, 13")
    a("s_add_u32 s25, s25, 2048")
    a("v_add_u32 v1, s25, v1")
    a("v_lshrrev_b32 v7, 1, v7")
    a("v_xor_b32 v7, v7, v3")
    for ks in range(4):
        a(f"v_xor_b32 v14, {2*ks}, v7")
        a(f"v_lshl_add_u32 v{AO+ks}, v14, 4, v1")
    a("v_lshrrev_b32 v1, 2, v0")
    a("v_and_b32 v1, 3, v1")
    a("v_lshl_add_u32 v7, v3, 3, v1")
    a("v_lshlrev_b32 v7, 7, v7")
    a("v_lshrrev_b32 v1, 1, v1")
    a("v_xor_b32 v1, s19, v1")
    a("v_lshl_add_u32 v7, v1, 6, v7")
    a("v_and_b32 v1, 1, v0")
    a("v_lshl_add_u32 v7, v1, 5, v7")
    a("v_and_b32 v1, 16, v0")
    a("v_add_u32 v7, v1, v7")
    a("v_and_b32 v1, 2, v0")
    a(f"v_lshl_add_u32 v{AW}, v1, 2, v7")
    a("v_lshlrev_b32 v4, 10, v4")
    a("v_lshl_add_u32 v4, v3, 5, v4")
    a("s_lshl_b32 s22, s22, 1")
    a("s_waitcnt vmcnt(%d)" % (32 + 1 + 8))
    for kk in range(8):
        a(f"v_mov_b32 v{WF+4*kk}, v{CR+2*kk}")
        a(f"v_xor_b32 v{WF+4*kk+1}, s24, v{CI+2*kk}")
        a(f"v_mov_b32 v{WF+4*kk+2}, v{CR+2*kk+1}")
        a(f"v_xor_b32 v{WF+4*kk+3}, s24, v{CI+2*kk+1}")
    for kk in range(8):
        a("s_waitcnt vmcnt(%d)" % (32 + 1 + 7 - kk))
        a(f"v_mfma_f32_32x32x16_bf16 {vr(Y,16)}, {vr(GF+4*kk,4)}, {vr(WF+4*kk,4)}, {'0' if kk == 0 else vr(Y,16)}")
    def reads(f, c2, ks):
        o = c2 * 0x4000
        return [f"ds_read_b64_tr_b16 {vr(f,2)}, v{AW} offset:{o + 4096*ks}",
                f"ds_read_b64_tr_b16 {vr(f+2,2)}, v{AW} offset:{o + 4096*ks + 512}",
                f"ds_read_b128 {vr(f+4,4)}, v{AO+ks} offset:{o}"]
    FB = [CR, CR + 8, CI, CI + 8]
    first = True
    for st in range(4):
        a("s_waitcnt vmcnt(%d)" % (8 * (3 - st)))
        a("s_barrier")
        steps = [(c2, ks) for c2 in range(2) for ks in range(4)]
        c2base = (st & 1) * 2
        for n in range(3):
            for r in reads(FB[n], c2base + steps[n][0], steps[n][1]): a(r)
        for n in range(8):
            if n + 3 < 8:
                for r in reads(FB[(n + 3) % 4], c2base + steps[n + 3][0], steps[n + 3][1]): a(r)
                a("s_waitcnt lgkmcnt(9)")
            else:
                a("s_waitcnt lgkmcnt(%d)" % (3 * (7 - n)))
            f = FB[n % 4]
            a(f"v_mfma_f32_32x32x16_bf16 {vr(B,16)}, {vr(f,4)}, {vr(f+4,4)}, {'0' if first else vr(B,16)}")
            first = False
        if st == 1:
            for ks in range(4): a(f"v_add_u32 v{AO+ks}, 0x10000, v{AO+ks}")
            a(f"v_add_u32 v{AW}, 0x10000, v{AW}")
    for i in range(16): a(f"v_sub_f32 v{Y+i}, v{Y+i}, v{B+i}")
    for i in range(16): a(f"v_fma_f32 v{Y+i}, v{GT}, v{Y+i}, v{B+i}")
    for u in range(8): a(f"v_cvt_pk_bf16_f32 v{WF+u}, v{Y+2*u}, v{Y+2*u+1}")
    a(f"buffer_store_dwordx4 {vr(WF,4)}, v4, s[36:39], s22 offen")
    a(f"buffer_store_dwordx4 {vr(WF+4,4)}, v4, s[36:39], s22 offen offset:16")
    a.label("K3_done")
    a("s_endpgm")
    return a.lines, 168, 48

def build(path):
    ks = [("fnet_k1_kernel", gen_k1, 256, 131072), ("fnet_k2_kernel", gen_k2, 512, 0), ("fnet_k3_kernel", gen_k3, 256, 131072)]
    head = open(f"cdna_kernels/{NAME}.s.ref").read().split("; Override launch")[0]
    out = head
    for n, _, thr, lds in ks: out += f"; @launch kernel={n} grid=(256,1,1) block=({thr},1,1) lds={lds}\n"
    out += '.amdgcn_target "amdgcn-amd-amdhsa--gfx950"\n'
    kds = []
    for n, g, _, _ in ks:
        lines, v, s = g()
        print("kernel", n)
        lines = fix_hazards(lines)
        code, kd = kernel_text(n, lines, v, s)
        out += code; kds.append(kd)
    out += '.section .rodata,"a"\n' + "".join(kds)
    open(path, "w").write(out)

if __name__ == "__main__":
    build(sys.argv[1] if len(sys.argv) > 1 else f"cdna_kernels/{NAME}.s")
```

```python
import sys, math, struct
sys.path.insert(0, "work")
from asmlib import *

MB = 1 << 20
Q_OFF, K_OFF, V_OFF, G_OFF, O_OFF, GT_OFF = 0, 2 * MB, 4 * MB, 6 * MB, 9 * MB, 11 * MB
WS_SIZE = 12 * MB
G_ROW = 264 * 16
G_T1 = 16 * G_ROW
NAME = "gated_mix__spectral_fnet__sliding_block__prompt"
def f2u(f): return struct.unpack("<I", struct.pack("<f", f))[0]

STAMP = False
DBGSTAMP = 0
_dn = 0
ST_OFF = 16 * MB
SB0 = 82
def stamp(a, i, real=False):
    if STAMP: a(f"{'s_memrealtime' if real else 's_memtime'} {sr(SB0+2*i,2)}")
def stamp_out(a, kidx, wsptr=14, wave=16):
    if not STAMP: return
    a("s_waitcnt vmcnt(0) lgkmcnt(0)")
    stamp(a, 8); stamp(a, 9, True)
    a("s_waitcnt lgkmcnt(0)")
    a("s_mov_b64 exec, -1")
    for i in range(10): a(f"v_writelane_b32 v1, s{SB0+2*i}, {i}")
    a("s_getreg_b32 s80, hwreg(HW_REG_XCC_ID)")
    a("v_writelane_b32 v1, s80, 10")
    a("s_getreg_b32 s80, hwreg(HW_REG_HW_ID)")
    a("v_writelane_b32 v1, s80, 11")
    a("v_mbcnt_lo_u32_b32 v2, -1, 0")
    a("v_lshlrev_b32 v2, 2, v2")
    a("s_lshl_b32 s80, s2, 9")
    a(f"s_lshl_b32 s81, s{wave}, 6")
    a("s_add_u32 s80, s80, s81")
    a(f"s_add_u32 s80, s80, {ST_OFF + kidx * MB:#x}")
    a("v_add_u32 v2, s80, v2")
    a("s_mov_b64 exec, 0xffff")
    a(f"global_store_dword v2, v1, s[{wsptr}:{wsptr+1}]")
    if DBGSTAMP:
        global _dn
        _dn += 1
        a("s_load_dwordx2 s[80:81], s[0:1], 80")
        a(f"s_lshl_b32 s82, s{wave}, 8")
        a("s_or_b32 s82, s82, s2")
        a(f"s_cmp_lg_u32 s82, {DBGSTAMP}")
        a(f"s_cbranch_scc1 Ldbg{_dn}")
        a("v_mbcnt_lo_u32_b32 v2, -1, 0")
        a("v_lshlrev_b32 v2, 2, v2")
        a(f"v_writelane_b32 v1, {kidx+1}, 12")
        a("s_waitcnt lgkmcnt(0)")
        a("global_store_dword v2, v1, s[80:81]")
        a.label(f"Ldbg{_dn}")

def srd(a, d, base, size):
    a(f"s_mov_b32 s{d}, s{base}")
    a(f"s_mov_b32 s{d+1}, s{base+1}")
    a(f"s_mov_b32 s{d+2}, {size:#x}")
    a(f"s_mov_b32 s{d+3}, 0x20000")

def csel(a, d, x, y):
    a(f"s_mov_b32 s{d}, {y:#x}")
    a(f"s_cselect_b32 s{d}, {x:#x}, s{d}")

def perm23(a, dst, src, t1, t2):
    a(f"v_and_b32 v{t1}, 0x13, v{src}")
    a(f"v_and_b32 v{t2}, 4, v{src}")
    a(f"v_lshl_or_b32 v{t1}, v{t2}, 1, v{t1}")
    a(f"v_and_b32 v{t2}, 8, v{src}")
    a(f"v_lshrrev_b32 v{t2}, 1, v{t2}")
    a(f"v_or_b32 v{dst}, v{t1}, v{t2}")

def gen_k1():
    a = Asm()
    R = 4
    XO, BO, AX, AB, PA, PV, ST = 10, 14, 18, 22, 23, 24, 25
    F = [28, 44]
    ACC = 64
    T = 128
    PK = 152
    def acc(b, j): return ACC + 32 * b + 16 * j
    a("s_cmp_ge_u32 s2, 256")
    a("s_cbranch_scc1 K1_done")
    stamp(a, 0, True); stamp(a, 1)
    a("s_load_dwordx2 s[4:5], s[0:1], 0")
    a("s_load_dwordx4 s[8:11], s[0:1], 24")
    a("s_load_dwordx2 s[12:13], s[0:1], 48")
    a("s_load_dwordx2 s[14:15], s[0:1], 88")
    a("v_lshrrev_b32 v1, 6, v0")
    a("v_and_b32 v0, 63, v0")
    a("v_readfirstlane_b32 s16, v1")
    a("s_bfe_u32 s17, s2, 0x20001")
    a("s_and_b32 s18, s2, 1")
    a("s_lshl_b32 s18, s18, 3")
    a("s_bfe_u32 s39, s2, 0x30003")
    a("s_or_b32 s18, s18, s39")
    a("s_lshr_b32 s19, s2, 6")
    a("s_lshl_b32 s40, s18, 7")
    a("s_lshl_b32 s41, s16, 5")
    a("s_add_u32 s40, s40, s41")
    a("s_lshl_b32 s41, s18, 2")
    a("s_add_u32 s41, s41, s16")
    a("s_cmp_eq_u32 s17, 3")
    a("s_cselect_b32 s40, s41, s40")
    a("s_cselect_b32 s41, 16, 10")
    csel(a, 42, 0x7fc00, 0x1c00)
    csel(a, 43, 0x400, 0xc00)
    a("s_lshl_b32 s40, s40, 10")
    a("v_lshrrev_b32 v2, 3, v0")
    a("v_and_b32 v3, 7, v0")
    a("v_lshlrev_b32 v4, s41, v2")
    a("v_add_u32 v4, s40, v4")
    a("v_lshrrev_b32 v5, 1, v2")
    a("v_xor_b32 v6, v3, v5")
    a("v_lshl_add_u32 v%d, v6, 4, v4" % XO)
    a("v_xor_b32 v6, 4, v6")
    a("v_lshl_add_u32 v%d, v6, 4, v4" % (XO + 1))
    a("v_add_u32 v%d, s42, v%d" % (XO + 1, XO + 1))
    a("s_lshl_b32 s44, s42, 1")
    a("v_add_u32 v%d, s44, v%d" % (XO + 2, XO))
    a("v_add_u32 v%d, s44, v%d" % (XO + 3, XO + 1))
    a("s_and_b32 s45, s16, 1")
    a("s_lshr_b32 s46, s16, 1")
    a("s_lshl_b32 s47, s17, 10")
    a("s_lshl_b32 s48, s19, 8")
    a("s_add_u32 s47, s47, s48")
    a("s_lshl_b32 s48, s46, 7")
    a("s_add_u32 s47, s47, s48")
    a("s_lshl_b32 s48, s19, 7")
    a("s_cmp_eq_u32 s17, 3")
    a("s_cselect_b32 s47, s48, s47")
    a("s_lshl_b32 s48, s45, 5")
    a("s_mul_i32 s48, s48, s43")
    a("s_add_u32 s47, s47, s48")
    a("v_mul_lo_u32 v4, v2, s43")
    a("v_add_u32 v4, s47, v4")
    a("v_and_b32 v5, 1, v5")
    a("v_lshlrev_b32 v5, 2, v5")
    a("v_xor_b32 v5, v3, v5")
    a("v_lshl_add_u32 v%d, v5, 4, v4" % BO)
    a("s_lshl_b32 s48, s43, 3")
    a("s_sub_u32 s48, s48, 0x400")
    for i in range(1, 4):
        a("v_add_u32 v%d, s48, v%d" % (BO + i, BO + i - 1))
    a("s_lshl_b32 s34, s43, 6")
    a("s_lshl_b32 s35, s16, 12")
    a("s_mov_b32 s32, 0")
    a("s_mov_b32 s33, 0")
    a("s_waitcnt lgkmcnt(0)")
    stamp(a, 2)
    srd(a, 20, 4, 2 * MB)
    srd(a, 28, 14, WS_SIZE)
    a("s_cmp_eq_u32 s46, 0")
    a("s_cselect_b32 s24, s8, s10")
    a("s_cselect_b32 s25, s9, s11")
    a("s_cmp_eq_u32 s17, 3")
    a("s_cselect_b32 s24, s24, s12")
    a("s_cselect_b32 s25, s25, s13")
    csel(a, 26, 0x80000, 0x180000)
    a("s_mov_b32 s27, 0x20000")
    a("v_and_b32 v7, 31, v0")
    a("v_lshrrev_b32 v8, 5, v0")
    a("s_cbranch_scc0 K1_noT")
    a("v_lshlrev_b32 v4, 14, v7")
    a("v_lshl_add_u32 v4, v8, 4, v4")
    a(f"global_load_dwordx4 {vr(T,4)}, v4, s[8:9]")
    a(f"global_load_dwordx4 {vr(T+4,4)}, v4, s[8:9] offset:32")
    a(f"global_load_dwordx4 {vr(T+8,4)}, v4, s[10:11]")
    a(f"global_load_dwordx4 {vr(T+12,4)}, v4, s[10:11] offset:32")
    a.label("K1_noT")
    def dma_x(i): return f"buffer_load_dwordx4 v{XO+i}, s[20:23], s32 offen offset:{1024*i} lds"
    def dma_b(i): return f"buffer_load_dwordx4 v{BO+i}, s[24:27], s33 offen offset:{1024*i} lds"
    for c in range(R):
        a("s_mov_b32 m0, s35")
        a("s_add_u32 s35, s35, 0x4000")
        for i in range(4): a(dma_x(i))
        a("s_mov_b32 m0, s35")
        a("s_add_u32 s35, s35, 0x4000")
        for i in range(4): a(dma_b(i))
        a("s_add_u32 s32, s32, 128")
        a("s_add_u32 s33, s33, s34")
    a("s_sub_u32 s35, s35, %d" % (R * 0x8000))
    perm23(a, 9, 7, 4, 5)
    a("s_lshl_b32 s47, s46, 13")
    a("v_lshlrev_b32 v4, 7, v9")
    a("v_add_u32 v4, s47, v4")
    a("v_lshrrev_b32 v5, 1, v9")
    a("v_and_b32 v5, 7, v5")
    a("v_xor_b32 v5, v5, v8")
    for ks in range(4):
        a(f"v_xor_b32 v6, {2*ks}, v5")
        a(f"v_lshl_add_u32 v{AX+ks}, v6, 4, v4")
    a("v_lshrrev_b32 v4, 2, v0")
    a("v_and_b32 v4, 3, v4")
    a("v_lshl_add_u32 v5, v8, 3, v4")
    a("v_lshlrev_b32 v5, 7, v5")
    a("v_lshrrev_b32 v4, 1, v4")
    a("v_xor_b32 v4, s45, v4")
    a("v_lshl_add_u32 v5, v4, 6, v5")
    a("v_and_b32 v4, 16, v0")
    a("v_lshl_add_u32 v5, v4, 1, v5")
    a("v_and_b32 v4, 1, v0")
    a("v_lshl_add_u32 v5, v4, 4, v5")
    a("v_and_b32 v4, 2, v0")
    a("v_lshl_add_u32 v5, v4, 2, v5")
    a(f"v_add_u32 v{AB}, 0x4000, v5")
    a("v_lshlrev_b32 v4, 7, v7")
    a("v_and_b32 v5, 2, v7")
    a("v_lshl_add_u32 v4, v5, 5, v4")
    a("s_add_u32 s47, s35, 0x4000")
    a(f"v_add_u32 v{PA}, s47, v4")
    a("v_and_b32 v5, 1, v7")
    a("v_lshlrev_b32 v5, 15, v5")
    a(f"v_or_b32 v{PV}, 0x3f80, v5")
    a("s_lshl_b32 s38, s19, 2")
    a("s_or_b32 s38, s38, s17")
    a("s_lshl_b32 s38, s38, 1")
    a("s_or_b32 s38, s38, s46")
    for i in range(64): a(f"v_mov_b32 v{ACC+i}, 0")
    a("s_mov_b32 s36, 0")

    def reads(f, ks):
        r = []
        for b in range(2): r.append(f"ds_read_b128 {vr(f+4*b,4)}, v{AX+ks} offset:{4096*b}")
        for j in range(2):
            for q in range(2): r.append(f"ds_read_b64_tr_b16 {vr(f+8+4*j+2*q,2)}, v{AB} offset:{8192*j+2048*ks+512*q}")
        return [r[0], r[2], r[3], r[1], r[4], r[5]]
    def mf(var, f, b, j):
        X = vr(f + 4 * b, 4); B = vr(f + 8 + 4 * j, 4); D = vr(acc(b, j), 16)
        return f"v_mfma_f32_32x32x16_bf16 {D}, {B}, {X}, {D}" if var == 0 else f"v_mfma_f32_32x32x16_bf16 {D}, {X}, {B}, {D}"
    def patch(lbl):
        a("s_cmp_lg_u32 s38, 7")
        a(f"s_cbranch_scc1 {lbl}")
        a(f"ds_write_b16 v{PA}, v{PV}")
        a.label(lbl)
    stamp(a, 3)
    a("s_waitcnt vmcnt(%d)" % (8 * (R - 1)))
    stamp(a, 4)
    patch("K1_p0")
    a("s_waitcnt lgkmcnt(0)")
    a("s_barrier")
    for r in reads(F[0], 0): a(r)
    a("s_cmp_ge_u32 s17, 2")
    a("s_cbranch_scc1 K1_loop1")
    for var in range(2):
        L = f"K1_loop{var}"
        a.label(L)
        for ks in range(3):
            cur, nxt = F[ks & 1], F[(ks + 1) & 1]
            rd = reads(nxt, ks + 1)
            a("s_waitcnt lgkmcnt(0)")
            a(mf(var, cur, 0, 0))
            for r in rd[:3]: a(r)
            a(mf(var, cur, 1, 0))
            for r in rd[3:]: a(r)
            a(mf(var, cur, 0, 1))
            a(mf(var, cur, 1, 1))
        cur, nxt = F[1], F[0]
        a("s_cmp_eq_u32 s36, 7")
        a(f"s_cbranch_scc1 {L}_last")
        a("s_add_u32 s36, s36, 1")
        a(f"s_and_b32 s37, s36, {R-1}")
        csel(a, 37, 0x8000, (-(R-1)*0x8000) & 0xffffffff)
        for ks in range(4): a(f"v_add_u32 v{AX+ks}, s37, v{AX+ks}")
        a(f"v_add_u32 v{AB}, s37, v{AB}")
        a(f"v_add_u32 v{PA}, s37, v{PA}")
        a("s_cmp_lt_u32 s36, 6")
        a(f"s_cbranch_scc1 {L}_w16")
        a("s_cmp_eq_u32 s36, 6")
        a(f"s_cbranch_scc1 {L}_w8")
        a("s_waitcnt vmcnt(0)")
        a.label(f"{L}_w8")
        a("s_waitcnt vmcnt(8)")
        a.label(f"{L}_w16")
        a("s_waitcnt vmcnt(16)")
        patch(f"{L}_p")
        a("s_add_u32 s47, s35, 0x4000")
        a("s_waitcnt lgkmcnt(0)")
        a("s_barrier")
        rd = reads(nxt, 0)
        a("s_cmp_lt_u32 s36, %d" % (8 - R + 1))
        a(mf(var, cur, 0, 0))
        for r in rd[:3]: a(r)
        a(mf(var, cur, 1, 0))
        for r in rd[3:]: a(r)
        a(f"s_cbranch_scc0 {L}_nodma")
        a("s_mov_b32 m0, s35")
        a(mf(var, cur, 0, 1))
        for i in range(4): a(dma_x(i))
        a("s_mov_b32 m0, s47")
        a(mf(var, cur, 1, 1))
        for i in range(4): a(dma_b(i))
        a("s_add_u32 s35, s35, 0x8000")
        a("s_add_u32 s32, s32, 128")
        a("s_add_u32 s33, s33, s34")
        a(f"s_branch {L}")
        a.label(f"{L}_nodma")
        a(mf(var, cur, 0, 1))
        a(mf(var, cur, 1, 1))
        a(f"s_branch {L}")
        a.label(f"{L}_last")
        stamp(a, 5)
        a("s_waitcnt lgkmcnt(0)")
        for (b, j) in ((0, 0), (1, 0), (0, 1), (1, 1)): a(mf(var, cur, b, j))
        if var == 0:
            a("s_lshl_b32 s47, s46, 11")
            a("s_lshl_b32 s48, s45, 17")
            a("s_add_u32 s47, s47, s48")
            a("v_lshlrev_b32 v4, 5, v9")
            a("v_lshl_add_u32 v4, v8, 4, v4")
            a(f"v_add_u32 v{ST}, s47, v4")
            a("s_lshl_b32 s47, s17, 21")
            a("s_lshl_b32 s48, s19, 19")
            a("s_add_u32 s47, s47, s48")
            a("s_lshl_b32 s48, s18, 12")
            a("s_add_u32 s50, s47, s48")
            a("s_add_u32 s51, s50, 0x10000")
            a("s_add_u32 s52, s50, 0x40000")
            a("s_add_u32 s53, s50, 0x50000")
            n = 0
            for j in range(2):
                for b in range(2):
                    for hh in range(2):
                        d = PK + 4 * (n % 8); n += 1
                        for u in range(4):
                            s = acc(b, j) + 8 * hh + 2 * u
                            a(f"v_cvt_pk_bf16_f32 v{d+u}, v{s}, v{s+1}")
                        a(f"buffer_store_dwordx4 {vr(d,4)}, v{ST}, s[28:31], s{50+2*j+hh} offen offset:{1024*b}")
            stamp(a, 6); stamp_out(a, 0)
            a("s_endpgm")
    a("s_cmp_eq_u32 s17, 3")
    a("s_cbranch_scc1 K1_epiA")
    a("s_lshl_b32 s47, s46, 11")
    a("s_lshl_b32 s48, s45, 17")
    a("s_add_u32 s47, s47, s48")
    a("v_and_b32 v4, 15, v9")
    a("v_lshlrev_b32 v4, 5, v4")
    a("v_lshl_add_u32 v4, v8, 4, v4")
    a("v_lshrrev_b32 v5, 4, v9")
    a("v_lshl_add_u32 v4, v5, 16, v4")
    a(f"v_add_u32 v{ST}, s47, v4")
    a("s_lshl_b32 s48, s19, 19")
    a(f"s_add_u32 s47, s48, {V_OFF:#x}")
    a("s_lshl_b32 s48, s18, 12")
    a("s_add_u32 s50, s47, s48")
    a("s_add_u32 s51, s50, 0x40000")
    n = 0
    for j in range(2):
        for b in range(2):
            for u2 in range(2):
                d = PK + 4 * (n % 8); n += 1
                for u in range(4):
                    s = acc(b, j) + 8 * u2 + 2 * u
                    a(f"v_cvt_pk_bf16_f32 v{d+u}, v{s}, v{s+1}")
                a(f"buffer_store_dwordx4 {vr(d,4)}, v{ST}, s[28:31], s{50+j} offen offset:{512*(2*b+u2)}")
    stamp(a, 6); stamp_out(a, 0)
    a("s_endpgm")
    a.label("K1_epiA")
    for i in range(8): a(f"v_xor_b32 v{T+16+i}, 0x80008000, v{T+8+i}")
    a("s_lshl_b32 s47, s19, 10")
    a("s_lshl_b32 s48, s45, 9")
    a("s_add_u32 s47, s47, s48")
    a("s_lshl_b32 s48, s46, 3")
    a(f"s_mov_b32 s49, {4*G_T1:#x}")
    a("v_mul_lo_u32 v4, v8, s49")
    a("v_add_u32 v4, s48, v4")
    a("v_lshl_add_u32 v5, v9, 4, v4")
    a(f"v_add_u32 v{ST}, s47, v5")
    a(f"v_add_u32 v{ST+1}, {256*16}, v4")
    a(f"s_mul_i32 s50, s18, {G_ROW}")
    a(f"s_add_u32 s50, s50, {G_OFF:#x}")
    def pk(b, j): return PK + 16 * b + 8 * j
    for j in range(2):
        for b in range(2):
            for u in range(8):
                s = acc(b, j) + 2 * u
                a(f"v_cvt_pk_bf16_f32 v{pk(b,j)+u}, v{s}, v{s+1}")
    C0, N0, NN0 = T, T + 8, T + 16
    def mfT(D, A, B, first): return f"v_mfma_f32_32x32x16_bf16 {vr(D,16)}, {vr(A,4)}, {vr(B,4)}, {'0' if first else vr(D,16)}"
    def gstore(vo):
        a("s_mov_b32 s51, s50")
        for r in range(16):
            d = F[0] + 2 * r
            a(f"v_cvt_pk_bf16_f32 v{d}, v{acc(0,0)+r}, v{acc(1,0)+r}")
            a(f"v_cvt_pk_bf16_f32 v{d+1}, v{acc(0,1)+r}, v{acc(1,1)+r}")
            a(f"buffer_store_dwordx2 {vr(d,2)}, v{vo}, s[28:31], s51 offen")
            if r < 15: a(f"s_add_u32 s51, s51, {(G_T1 * 5 if (r & 3) == 3 else G_T1):#x}")
    a("s_or_b32 s47, s19, s45")
    a("s_cmp_lg_u32 s47, 0")
    a("s_cbranch_scc1 K1_epiA2")
    for b in range(2):
        a(mfT(acc(b, 0), C0, pk(b, 1), True)); a(mfT(acc(b, 1), N0, pk(b, 1), True))
    for b in range(2):
        a(mfT(acc(b, 0), C0 + 4, pk(b, 1) + 4, False)); a(mfT(acc(b, 1), N0 + 4, pk(b, 1) + 4, False))
    a("s_mov_b32 exec_lo, 1")
    a("s_mov_b32 exec_hi, 1")
    gstore(ST + 1)
    for b in range(2):
        for u in range(8): a(f"v_mov_b32 v{pk(b,1)+u}, 0")
    a("s_mov_b64 exec, -1")
    a.label("K1_epiA2")
    for kk in range(2):
        for b in range(2):
            a(mfT(acc(b, 0), C0 + 4 * kk, pk(b, 0) + 4 * kk, kk == 0))
            a(mfT(acc(b, 1), N0 + 4 * kk, pk(b, 0) + 4 * kk, kk == 0))
    for kk in range(2):
        for b in range(2):
            a(mfT(acc(b, 0), NN0 + 4 * kk, pk(b, 1) + 4 * kk, False))
            a(mfT(acc(b, 1), C0 + 4 * kk, pk(b, 1) + 4 * kk, False))
    gstore(ST)
    stamp(a, 6); stamp_out(a, 0)
    a.label("K1_done")
    a("s_endpgm")
    return a.lines, 184, 64

def gen_k2():
    a = Asm()
    KF = 8
    VF = 44
    QF = 116
    SD = 120
    SB = [136, 152, 168]
    Z = 184
    PM = 200
    P = [208, 216]
    O = 224
    GX, GW = 240, 244
    M = 248
    NINF = 249
    a("s_cmp_ge_u32 s2, 256")
    a("s_cbranch_scc1 K2_done")
    stamp(a, 0, True); stamp(a, 1)
    a("s_load_dwordx2 s[4:5], s[0:1], 0")
    a("s_load_dwordx2 s[6:7], s[0:1], 64")
    a("s_load_dwordx2 s[14:15], s[0:1], 88")
    a("v_lshrrev_b32 v1, 6, v0")
    a("v_and_b32 v0, 63, v0")
    a("v_readfirstlane_b32 s16, v1")
    a("s_and_b32 s17, s2, 7")
    a("s_lshl_b32 s17, s17, 2")
    a("s_and_b32 s18, s16, 3")
    a("s_or_b32 s17, s17, s18")
    a("s_lshr_b32 s18, s2, 3")
    a("s_lshl_b32 s18, s18, 1")
    a("s_lshr_b32 s19, s16, 2")
    a("s_or_b32 s18, s18, s19")
    a("s_lshl_b32 s19, s2, 3")
    a("s_or_b32 s19, s19, s16")
    a("v_and_b32 v2, 31, v0")
    a("v_lshrrev_b32 v3, 5, v0")
    perm23(a, 4, 2, 5, 6)
    a("v_lshlrev_b32 v5, 4, v3")
    a("v_lshl_add_u32 v6, v2, 5, v5")
    a("v_lshl_add_u32 v7, v4, 5, v5")
    a("s_lshl_b32 s20, s17, 16")
    a("s_lshl_b32 s21, s18, 10")
    a("s_add_u32 s20, s20, s21")
    a(f"s_add_u32 s21, s20, {K_OFF - 8192:#x}")
    a(f"s_add_u32 s22, s20, {K_OFF - 4096:#x}")
    a(f"s_add_u32 s23, s20, {K_OFF:#x}")
    a(f"s_add_u32 s24, s20, {V_OFF - 8192:#x}")
    a(f"s_add_u32 s25, s20, {V_OFF - 4096:#x}")
    a(f"s_add_u32 s26, s20, {V_OFF:#x}")
    a("s_lshl_b32 s27, s19, 10")
    a("v_lshlrev_b32 v1, 4, v0")
    a("v_add_u32 v5, s27, v1")
    a("s_waitcnt lgkmcnt(0)")
    stamp(a, 2)
    srd(a, 28, 14, WS_SIZE)
    a(f"global_load_dwordx4 {vr(GX,4)}, v5, s[4:5]")
    a(f"global_load_dwordx4 {vr(GW,4)}, v1, s[6:7]")
    a(f"buffer_load_dwordx4 {vr(QF,4)}, v6, s[28:31], s20 offen")
    def kv(base, j, extra=0):
        o = (8 - j) * 1024 + extra
        return base + o // 4096, o % 4096
    for j in range(9):
        s, o = kv(21, j)
        a(f"buffer_load_dwordx4 {vr(KF+4*j,4)}, v7, s[28:31], s{s} offen offset:{o}")
    a("s_mov_b32 exec_lo, 0xffff")
    a("s_mov_b32 exec_hi, 0xffff")
    order = [1, 2, 3, 4, 5, 6, 7, 0, 8]
    for j in order:
        for u in range(2):
            s, o = kv(24, j, 512 * u)
            a(f"buffer_load_dwordx4 {vr(VF+8*j+4*u,4)}, v7, s[28:31], s{s} offen offset:{o}")
    a("s_mov_b32 exec_lo, 0xffff0000")
    a("s_mov_b32 exec_hi, 0xffff0000")
    a("s_mov_b32 s33, 0x3f803f80")
    for i in range(72): a(f"v_mov_b32 v{VF+i}, s33")
    a("s_mov_b64 exec, -1")
    a("v_lshlrev_b32 v5, 3, v3")
    a("v_sub_u32 v5, v2, v5")
    MK = 40
    for r in range(16):
        a(f"v_cmp_le_i32 {sr(MK+2*r,2)}, {16*(r>>3)+(r&7)}, v5")
    a("v_mov_b32 v1, 0xffff")
    a(f"v_mov_b32 v{M}, 0xffff0000")
    for u in range(8):
        a(f"v_cndmask_b32 v{PM+u}, 0, v1, {sr(MK+4*u,2)}")
        a(f"v_cndmask_b32 v{P[0]}, 0, v{M}, {sr(MK+4*u+2,2)}")
        a(f"v_or_b32 v{PM+u}, v{PM+u}, v{P[0]}")
    for i in range(16): a(f"v_mov_b32 v{Z+i}, 0")
    a(f"v_mov_b32 v{NINF}, 0xff800000")
    stamp(a, 3)
    a("s_waitcnt vmcnt(28)")
    stamp(a, 4)
    a("v_mov_b32 v1, 0")
    for i in range(4): a(f"v_dot2c_f32_bf16 v1, v{GX+i}, v{GW+i}")
    for sh in (1, 2, 4, 8):
        a(f"v_add_f32_dpp v1, v1, v1 row_shr:{sh} row_mask:0xf bank_mask:0xf bound_ctrl:0")
    a("v_add_f32_dpp v1, v1, v1 row_bcast:15 row_mask:0xa bank_mask:0xf")
    a("v_add_f32_dpp v1, v1, v1 row_bcast:31 row_mask:0xc bank_mask:0xf")
    a(f"v_mul_f32 v1, {f2u(-math.log2(math.e)):#x}, v1")
    a("v_exp_f32 v1, v1")
    a("v_add_f32 v1, 1.0, v1")
    a("v_rcp_f32 v1, v1")
    a("s_lshl_b32 s27, s19, 2")
    a(f"s_add_u32 s27, s27, {GT_OFF:#x}")
    a(f"v_mov_b32 v{GX}, 0")
    a("s_mov_b32 exec_lo, 0")
    a("s_mov_b32 exec_hi, 0x80000000")
    a(f"buffer_store_dword v1, v{GX}, s[28:31], s27 offen")
    a("s_mov_b64 exec, -1")
    a("s_waitcnt vmcnt(28)")
    a(f"s_mov_b32 s34, {f2u(0.25*math.log2(math.e)):#x}")
    for i in range(4):
        a(f"v_lshlrev_b32 v{GX}, 16, v{QF+i}")
        a(f"v_and_b32 v{GX+1}, 0xffff0000, v{QF+i}")
        a(f"v_mul_f32 v{GX}, s34, v{GX}")
        a(f"v_mul_f32 v{GX+1}, s34, v{GX+1}")
        a(f"v_cvt_pk_bf16_f32 v{QF+i}, v{GX}, v{GX+1}")
    def smf(D, j, C): return f"v_mfma_f32_32x32x16_bf16 {vr(D,16)}, {vr(KF+4*j,4)}, {vr(QF,4)}, {C}"
    def zswitch(j, tag):
        a(f"s_cmp_lg_u32 s18, {j-1}")
        a(f"s_cbranch_scc1 K2_z{tag}{j}")
        a("s_nop 6")
        for i in range(16): a(f"v_mov_b32 v{Z+i}, v{NINF}")
        a("s_nop 1")
        a.label(f"K2_z{tag}{j}")
    def maxtile(S, first):
        if first:
            a(f"v_max3_f32 v{M}, v{S}, v{S+1}, v{S+2}")
            rest = list(range(3, 16))
        else: rest = list(range(16))
        while len(rest) >= 2:
            a(f"v_max3_f32 v{M}, v{M}, v{S+rest[0]}, v{S+rest[1]}"); rest = rest[2:]
        if rest: a(f"v_max_f32 v{M}, v{M}, v{S+rest[0]}")
    a("s_waitcnt vmcnt(27)")
    stamp(a, 5)
    a(smf(SD, 0, "0"))
    for j in range(1, 9):
        a(f"s_waitcnt vmcnt({27-j})")
        zswitch(j, "a")
        a(smf(SB[j % 3], j, vr(Z, 16)))
        if j >= 3: maxtile(SB[(j - 2) % 3], j == 3)
    maxtile(SB[7 % 3], False)
    So = SB[8 % 3]
    for r in range(16): a(f"v_cndmask_b32 v{SD+r}, v{So+r}, v{SD+r}, {sr(MK+2*r,2)}")
    maxtile(SD, False)
    a(f"v_mov_b32 v1, v{M}")
    a(f"v_permlane32_swap_b32 v1, v{M}")
    a(f"v_max_f32 v{M}, v1, v{M}")
    for i in range(16): a(f"v_sub_f32 v{Z+i}, 0, v{M}")
    stamp(a, 6)
    def pv(j, Pb, u, first=False):
        return f"v_mfma_f32_32x32x16_bf16 {vr(O,16)}, {vr(VF+8*j+4*u,4)}, {vr(Pb+4*u,4)}, {'0' if first else vr(O,16)}"
    zswitch(1, "b")
    a(smf(SB[1], 1, vr(Z, 16)))
    zswitch(2, "b")
    a(smf(SB[2], 2, vr(Z, 16)))
    for r in range(16): a(f"v_sub_f32 v{SD+r}, v{SD+r}, v{M}")
    for n, j in enumerate(range(1, 8)):
        S = SB[j % 3]; Pb = P[n & 1]
        for r in range(8): a(f"v_exp_f32 v{S+r}, v{S+r}")
        if n > 0:
            a(pv(j - 1, P[(n - 1) & 1], 1))
        for u in range(4): a(f"v_cvt_pk_bf16_f32 v{Pb+u}, v{S+2*u}, v{S+2*u+1}")
        for r in range(8, 16): a(f"v_exp_f32 v{S+r}, v{S+r}")
        a(f"s_waitcnt vmcnt({1 + 16 - 2*n})")
        a(pv(j, Pb, 0, n == 0))
        for u in range(4, 8): a(f"v_cvt_pk_bf16_f32 v{Pb+u}, v{S+2*u}, v{S+2*u+1}")
        if j + 2 <= 7:
            zswitch(j + 2, "b")
            a(smf(SB[(j + 2) % 3], j + 2, vr(Z, 16)))
    for r in range(8): a(f"v_exp_f32 v{SD+r}, v{SD+r}")
    a(pv(7, P[0], 1))
    for r in range(8, 16): a(f"v_exp_f32 v{SD+r}, v{SD+r}")
    Pd, Po = P[1], SB[0]
    for u in range(8): a(f"v_cvt_pk_bf16_f32 v{Po+u}, v{SD+2*u}, v{SD+2*u+1}")
    for u in range(8): a(f"v_and_b32 v{Pd+u}, v{Po+u}, v{PM+u}")
    a("s_waitcnt vmcnt(1)")
    a(pv(0, Pd, 0))
    for u in range(8): a(f"v_xor_b32 v{Po+u}, v{Po+u}, v{Pd+u}")
    a(pv(0, Pd, 1))
    a(pv(8, Po, 0))
    a(pv(8, Po, 1))
    a("v_lshlrev_b32 v5, 4, v3")
    a("v_lshl_add_u32 v5, v2, 10, v5")
    a("s_lshl_b32 s20, s18, 15")
    a("s_lshl_b32 s21, s17, 5")
    a("s_add_u32 s20, s20, s21")
    a(f"s_add_u32 s20, s20, {O_OFF:#x}")
    a(f"v_rcp_f32 v1, v{O+8}")
    for i in range(8): a(f"v_mul_f32 v{O+i}, v{O+i}, v1")
    for u in range(4): a(f"v_cvt_pk_bf16_f32 v{P[0]+u}, v{O+2*u}, v{O+2*u+1}")
    a(f"buffer_store_dwordx4 {vr(P[0],4)}, v5, s[28:31], s20 offen")
    stamp(a, 7); stamp_out(a, 1)
    a.label("K2_done")
    a("s_endpgm")
    return a.lines, 256, 80

def gen_k3():
    a = Asm()
    CR, CI, GF, WF = 16, 32, 48, 80
    Y, B = 112, 128
    F = [144, 152]
    GT = 12
    OO, WO = 8, 10
    AO, AW = 160, 164
    a("s_cmp_ge_u32 s2, 256")
    a("s_cbranch_scc1 K3_done")
    stamp(a, 0, True); stamp(a, 1)
    a("s_load_dwordx4 s[4:7], s[0:1], 8")
    a("s_load_dwordx2 s[8:9], s[0:1], 56")
    a("s_load_dwordx2 s[10:11], s[0:1], 72")
    a("s_load_dwordx2 s[14:15], s[0:1], 88")
    a("v_lshrrev_b32 v1, 6, v0")
    a("v_and_b32 v0, 63, v0")
    a("v_readfirstlane_b32 s16, v1")
    a("s_and_b32 s17, s2, 7")
    a("s_lshl_b32 s17, s17, 1")
    a("s_bfe_u32 s18, s2, 0x10003")
    a("s_or_b32 s17, s17, s18")
    a("s_sub_u32 s18, 32, s17")
    a("s_cmp_eq_u32 s17, 0")
    a("s_cselect_b32 s18, 16, s18")
    a("s_bitcmp1_b32 s2, 4")
    a("s_cselect_b32 s17, s18, s17")
    a("s_lshr_b32 s18, s2, 5")
    a("s_and_b32 s19, s16, 1")
    a("s_lshr_b32 s20, s16, 1")
    a("v_and_b32 v2, 31, v0")
    a("v_lshrrev_b32 v3, 5, v0")
    a("s_lshl_b32 s21, s20, 10")
    a("s_add_u32 s21, s21, s17")
    a("v_lshl_add_u32 v4, v2, 5, s21")
    a("v_lshlrev_b32 v5, 12, v4")
    a("v_lshl_add_u32 v5, v3, 6, v5")
    a("v_lshlrev_b32 v13, 2, v4")
    a("v_and_b32 v6, 4, v2")
    a("v_lshlrev_b32 v6, 2, v6")
    a("v_lshrrev_b32 v7, 3, v2")
    a("v_lshl_add_u32 v6, v7, 2, v6")
    a("v_and_b32 v7, 3, v2")
    a("v_add_u32 v6, v6, v7")
    a("s_lshl_b32 s22, s18, 6")
    a("s_lshl_b32 s23, s19, 5")
    a("s_add_u32 s22, s22, s23")
    a("v_add_u32 v6, s22, v6")
    a("v_sub_u32 v7, 0x200, v6")
    a("s_sub_u32 s23, 32, s17")
    a("s_and_b32 s23, s23, 31")
    a("s_cmp_ge_u32 s18, 4")
    a("s_cselect_b64 vcc, -1, 0")
    a("s_cselect_b32 s23, s23, s17")
    a("s_cselect_b32 s24, 0, 0x80008000")
    a("v_cndmask_b32 v6, v6, v7, vcc")
    a(f"v_mul_u32_u24 v7, {8*264}, v3")
    a("v_add_lshl_u32 v6, v6, v7, 4")
    a(f"s_mul_i32 s23, s23, {G_T1}")
    a(f"s_add_u32 s23, s23, {G_OFF:#x}")
    a("v_lshrrev_b32 v14, 3, v0")
    a("v_and_b32 v15, 7, v0")
    a("v_lshrrev_b32 v1, 1, v14")
    a("v_and_b32 v7, 1, v1")
    a("v_lshlrev_b32 v7, 2, v7")
    a("v_xor_b32 v7, v15, v7")
    a("v_lshlrev_b32 v7, 4, v7")
    a("v_lshl_add_u32 v7, v14, 10, v7")
    a("s_lshl_b32 s25, s16, 14")
    a("s_lshl_b32 s26, s18, 7")
    a("s_add_u32 s25, s25, s26")
    a(f"v_add_u32 v{WO}, s25, v7")
    a(f"v_add_u32 v{WO+1}, {7*1024}, v{WO}")
    a("v_xor_b32 v7, v15, v1")
    a("v_lshlrev_b32 v1, 15, v14")
    a("s_lshl_b32 s25, s16, 19")
    a("s_lshl_b32 s26, s17, 10")
    a("s_add_u32 s25, s25, s26")
    a(f"s_add_u32 s25, s25, {O_OFF - 2048:#x}")
    a("v_add_u32 v1, s25, v1")
    a(f"v_lshl_add_u32 v{OO}, v7, 4, v1")
    a("v_xor_b32 v7, 4, v7")
    a(f"v_lshl_add_u32 v{OO+1}, v7, 4, v1")
    a(f"v_add_u32 v{OO+1}, {8*32*1024 - 1024:#x}, v{OO+1}")
    a("s_waitcnt lgkmcnt(0)")
    stamp(a, 2)
    srd(a, 28, 14, WS_SIZE)
    srd(a, 32, 8, 512 * 1024)
    srd(a, 36, 10, 2 * MB)
    for u in range(4): a(f"global_load_dwordx4 {vr(CR+4*u,4)}, v5, s[4:5] offset:{16*u}")
    for u in range(4): a(f"global_load_dwordx4 {vr(CI+4*u,4)}, v5, s[6:7] offset:{16*u}")
    for kk in range(8):
        a(f"buffer_load_dwordx4 {vr(GF+4*kk,4)}, v6, s[28:31], s23 offen")
        if kk < 7: a(f"s_add_u32 s23, s23, {G_ROW}")
    a(f"s_mov_b32 s25, {GT_OFF:#x}")
    a(f"buffer_load_dword v{GT}, v13, s[28:31], s25 offen")
    a("s_lshl_b32 s25, s16, 12")
    a("s_mov_b32 s26, 0")
    a("s_mov_b32 s27, 0")
    for c in range(8):
        a("s_mov_b32 m0, s25")
        a("s_add_u32 s25, s25, 0x4000")
        a(f"buffer_load_dwordx4 v{WO}, s[32:35], s27 offen lds")
        a(f"buffer_load_dwordx4 v{WO+1}, s[32:35], s27 offen offset:1024 lds")
        a(f"buffer_load_dwordx4 v{OO}, s[28:31], s26 offen offset:2048 lds")
        a(f"buffer_load_dwordx4 v{OO+1}, s[28:31], s26 offen offset:3072 lds")
        a("s_add_u32 s26, s26, 128")
        a("s_add_u32 s27, s27, 0x10000")
    a("v_lshrrev_b32 v1, 4, v2")
    a("v_lshlrev_b32 v1, 12, v1")
    a("v_and_b32 v7, 15, v2")
    a("v_lshl_add_u32 v1, v7, 7, v1")
    a("s_lshl_b32 s25, s20, 13")
    a("s_add_u32 s25, s25, 2048")
    a("v_add_u32 v1, s25, v1")
    a("v_lshrrev_b32 v7, 1, v7")
    a("v_xor_b32 v7, v7, v3")
    for ks in range(4):
        a(f"v_xor_b32 v14, {2*ks}, v7")
        a(f"v_lshl_add_u32 v{AO+ks}, v14, 4, v1")
    a("v_lshrrev_b32 v1, 2, v0")
    a("v_and_b32 v1, 3, v1")
    a("v_lshl_add_u32 v7, v3, 3, v1")
    a("v_lshlrev_b32 v7, 7, v7")
    a("v_lshrrev_b32 v1, 1, v1")
    a("v_xor_b32 v1, s19, v1")
    a("v_lshl_add_u32 v7, v1, 6, v7")
    a("v_and_b32 v1, 1, v0")
    a("v_lshl_add_u32 v7, v1, 5, v7")
    a("v_and_b32 v1, 16, v0")
    a("v_add_u32 v7, v1, v7")
    a("v_and_b32 v1, 2, v0")
    a(f"v_lshl_add_u32 v{AW}, v1, 2, v7")
    a("v_lshlrev_b32 v4, 10, v4")
    a("v_lshl_add_u32 v4, v3, 5, v4")
    a("s_lshl_b32 s22, s22, 1")
    stamp(a, 3)
    a("s_waitcnt vmcnt(%d)" % (32 + 1 + 8))
    stamp(a, 4)
    for kk in range(8):
        a(f"v_mov_b32 v{WF+4*kk}, v{CR+2*kk}")
        a(f"v_xor_b32 v{WF+4*kk+1}, s24, v{CI+2*kk}")
        a(f"v_mov_b32 v{WF+4*kk+2}, v{CR+2*kk+1}")
        a(f"v_xor_b32 v{WF+4*kk+3}, s24, v{CI+2*kk+1}")
    for kk in range(8):
        a("s_waitcnt vmcnt(%d)" % (32 + 1 + 7 - kk))
        a(f"v_mfma_f32_32x32x16_bf16 {vr(Y,16)}, {vr(GF+4*kk,4)}, {vr(WF+4*kk,4)}, {'0' if kk == 0 else vr(Y,16)}")
    def reads(f, c2, ks):
        o = c2 * 0x4000
        return [f"ds_read_b64_tr_b16 {vr(f,2)}, v{AW} offset:{o + 4096*ks}",
                f"ds_read_b64_tr_b16 {vr(f+2,2)}, v{AW} offset:{o + 4096*ks + 512}",
                f"ds_read_b128 {vr(f+4,4)}, v{AO+ks} offset:{o}"]
    FB = [CR, CR + 8, CI, CI + 8]
    first = True
    for st in range(4):
        a("s_waitcnt vmcnt(%d)" % (8 * (3 - st)))
        if st == 0: stamp(a, 5)
        if st == 3: stamp(a, 6)
        if STAMP: a("s_waitcnt lgkmcnt(0)")
        a("s_barrier")
        steps = [(c2, ks) for c2 in range(2) for ks in range(4)]
        c2base = (st & 1) * 2
        for n in range(3):
            for r in reads(FB[n], c2base + steps[n][0], steps[n][1]): a(r)
        for n in range(8):
            if n + 3 < 8:
                for r in reads(FB[(n + 3) % 4], c2base + steps[n + 3][0], steps[n + 3][1]): a(r)
                a("s_waitcnt lgkmcnt(9)")
            else:
                a("s_waitcnt lgkmcnt(%d)" % (3 * (7 - n)))
            f = FB[n % 4]
            a(f"v_mfma_f32_32x32x16_bf16 {vr(B,16)}, {vr(f,4)}, {vr(f+4,4)}, {'0' if first else vr(B,16)}")
            first = False
        if st == 1:
            for ks in range(4): a(f"v_add_u32 v{AO+ks}, 0x10000, v{AO+ks}")
            a(f"v_add_u32 v{AW}, 0x10000, v{AW}")
    for i in range(16): a(f"v_sub_f32 v{Y+i}, v{Y+i}, v{B+i}")
    for i in range(16): a(f"v_fma_f32 v{Y+i}, v{GT}, v{Y+i}, v{B+i}")
    for u in range(8): a(f"v_cvt_pk_bf16_f32 v{WF+u}, v{Y+2*u}, v{Y+2*u+1}")
    a(f"buffer_store_dwordx4 {vr(WF,4)}, v4, s[36:39], s22 offen")
    a(f"buffer_store_dwordx4 {vr(WF+4,4)}, v4, s[36:39], s22 offen offset:16")
    stamp(a, 7); stamp_out(a, 2)
    a.label("K3_done")
    a("s_endpgm")
    return a.lines, 168, 48

def build(path):
    ks = [("fnet_k1_kernel", gen_k1, 256, 131072), ("fnet_k2_kernel", gen_k2, 512, 0), ("fnet_k3_kernel", gen_k3, 256, 131072)]
    head = open(f"cdna_kernels/{NAME}.s.ref").read().split("; Override launch")[0]
    out = head
    for n, _, thr, lds in ks: out += f"; @launch kernel={n} grid=(256,1,1) block=({thr},1,1) lds={lds}\n"
    out += '.amdgcn_target "amdgcn-amd-amdhsa--gfx950"\n'
    kds = []
    for n, g, _, _ in ks:
        lines, v, s = g()
        print("kernel", n)
        lines = fix_hazards(lines)
        code, kd = kernel_text(n, lines, v, 102 if STAMP else s)
        out += code; kds.append(kd)
    out += '.section .rodata,"a"\n' + "".join(kds)
    open(path, "w").write(out)

if __name__ == "__main__":
    if "--dbg" in sys.argv: DBGSTAMP = 37; sys.argv.remove("--dbg")
    if "--stamp" in sys.argv: STAMP = True; sys.argv.remove("--stamp")
    build(sys.argv[1] if len(sys.argv) > 1 else f"cdna_kernels/{NAME}.s")
```

```python
import sys, math, struct
sys.path.insert(0, "work")
from asmlib import *

MB = 1 << 20
Q_OFF, K_OFF, V_OFF, G_OFF, O_OFF, GT_OFF = 0, 2 * MB, 4 * MB, 6 * MB, 9 * MB, 11 * MB
WS_SIZE = 12 * MB
G_ROW = 264 * 16
G_T1 = 16 * G_ROW
NAME = "gated_mix__spectral_fnet__sliding_block__prompt"
def f2u(f): return struct.unpack("<I", struct.pack("<f", f))[0]

STAMP = False
DBGSTAMP = 0
_dn = 0
ST_OFF = 16 * MB
SB0 = 82
def stamp(a, i, real=False):
    if STAMP: a(f"{'s_memrealtime' if real else 's_memtime'} {sr(SB0+2*i,2)}")
def stamp_out(a, kidx, wsptr=14, wave=16):
    if not STAMP: return
    a("s_waitcnt vmcnt(0) lgkmcnt(0)")
    stamp(a, 8); stamp(a, 9, True)
    a("s_waitcnt lgkmcnt(0)")
    a("s_mov_b64 exec, -1")
    for i in range(10): a(f"v_writelane_b32 v1, s{SB0+2*i}, {i}")
    a("s_getreg_b32 s80, hwreg(HW_REG_XCC_ID)")
    a("v_writelane_b32 v1, s80, 10")
    a("s_getreg_b32 s80, hwreg(HW_REG_HW_ID)")
    a("v_writelane_b32 v1, s80, 11")
    a("v_mbcnt_lo_u32_b32 v2, -1, 0")
    a("v_lshlrev_b32 v2, 2, v2")
    a("s_lshl_b32 s80, s2, 9")
    a(f"s_lshl_b32 s81, s{wave}, 6")
    a("s_add_u32 s80, s80, s81")
    a(f"s_add_u32 s80, s80, {ST_OFF + kidx * MB:#x}")
    a("v_add_u32 v2, s80, v2")
    a("s_mov_b64 exec, 0xffff")
    a(f"global_store_dword v2, v1, s[{wsptr}:{wsptr+1}]")
    if DBGSTAMP:
        global _dn
        _dn += 1
        a("s_load_dwordx2 s[80:81], s[0:1], 80")
        a(f"s_lshl_b32 s82, s{wave}, 8")
        a("s_or_b32 s82, s82, s2")
        a(f"s_cmp_lg_u32 s82, {DBGSTAMP}")
        a(f"s_cbranch_scc1 Ldbg{_dn}")
        a("v_mbcnt_lo_u32_b32 v2, -1, 0")
        a("v_lshlrev_b32 v2, 2, v2")
        a(f"v_writelane_b32 v1, {kidx+1}, 12")
        a("s_waitcnt lgkmcnt(0)")
        a("global_store_dword v2, v1, s[80:81]")
        a.label(f"Ldbg{_dn}")

def srd(a, d, base, size):
    a(f"s_mov_b32 s{d}, s{base}")
    a(f"s_mov_b32 s{d+1}, s{base+1}")
    a(f"s_mov_b32 s{d+2}, {size:#x}")
    a(f"s_mov_b32 s{d+3}, 0x20000")

def csel(a, d, x, y):
    a(f"s_mov_b32 s{d}, {y:#x}")
    a(f"s_cselect_b32 s{d}, {x:#x}, s{d}")

def perm23(a, dst, src, t1, t2):
    a(f"v_and_b32 v{t1}, 0x13, v{src}")
    a(f"v_and_b32 v{t2}, 4, v{src}")
    a(f"v_lshl_or_b32 v{t1}, v{t2}, 1, v{t1}")
    a(f"v_and_b32 v{t2}, 8, v{src}")
    a(f"v_lshrrev_b32 v{t2}, 1, v{t2}")
    a(f"v_or_b32 v{dst}, v{t1}, v{t2}")


K1MAP = 0
def gen_k1():
    a = Asm()
    R = 5
    XO, BO, AX, AB, PA, PV, ST = 10, 14, 18, 22, 23, 24, 25
    F = [28, 44]
    ACC = 64
    T = 128
    PK = 152
    AC2 = 184
    def acc(b, j): return ACC + 32 * b + 16 * j
    a("s_cmp_ge_u32 s2, 256")
    a("s_cbranch_scc1 K1_done")
    stamp(a, 0, True); stamp(a, 1)
    a("s_load_dwordx2 s[4:5], s[0:1], 0")
    a("s_load_dwordx4 s[8:11], s[0:1], 24")
    a("s_load_dwordx2 s[12:13], s[0:1], 48")
    a("s_load_dwordx2 s[6:7], s[0:1], 64")
    a("s_load_dwordx2 s[14:15], s[0:1], 88")
    a("v_lshrrev_b32 v1, 6, v0")
    a("v_and_b32 v0, 63, v0")
    a("v_readfirstlane_b32 s54, v1")
    if K1MAP == 0:
        a("s_bfe_u32 s17, s2, 0x20001")
        a("s_and_b32 s18, s2, 1")
        a("s_lshl_b32 s18, s18, 3")
        a("s_bfe_u32 s39, s2, 0x30003")
        a("s_or_b32 s18, s18, s39")
        a("s_lshr_b32 s19, s2, 6")
    else:
        a("s_lshr_b32 s17, s2, 6")
        a("s_and_b32 s18, s2, 1")
        a("s_lshl_b32 s18, s18, 3")
        a("s_bfe_u32 s39, s2, 0x30003")
        a("s_or_b32 s18, s18, s39")
        a("s_bfe_u32 s19, s2, 0x20001")
    a("s_and_b32 s16, s54, 3")
    a("s_and_b32 s45, s16, 1")
    a("s_lshr_b32 s46, s16, 1")
    a("v_and_b32 v7, 31, v0")
    a("v_lshrrev_b32 v8, 5, v0")
    a("s_cmp_lt_u32 s54, 4")
    a("s_cbranch_scc1 K1_compute")
    a("s_lshl_b32 s40, s18, 7")
    a("s_lshl_b32 s41, s16, 5")
    a("s_add_u32 s40, s40, s41")
    a("s_lshl_b32 s41, s18, 2")
    a("s_add_u32 s41, s41, s16")
    a("s_cmp_eq_u32 s17, 3")
    a("s_cselect_b32 s40, s41, s40")
    a("s_cselect_b32 s41, 16, 10")
    csel(a, 42, 0x7fc00, 0x1c00)
    csel(a, 43, 0x400, 0xc00)
    a("s_lshl_b32 s40, s40, 10")
    a("v_lshrrev_b32 v2, 3, v0")
    a("v_and_b32 v3, 7, v0")
    a("v_lshlrev_b32 v4, s41, v2")
    a("v_add_u32 v4, s40, v4")
    a("v_lshrrev_b32 v5, 1, v2")
    a("v_xor_b32 v6, v3, v5")
    a("v_lshl_add_u32 v%d, v6, 4, v4" % XO)
    a("v_xor_b32 v6, 4, v6")
    a("v_lshl_add_u32 v%d, v6, 4, v4" % (XO + 1))
    a("v_add_u32 v%d, s42, v%d" % (XO + 1, XO + 1))
    a("s_lshl_b32 s44, s42, 1")
    a("v_add_u32 v%d, s44, v%d" % (XO + 2, XO))
    a("v_add_u32 v%d, s44, v%d" % (XO + 3, XO + 1))
    a("s_lshl_b32 s47, s17, 10")
    a("s_lshl_b32 s48, s19, 8")
    a("s_add_u32 s47, s47, s48")
    a("s_lshl_b32 s48, s46, 7")
    a("s_add_u32 s47, s47, s48")
    a("s_lshl_b32 s48, s19, 7")
    a("s_cmp_eq_u32 s17, 3")
    a("s_cselect_b32 s47, s48, s47")
    a("s_lshl_b32 s48, s45, 5")
    a("s_mul_i32 s48, s48, s43")
    a("s_add_u32 s47, s47, s48")
    a("v_mul_lo_u32 v4, v2, s43")
    a("v_add_u32 v4, s47, v4")
    a("v_and_b32 v5, 1, v5")
    a("v_lshlrev_b32 v5, 2, v5")
    a("v_xor_b32 v5, v3, v5")
    a("v_lshl_add_u32 v%d, v5, 4, v4" % BO)
    a("s_lshl_b32 s48, s43, 3")
    a("s_sub_u32 s48, s48, 0x400")
    for i in range(1, 4):
        a("v_add_u32 v%d, s48, v%d" % (BO + i, BO + i - 1))
    a("s_lshl_b32 s34, s43, 6")
    a("s_lshl_b32 s35, s16, 12")
    a("s_mov_b32 s32, 0")
    a("s_mov_b32 s33, 0")
    a("s_waitcnt lgkmcnt(0)")
    stamp(a, 2)
    srd(a, 20, 4, 2 * MB)
    a("s_cmp_eq_u32 s46, 0")
    a("s_cselect_b32 s24, s8, s10")
    a("s_cselect_b32 s25, s9, s11")
    a("s_cmp_eq_u32 s17, 3")
    a("s_cselect_b32 s24, s24, s12")
    a("s_cselect_b32 s25, s25, s13")
    csel(a, 26, 0x80000, 0x180000)
    a("s_mov_b32 s27, 0x20000")
    def issue(c):
        sl = (c % R) * 0x8000
        a(f"s_add_u32 m0, s35, {sl:#x}")
        for i in range(4): a(f"buffer_load_dwordx4 v{XO+i}, s[20:23], s32 offen offset:{1024*i} lds")
        a(f"s_add_u32 m0, s35, {sl+0x4000:#x}")
        for i in range(4): a(f"buffer_load_dwordx4 v{BO+i}, s[24:27], s33 offen offset:{1024*i} lds")
        if c < 7:
            a("s_add_u32 s32, s32, 128")
            a("s_add_u32 s33, s33, s34")
    sched = K1SCHED
    for c in sched[0]: issue(c)
    a("v_lshlrev_b32 v4, 7, v7")
    a("v_and_b32 v5, 2, v7")
    a("v_lshl_add_u32 v4, v5, 5, v4")
    a(f"v_add_u32 v{PA}, s35, v4")
    a(f"v_add_u32 v{PA+2}, 0x10000, v{PA}")
    a(f"v_add_u32 v{PA+3}, 0x20000, v{PA}")
    a("v_and_b32 v5, 1, v7")
    a("v_lshlrev_b32 v5, 15, v5")
    a(f"v_or_b32 v{PV}, 0x3f80, v5")
    a("s_lshl_b32 s38, s19, 2")
    a("s_or_b32 s38, s38, s17")
    a("s_lshl_b32 s38, s38, 1")
    a("s_or_b32 s38, s38, s46")
    a("s_lshl_b32 s47, s2, 3")
    a("s_lshl_b32 s48, s16, 1")
    a("s_add_u32 s47, s47, s48")
    a("s_lshl_b32 s48, s47, 10")
    a("v_lshlrev_b32 v1, 4, v0")
    a("v_add_u32 v2, s48, v1")
    srd(a, 28, 14, WS_SIZE)
    issued = len(sched[0]); extra = 0
    for c in range(8):
        a("s_waitcnt vmcnt(%d)" % (8 * (issued - c - 1) + extra))
        if c == 0: stamp(a, 3)
        if c == 7: stamp(a, 4)
        a("s_cmp_lg_u32 s38, 7")
        a(f"s_cbranch_scc1 K1_p{c}")
        sl = (c % R) * 0x8000 + 0x4000
        a(f"ds_write_b16 v{[PA, PA+2, PA+3][sl >> 16]}, v{PV} offset:{sl & 0xffff}")
        a("s_waitcnt lgkmcnt(0)")
        a.label(f"K1_p{c}")
        a("s_barrier")
        if c + 1 < len(sched):
            for n in sched[c + 1]: issue(n); issued += 1
            if issued == 8 and extra == 0:
                a("global_load_dwordx4 v[28:31], v2, s[4:5]")
                a("global_load_dwordx4 v[32:35], v2, s[4:5] offset:1024")
                a("global_load_dwordx4 v[36:39], v1, s[6:7]")
                extra = 3
    a("s_waitcnt vmcnt(0)")
    a("v_mov_b32 v1, 0")
    a("v_mov_b32 v2, 0")
    for i in range(4):
        a(f"v_dot2c_f32_bf16 v1, v{28+i}, v{36+i}")
        a(f"v_dot2c_f32_bf16 v2, v{32+i}, v{36+i}")
    for m in ["row_shr:1 row_mask:0xf bank_mask:0xf bound_ctrl:0", "row_shr:2 row_mask:0xf bank_mask:0xf bound_ctrl:0", "row_shr:4 row_mask:0xf bank_mask:0xf bound_ctrl:0",
              "row_shr:8 row_mask:0xf bank_mask:0xf bound_ctrl:0", "row_bcast:15 row_mask:0xa bank_mask:0xf", "row_bcast:31 row_mask:0xc bank_mask:0xf"]:
        a(f"v_add_f32_dpp v1, v1, v1 {m}")
        a(f"v_add_f32_dpp v2, v2, v2 {m}")
    for v in (1, 2): a(f"v_mul_f32 v{v+3}, {f2u(-math.log2(math.e)):#x}, v{v}")
    for v in (4, 5): a(f"v_exp_f32 v{v}, v{v}")
    for v in (4, 5): a(f"v_add_f32 v{v}, 1.0, v{v}")
    for v in (4, 5): a(f"v_rcp_f32 v{v}, v{v}")
    a("s_lshl_b32 s47, s47, 2")
    a(f"s_add_u32 s47, s47, {GT_OFF:#x}")
    a("v_mov_b32 v3, 0")
    a("s_mov_b32 exec_lo, 0")
    a("s_mov_b32 exec_hi, 0x80000000")
    a("buffer_store_dwordx2 v[4:5], v3, s[28:31], s47 offen")
    stamp_out(a, 0, wave=54)
    a("s_endpgm")
    a.label("K1_compute")
    perm23(a, 9, 7, 4, 5)
    a("s_lshl_b32 s47, s46, 13")
    a("v_lshlrev_b32 v4, 7, v9")
    a("v_add_u32 v4, s47, v4")
    a("v_lshrrev_b32 v5, 1, v9")
    a("v_and_b32 v5, 7, v5")
    a("v_xor_b32 v5, v5, v8")
    for ks in range(4):
        a(f"v_xor_b32 v6, {2*ks}, v5")
        a(f"v_lshl_add_u32 v{AX+ks}, v6, 4, v4")
    a("v_lshrrev_b32 v4, 2, v0")
    a("v_and_b32 v4, 3, v4")
    a("v_lshl_add_u32 v5, v8, 3, v4")
    a("v_lshlrev_b32 v5, 7, v5")
    a("v_lshrrev_b32 v4, 1, v4")
    a("v_xor_b32 v4, s45, v4")
    a("v_lshl_add_u32 v5, v4, 6, v5")
    a("v_and_b32 v4, 16, v0")
    a("v_lshl_add_u32 v5, v4, 1, v5")
    a("v_and_b32 v4, 1, v0")
    a("v_lshl_add_u32 v5, v4, 4, v5")
    a("v_and_b32 v4, 2, v0")
    a("v_lshl_add_u32 v5, v4, 2, v5")
    a(f"v_add_u32 v{AB}, 0x4000, v5")
    for i in range(64): a(f"v_mov_b32 v{ACC+i}, 0")
    a("s_mov_b32 s36, 0")
    C0, N0, NN0 = T, T + 8, T + 16
    a("s_cmp_lg_u32 s17, 3")
    a("s_cbranch_scc1 K1_noT")
    a("v_cvt_f32_u32 v4, v7")
    a(f"v_mul_f32 v4, {f2u(1/32):#x}, v4")
    a("v_lshlrev_b32 v5, 3, v8")
    a("v_cvt_f32_u32 v5, v5")
    a("v_mul_f32 v5, v5, v4")
    a("v_mul_f32 v6, 0x41100000, v4")
    for kk in range(2):
        for u in range(4):
            a(f"v_cos_f32 v{F[0]}, v5")
            a(f"v_sin_f32 v{F[0]+2}, v5")
            a("v_add_f32 v5, v5, v4")
            a(f"v_cos_f32 v{F[0]+1}, v5")
            a(f"v_sin_f32 v{F[0]+3}, v5")
            a(f"v_add_f32 v5, v5, v{6 if u == 3 else 4}")
            a(f"v_cvt_pk_bf16_f32 v{C0+4*kk+u}, v{F[0]}, v{F[0]+1}")
            a(f"v_cvt_pk_bf16_f32 v{NN0+4*kk+u}, v{F[0]+2}, v{F[0]+3}")
            a(f"v_xor_b32 v{N0+4*kk+u}, 0x80008000, v{NN0+4*kk+u}")
    a.label("K1_noT")
    a("s_waitcnt lgkmcnt(0)")
    stamp(a, 2)
    srd(a, 28, 14, WS_SIZE)

    def reads(f, ks):
        r = []
        for b in range(2): r.append(f"ds_read_b128 {vr(f+4*b,4)}, v{AX+ks} offset:{4096*b}")
        for j in range(2):
            for q in range(2): r.append(f"ds_read_b64_tr_b16 {vr(f+8+4*j+2*q,2)}, v{AB} offset:{8192*j+2048*ks+512*q}")
        return [r[0], r[2], r[3], r[1], r[4], r[5]]
    def mf(var, f, b, j):
        X = vr(f + 4 * b, 4); B = vr(f + 8 + 4 * j, 4); D = vr(acc(b, j), 16)
        return f"v_mfma_f32_32x32x16_bf16 {D}, {B}, {X}, {D}" if var == 0 else f"v_mfma_f32_32x32x16_bf16 {D}, {X}, {B}, {D}"
    a("s_barrier")
    stamp(a, 3)
    for r in reads(F[0], 0): a(r)
    a("s_cmp_ge_u32 s17, 2")
    a("s_cbranch_scc1 K1_loop1")
    for var in range(2):
        L = f"K1_loop{var}"
        a.label(L)
        for ks in range(3):
            cur, nxt = F[ks & 1], F[(ks + 1) & 1]
            rd = reads(nxt, ks + 1)
            a("s_waitcnt lgkmcnt(0)")
            a(mf(var, cur, 0, 0))
            for r in rd[:3]: a(r)
            a(mf(var, cur, 1, 0))
            for r in rd[3:]: a(r)
            a(mf(var, cur, 0, 1))
            if ks == 2:
                a("s_add_u32 s36, s36, 1")
                a(f"s_cmp_lg_u32 s36, {R}")
                csel(a, 37, 0x8000, (-(R-1)*0x8000) & 0xffffffff)
                for k2 in range(4): a(f"v_add_u32 v{AX+k2}, s37, v{AX+k2}")
                a(f"v_add_u32 v{AB}, s37, v{AB}")
                a("s_cmp_eq_u32 s36, 8")
            a(mf(var, cur, 1, 1))
        cur, nxt = F[1], F[0]
        a("s_waitcnt lgkmcnt(0)")
        a(f"s_cbranch_scc1 {L}_last")
        a(mf(var, cur, 0, 0))
        a("s_barrier")
        rd = reads(nxt, 0)
        for r in rd[:3]: a(r)
        a(mf(var, cur, 1, 0))
        for r in rd[3:]: a(r)
        a(mf(var, cur, 0, 1))
        a(mf(var, cur, 1, 1))
        a(f"s_branch {L}")
        a.label(f"{L}_last")
        stamp(a, 5)
        for (b, j) in ((0, 0), (1, 0), (0, 1), (1, 1)): a(mf(var, cur, b, j))
        if var == 0:
            a("s_lshl_b32 s47, s46, 11")
            a("s_lshl_b32 s48, s45, 17")
            a("s_add_u32 s47, s47, s48")
            a("v_lshlrev_b32 v4, 5, v9")
            a("v_lshl_add_u32 v4, v8, 4, v4")
            a(f"v_add_u32 v{ST}, s47, v4")
            a("s_lshl_b32 s47, s17, 21")
            a("s_lshl_b32 s48, s19, 19")
            a("s_add_u32 s47, s47, s48")
            a("s_lshl_b32 s48, s18, 12")
            a("s_add_u32 s50, s47, s48")
            a("s_add_u32 s51, s50, 0x10000")
            a("s_add_u32 s52, s50, 0x40000")
            a("s_add_u32 s53, s50, 0x50000")
            n = 0
            for j in range(2):
                for b in range(2):
                    for hh in range(2):
                        d = PK + 4 * (n % 8); n += 1
                        for u in range(4):
                            s = acc(b, j) + 8 * hh + 2 * u
                            a(f"v_cvt_pk_bf16_f32 v{d+u}, v{s}, v{s+1}")
                        a(f"buffer_store_dwordx4 {vr(d,4)}, v{ST}, s[28:31], s{50+2*j+hh} offen offset:{1024*b} {STF}")
            stamp(a, 6); stamp_out(a, 0, wave=54)
            a("s_endpgm")
    a("s_cmp_eq_u32 s17, 3")
    a("s_cbranch_scc1 K1_epiA")
    a("s_lshl_b32 s47, s46, 11")
    a("s_lshl_b32 s48, s45, 17")
    a("s_add_u32 s47, s47, s48")
    a("v_and_b32 v4, 15, v9")
    a("v_lshlrev_b32 v4, 5, v4")
    a("v_lshl_add_u32 v4, v8, 4, v4")
    a("v_lshrrev_b32 v5, 4, v9")
    a("v_lshl_add_u32 v4, v5, 16, v4")
    a(f"v_add_u32 v{ST}, s47, v4")
    a("s_lshl_b32 s48, s19, 19")
    a(f"s_add_u32 s47, s48, {V_OFF:#x}")
    a("s_lshl_b32 s48, s18, 12")
    a("s_add_u32 s50, s47, s48")
    a("s_add_u32 s51, s50, 0x40000")
    n = 0
    for j in range(2):
        for b in range(2):
            for u2 in range(2):
                d = PK + 4 * (n % 8); n += 1
                for u in range(4):
                    s = acc(b, j) + 8 * u2 + 2 * u
                    a(f"v_cvt_pk_bf16_f32 v{d+u}, v{s}, v{s+1}")
                a(f"buffer_store_dwordx4 {vr(d,4)}, v{ST}, s[28:31], s{50+j} offen offset:{512*(2*b+u2)} {STF}")
    stamp(a, 6); stamp_out(a, 0, wave=54)
    a("s_endpgm")
    a.label("K1_epiA")
    a("s_lshl_b32 s47, s19, 10")
    a("s_lshl_b32 s48, s45, 9")
    a("s_add_u32 s47, s47, s48")
    a("s_lshl_b32 s48, s46, 3")
    a(f"s_mov_b32 s49, {4*G_T1:#x}")
    a("v_mul_lo_u32 v4, v8, s49")
    a("v_add_u32 v4, s48, v4")
    a("v_lshl_add_u32 v5, v9, 4, v4")
    a(f"v_add_u32 v{ST}, s47, v5")
    a(f"v_add_u32 v{ST+1}, {256*16}, v4")
    a(f"s_mul_i32 s50, s18, {G_ROW}")
    a(f"s_add_u32 s50, s50, {G_OFF:#x}")
    def pk(b, j): return PK + 16 * b + 8 * j
    def g2(b, j): return AC2 + 32 * b + 16 * j
    def mfT(D, A, B, first): return f"v_mfma_f32_32x32x16_bf16 {vr(D,16)}, {vr(A,4)}, {vr(B,4)}, {'0' if first else vr(D,16)}"
    def cvt(b, j):
        for u in range(8):
            s = acc(b, j) + 2 * u
            a(f"v_cvt_pk_bf16_f32 v{pk(b,j)+u}, v{s}, v{s+1}")
    def gstore(vo, src, dbase):
        a("s_mov_b32 s51, s50")
        for r in range(16):
            d = dbase + 2 * r
            a(f"v_cvt_pk_bf16_f32 v{d}, v{src(0,0)+r}, v{src(1,0)+r}")
            a(f"v_cvt_pk_bf16_f32 v{d+1}, v{src(0,1)+r}, v{src(1,1)+r}")
            a(f"buffer_store_dwordx2 {vr(d,2)}, v{vo}, s[28:31], s51 offen {STF}")
            if r < 15: a(f"s_add_u32 s51, s51, {(G_T1 * 5 if (r & 3) == 3 else G_T1):#x}")
    cvt(0, 0)
    a(mfT(g2(0, 0), C0, pk(0, 0), True)); a(mfT(g2(0, 1), N0, pk(0, 0), True))
    cvt(1, 0)
    a(mfT(g2(0, 0), C0 + 4, pk(0, 0) + 4, False)); a(mfT(g2(0, 1), N0 + 4, pk(0, 0) + 4, False))
    cvt(0, 1)
    a(mfT(g2(1, 0), C0, pk(1, 0), True)); a(mfT(g2(1, 1), N0, pk(1, 0), True))
    cvt(1, 1)
    a(mfT(g2(1, 0), C0 + 4, pk(1, 0) + 4, False)); a(mfT(g2(1, 1), N0 + 4, pk(1, 0) + 4, False))
    a("s_or_b32 s47, s19, s45")
    a("s_cmp_lg_u32 s47, 0")
    a("s_cbranch_scc1 K1_epiA2")
    for kk in range(2):
        for b in range(2):
            a(mfT(acc(b, 0), C0 + 4 * kk, pk(b, 1) + 4 * kk, kk == 0)); a(mfT(acc(b, 1), N0 + 4 * kk, pk(b, 1) + 4 * kk, kk == 0))
    a("s_mov_b32 exec_lo, 1")
    a("s_mov_b32 exec_hi, 1")
    for b in range(2):
        for u in range(8): a(f"v_mov_b32 v{pk(b,1)+u}, 0")
    a("s_mov_b64 exec, -1")
    a.label("K1_epiA2")
    for kk in range(2):
        for b in range(2):
            a(mfT(g2(b, 0), NN0 + 4 * kk, pk(b, 1) + 4 * kk, False))
            a(mfT(g2(b, 1), C0 + 4 * kk, pk(b, 1) + 4 * kk, False))
    a("s_cbranch_scc1 K1_epiA3")
    a("s_mov_b32 exec_lo, 1")
    a("s_mov_b32 exec_hi, 1")
    gstore(ST + 1, acc, PK)
    a("s_mov_b64 exec, -1")
    a.label("K1_epiA3")
    gstore(ST, g2, F[0])
    stamp(a, 6); stamp_out(a, 0, wave=54)
    a.label("K1_done")
    a("s_endpgm")
    return a.lines, 248, 64

def gen_k2():
    a = Asm()
    KF = 8
    VF = 44
    QF = 116
    SD = 120
    SB = [136, 152, 168]
    Z = 184
    PM = 200
    P = [208, 216]
    O = 224
    GX = 240
    M = 248
    NINF = 249
    a("s_cmp_ge_u32 s2, 256")
    a("s_cbranch_scc1 K2_done")
    stamp(a, 0, True); stamp(a, 1)
    a("s_load_dwordx2 s[14:15], s[0:1], 88")
    a("v_lshrrev_b32 v1, 6, v0")
    a("v_and_b32 v0, 63, v0")
    a("v_readfirstlane_b32 s16, v1")
    if K1MAP == 0:
        a("s_and_b32 s17, s2, 7")
        a("s_lshl_b32 s17, s17, 2")
        a("s_bfe_u32 s18, s2, 0x20003")
        a("s_or_b32 s17, s17, s18")
        a("s_lshr_b32 s19, s2, 5")
    else:
        a("s_bfe_u32 s17, s2, 0x20001")
        a("s_lshl_b32 s17, s17, 3")
        a("s_bfe_u32 s18, s2, 0x30003")
        a("s_or_b32 s17, s17, s18")
        a("s_and_b32 s19, s2, 1")
        a("s_lshl_b32 s19, s19, 2")
        a("s_lshr_b32 s18, s2, 6")
        a("s_or_b32 s19, s19, s18")
    a("s_lshl_b32 s18, s19, 3")
    a("s_add_u32 s18, s18, s16")
    a("v_and_b32 v2, 31, v0")
    a("v_lshrrev_b32 v3, 5, v0")
    perm23(a, 4, 2, 5, 6)
    a("v_lshlrev_b32 v5, 4, v3")
    a("v_lshl_add_u32 v6, v2, 5, v5")
    a("v_lshl_add_u32 v7, v4, 5, v5")
    a("v_and_b32 v5, 15, v4")
    a("v_lshlrev_b32 v5, 5, v5")
    a("v_and_b32 v1, 16, v0")
    a("v_add_u32 v5, v5, v1")
    a("v_lshl_add_u32 v5, v3, 9, v5")
    a("s_lshl_b32 s20, s17, 16")
    a("s_lshl_b32 s21, s18, 10")
    a("s_add_u32 s21, s20, s21")
    a("s_lshl_b32 s22, s19, 13")
    a("s_add_u32 s22, s22, s20")
    a("s_lshl_b32 s23, s16, 11")
    a("s_add_u32 s22, s22, s23")
    a(f"s_add_u32 s24, s22, {V_OFF - 8192:#x}")
    a(f"s_add_u32 s22, s22, {K_OFF - 8192:#x}")
    a("s_mov_b32 m0, s23")
    a("s_waitcnt lgkmcnt(0)")
    stamp(a, 2)
    srd(a, 28, 14, WS_SIZE)
    a(f"buffer_load_dwordx4 v7, s[28:31], s22 offen lds")
    a(f"buffer_load_dwordx4 v7, s[28:31], s22 offen offset:1024 lds")
    a(f"buffer_load_dwordx4 {vr(QF,4)}, v6, s[28:31], s21 offen")
    a("s_add_u32 m0, s23, 0x4000")
    a(f"buffer_load_dwordx4 v5, s[28:31], s24 offen lds")
    a(f"buffer_load_dwordx4 v5, s[28:31], s24 offen offset:1024 lds")
    a("s_lshl_b32 s23, s16, 10")
    a("v_lshl_add_u32 v6, v0, 4, s23")
    a("v_and_b32 v7, 15, v0")
    a("v_lshl_add_u32 v7, v3, 4, v7")
    a("v_lshl_add_u32 v7, v7, 4, s23")
    a("s_mov_b32 s33, 0x3f803f80")
    for i in range(72): a(f"v_mov_b32 v{VF+i}, s33")
    a("v_lshlrev_b32 v5, 3, v3")
    a("v_sub_u32 v5, v2, v5")
    MK = 40
    for r in range(16):
        a(f"v_cmp_le_i32 {sr(MK+2*r,2)}, {16*(r>>3)+(r&7)}, v5")
    a("v_mov_b32 v1, 0xffff")
    a(f"v_mov_b32 v{M}, 0xffff0000")
    for u in range(8):
        a(f"v_cndmask_b32 v{PM+u}, 0, v1, {sr(MK+4*u,2)}")
        a(f"v_cndmask_b32 v{P[0]}, 0, v{M}, {sr(MK+4*u+2,2)}")
        a(f"v_or_b32 v{PM+u}, v{PM+u}, v{P[0]}")
    for i in range(16): a(f"v_mov_b32 v{Z+i}, 0")
    a(f"v_mov_b32 v{NINF}, 0xff800000")
    a(f"s_mov_b32 s34, {f2u(0.25*math.log2(math.e)):#x}")
    stamp(a, 3)
    a("s_waitcnt vmcnt(2)")
    stamp(a, 4)
    if STAMP: a("s_waitcnt lgkmcnt(0)")
    a("s_barrier")
    for j in range(9): a(f"ds_read_b128 {vr(KF+4*j,4)}, v6 offset:{(8-j)*1024}")
    for i in range(4):
        a(f"v_lshlrev_b32 v{GX}, 16, v{QF+i}")
        a(f"v_and_b32 v{GX+1}, 0xffff0000, v{QF+i}")
        a(f"v_mul_f32 v{GX}, s34, v{GX}")
        a(f"v_mul_f32 v{GX+1}, s34, v{GX+1}")
        a(f"v_cvt_pk_bf16_f32 v{QF+i}, v{GX}, v{GX+1}")
    def smf(D, j, C): return f"v_mfma_f32_32x32x16_bf16 {vr(D,16)}, {vr(KF+4*j,4)}, {vr(QF,4)}, {C}"
    def zswitch(j, tag):
        a(f"s_cmp_lg_u32 s18, {j-1}")
        a(f"s_cbranch_scc1 K2_z{tag}{j}")
        a("s_nop 6")
        for i in range(16): a(f"v_mov_b32 v{Z+i}, v{NINF}")
        a("s_nop 1")
        a.label(f"K2_z{tag}{j}")
    def maxtile(S, first):
        if first:
            a(f"v_max3_f32 v{M}, v{S}, v{S+1}, v{S+2}")
            rest = list(range(3, 16))
        else: rest = list(range(16))
        while len(rest) >= 2:
            a(f"v_max3_f32 v{M}, v{M}, v{S+rest[0]}, v{S+rest[1]}"); rest = rest[2:]
        if rest: a(f"v_max_f32 v{M}, v{M}, v{S+rest[0]}")
    a("s_waitcnt lgkmcnt(8)")
    a(smf(SD, 0, "0"))
    order = [1, 2, 3, 4, 5, 6, 7, 0, 8]
    for j in range(1, 9):
        a(f"s_waitcnt lgkmcnt({8-j})")
        zswitch(j, "a")
        a(smf(SB[j % 3], j, vr(Z, 16)))
        if j >= 3: maxtile(SB[(j - 2) % 3], j == 3)
    a("s_waitcnt vmcnt(0)")
    a("s_barrier")
    a("s_mov_b32 exec_lo, 0xffff")
    a("s_mov_b32 exec_hi, 0xffff")
    for j in order[:7]:
        for u in range(2):
            a(f"ds_read_b128 {vr(VF+8*j+4*u,4)}, v7 offset:{0x4000+(8-j)*1024+512*u}")
    a("s_mov_b64 exec, -1")
    maxtile(SB[7 % 3], False)
    So = SB[8 % 3]
    for r in range(16): a(f"v_cndmask_b32 v{SD+r}, v{So+r}, v{SD+r}, {sr(MK+2*r,2)}")
    maxtile(SD, False)
    a(f"v_mov_b32 v1, v{M}")
    a(f"v_permlane32_swap_b32 v1, v{M}")
    a(f"v_max_f32 v{M}, v1, v{M}")
    for i in range(16): a(f"v_sub_f32 v{Z+i}, 0, v{M}")
    def pv(j, Pb, u, first=False):
        return f"v_mfma_f32_32x32x16_bf16 {vr(O,16)}, {vr(VF+8*j+4*u,4)}, {vr(Pb+4*u,4)}, {'0' if first else vr(O,16)}"
    zswitch(1, "b")
    a(smf(SB[1], 1, vr(Z, 16)))
    zswitch(2, "b")
    a(smf(SB[2], 2, vr(Z, 16)))
    a("s_waitcnt lgkmcnt(0)")
    stamp(a, 6)
    a("s_mov_b32 exec_lo, 0xffff")
    a("s_mov_b32 exec_hi, 0xffff")
    for j in order[7:]:
        for u in range(2):
            a(f"ds_read_b128 {vr(VF+8*j+4*u,4)}, v7 offset:{0x4000+(8-j)*1024+512*u}")
    a("s_mov_b64 exec, -1")
    for r in range(16): a(f"v_sub_f32 v{SD+r}, v{SD+r}, v{M}")
    for n, j in enumerate(range(1, 8)):
        S = SB[j % 3]; Pb = P[n & 1]
        for r in range(8): a(f"v_exp_f32 v{S+r}, v{S+r}")
        if n > 0:
            a(pv(j - 1, P[(n - 1) & 1], 1))
        for u in range(4): a(f"v_cvt_pk_bf16_f32 v{Pb+u}, v{S+2*u}, v{S+2*u+1}")
        for r in range(8, 16): a(f"v_exp_f32 v{S+r}, v{S+r}")
        a(pv(j, Pb, 0, n == 0))
        for u in range(4, 8): a(f"v_cvt_pk_bf16_f32 v{Pb+u}, v{S+2*u}, v{S+2*u+1}")
        if j + 2 <= 7:
            zswitch(j + 2, "b")
            a(smf(SB[(j + 2) % 3], j + 2, vr(Z, 16)))
    for r in range(8): a(f"v_exp_f32 v{SD+r}, v{SD+r}")
    a(pv(7, P[0], 1))
    for r in range(8, 16): a(f"v_exp_f32 v{SD+r}, v{SD+r}")
    Pd, Po = P[1], SB[0]
    for u in range(8): a(f"v_cvt_pk_bf16_f32 v{Po+u}, v{SD+2*u}, v{SD+2*u+1}")
    for u in range(8): a(f"v_and_b32 v{Pd+u}, v{Po+u}, v{PM+u}")
    a("s_waitcnt lgkmcnt(0)")
    a(pv(0, Pd, 0))
    for u in range(8): a(f"v_xor_b32 v{Po+u}, v{Po+u}, v{Pd+u}")
    a(pv(0, Pd, 1))
    a(pv(8, Po, 0))
    a(pv(8, Po, 1))
    a("v_lshlrev_b32 v5, 4, v3")
    a("v_lshl_add_u32 v5, v2, 10, v5")
    a("s_lshl_b32 s20, s18, 15")
    a("s_lshl_b32 s21, s17, 5")
    a("s_add_u32 s20, s20, s21")
    a(f"s_add_u32 s20, s20, {O_OFF:#x}")
    a(f"v_rcp_f32 v1, v{O+8}")
    for i in range(8): a(f"v_mul_f32 v{O+i}, v{O+i}, v1")
    for u in range(4): a(f"v_cvt_pk_bf16_f32 v{P[0]+u}, v{O+2*u}, v{O+2*u+1}")
    a(f"buffer_store_dwordx4 {vr(P[0],4)}, v5, s[28:31], s20 offen {STF}")
    stamp(a, 7); stamp_out(a, 1)
    a.label("K2_done")
    a("s_endpgm")
    return a.lines, 256, 80

def gen_k3():
    a = Asm()
    WF = 48
    Y, B = 112, 128
    GT = 12
    OO, WO = 8, 10
    AO, AW, AG = 160, 164, 165
    FB = [16, 24, 32, 40]
    GF = 80
    a("s_cmp_ge_u32 s2, 256")
    a("s_cbranch_scc1 K3_done")
    stamp(a, 0, True); stamp(a, 1)
    a("s_load_dwordx2 s[8:9], s[0:1], 56")
    a("s_load_dwordx2 s[10:11], s[0:1], 72")
    a("s_load_dwordx2 s[14:15], s[0:1], 88")
    a("v_lshrrev_b32 v1, 6, v0")
    a("v_and_b32 v0, 63, v0")
    a("v_readfirstlane_b32 s40, v1")
    a("s_and_b32 s17, s2, 7")
    a("s_lshl_b32 s17, s17, 1")
    a("s_bfe_u32 s18, s2, 0x10003")
    a("s_or_b32 s17, s17, s18")
    a("s_sub_u32 s18, 32, s17")
    a("s_cmp_eq_u32 s17, 0")
    a("s_cselect_b32 s18, 16, s18")
    a("s_bitcmp1_b32 s2, 4")
    a("s_cselect_b32 s17, s18, s17")
    a("s_lshr_b32 s18, s2, 5")
    a("s_and_b32 s16, s40, 3")
    a("s_and_b32 s19, s16, 1")
    a("s_lshr_b32 s20, s16, 1")
    a("v_and_b32 v2, 31, v0")
    a("v_lshrrev_b32 v3, 5, v0")
    a("s_lshl_b32 s22, s18, 6")
    a("s_lshl_b32 s23, s19, 5")
    a("s_add_u32 s22, s22, s23")
    a("s_cmp_lt_u32 s40, 4")
    a("s_cbranch_scc1 K3_compute")
    a("v_and_b32 v6, 4, v2")
    a("v_lshlrev_b32 v6, 2, v6")
    a("v_lshrrev_b32 v7, 3, v2")
    a("v_lshl_add_u32 v6, v7, 2, v6")
    a("v_and_b32 v7, 3, v2")
    a("v_add_u32 v6, v6, v7")
    a("v_add_u32 v6, s22, v6")
    a("v_sub_u32 v7, 0x200, v6")
    a("s_sub_u32 s23, 32, s17")
    a("s_and_b32 s23, s23, 31")
    a("s_cmp_ge_u32 s18, 4")
    a("s_cselect_b64 vcc, -1, 0")
    a("s_cselect_b32 s23, s23, s17")
    a("v_cndmask_b32 v6, v6, v7, vcc")
    a(f"v_mul_u32_u24 v7, {8*264}, v3")
    a("v_add_lshl_u32 v6, v6, v7, 4")
    a(f"s_mul_i32 s23, s23, {G_T1}")
    a(f"s_mul_i32 s24, s20, {4*G_ROW}")
    a("s_add_u32 s23, s23, s24")
    a(f"s_add_u32 s23, s23, {G_OFF:#x}")
    a("v_lshrrev_b32 v14, 3, v0")
    a("v_and_b32 v15, 7, v0")
    a("v_lshrrev_b32 v1, 1, v14")
    a("v_and_b32 v7, 1, v1")
    a("v_lshlrev_b32 v7, 2, v7")
    a("v_xor_b32 v7, v15, v7")
    a("v_lshlrev_b32 v7, 4, v7")
    a("v_lshl_add_u32 v7, v14, 10, v7")
    a("s_lshl_b32 s25, s16, 14")
    a("s_lshl_b32 s26, s18, 7")
    a("s_add_u32 s25, s25, s26")
    a(f"v_add_u32 v{WO}, s25, v7")
    a(f"v_add_u32 v{WO+1}, {7*1024}, v{WO}")
    a("v_xor_b32 v7, v15, v1")
    a("v_lshlrev_b32 v1, 15, v14")
    a("s_lshl_b32 s25, s16, 19")
    a("s_lshl_b32 s26, s17, 10")
    a("s_add_u32 s25, s25, s26")
    a(f"s_add_u32 s25, s25, {O_OFF - 2048:#x}")
    a("v_add_u32 v1, s25, v1")
    a(f"v_lshl_add_u32 v{OO}, v7, 4, v1")
    a("v_xor_b32 v7, 4, v7")
    a(f"v_lshl_add_u32 v{OO+1}, v7, 4, v1")
    a(f"v_add_u32 v{OO+1}, {8*32*1024 - 1024:#x}, v{OO+1}")
    a("s_lshl_b32 s24, s19, 13")
    a("s_lshl_b32 s25, s20, 12")
    a("s_add_u32 s24, s24, s25")
    a("s_add_u32 s24, s24, 0x20000")
    a("s_lshl_b32 s25, s16, 12")
    a("s_mov_b32 s26, 0")
    a("s_mov_b32 s27, 0")
    a("s_waitcnt lgkmcnt(0)")
    stamp(a, 2)
    srd(a, 28, 14, WS_SIZE)
    srd(a, 32, 8, 512 * 1024)
    def chunk(c):
        a("s_mov_b32 m0, s25")
        a("s_add_u32 s25, s25, 0x4000")
        a(f"buffer_load_dwordx4 v{WO}, s[32:35], s27 offen lds")
        a(f"buffer_load_dwordx4 v{WO+1}, s[32:35], s27 offen offset:1024 lds")
        a(f"buffer_load_dwordx4 v{OO}, s[28:31], s26 offen offset:2048 lds")
        a(f"buffer_load_dwordx4 v{OO+1}, s[28:31], s26 offen offset:3072 lds")
        a("s_add_u32 s26, s26, 128")
        a("s_add_u32 s27, s27, 0x10000")
    def gload():
        a("s_mov_b32 m0, s24")
        for i in range(4):
            a(f"buffer_load_dwordx4 v6, s[28:31], s23 offen offset:{1024*i} lds")
            if i < 3: a(f"s_add_u32 s23, s23, {G_ROW - 1024}")
    items = K3ORDER
    groups = K3GROUPS
    ahead = K3AHEAD
    pos = 0
    def issue_item(it):
        if it == 'G': gload()
        else: chunk(it)
    nxt = 0
    while nxt < min(ahead, len(items)): issue_item(items[nxt]); nxt += 1
    done = 0
    for gi, gsz in enumerate(groups):
        done += gsz
        while nxt < done: issue_item(items[nxt]); nxt += 1
        a("s_waitcnt vmcnt(%d)" % (4 * (nxt - done)))
        if gi == 0: stamp(a, 3)
        if gi == len(groups) - 1: stamp(a, 4)
        a("s_barrier")
        for _ in range(gsz):
            if nxt < len(items): issue_item(items[nxt]); nxt += 1
    stamp_out(a, 2, wave=40)
    a("s_endpgm")
    a.label("K3_compute")
    a("s_lshl_b32 s21, s20, 10")
    a("s_add_u32 s21, s21, s17")
    a("v_lshl_add_u32 v4, v2, 5, s21")
    a("v_lshlrev_b32 v13, 2, v4")
    a("v_lshrrev_b32 v1, 4, v2")
    a("v_lshlrev_b32 v1, 12, v1")
    a("v_and_b32 v7, 15, v2")
    a("v_lshl_add_u32 v1, v7, 7, v1")
    a("s_lshl_b32 s25, s20, 13")
    a("s_add_u32 s25, s25, 2048")
    a("v_add_u32 v1, s25, v1")
    a("v_lshrrev_b32 v7, 1, v7")
    a("v_xor_b32 v7, v7, v3")
    for ks in range(4):
        a(f"v_xor_b32 v14, {2*ks}, v7")
        a(f"v_lshl_add_u32 v{AO+ks}, v14, 4, v1")
    a("v_lshrrev_b32 v1, 2, v0")
    a("v_and_b32 v1, 3, v1")
    a("v_lshl_add_u32 v7, v3, 3, v1")
    a("v_lshlrev_b32 v7, 7, v7")
    a("v_lshrrev_b32 v1, 1, v1")
    a("v_xor_b32 v1, s19, v1")
    a("v_lshl_add_u32 v7, v1, 6, v7")
    a("v_and_b32 v1, 1, v0")
    a("v_lshl_add_u32 v7, v1, 5, v7")
    a("v_and_b32 v1, 16, v0")
    a("v_add_u32 v7, v1, v7")
    a("v_and_b32 v1, 2, v0")
    a(f"v_lshl_add_u32 v{AW}, v1, 2, v7")
    a("s_lshl_b32 s24, s19, 13")
    a("s_add_u32 s24, s24, 0x20000")
    a(f"v_lshl_add_u32 v{AG}, v0, 4, s24")
    a("s_waitcnt lgkmcnt(0)")
    stamp(a, 2)
    srd(a, 28, 14, WS_SIZE)
    srd(a, 36, 10, 2 * MB)
    a(f"s_mov_b32 s25, {GT_OFF:#x}")
    a(f"buffer_load_dword v{GT}, v13, s[28:31], s25 offen")
    a("v_cvt_f32_u32 v5, v4")
    a("s_cmp_ge_u32 s18, 4")
    csel(a, 26, f2u(-1/2048), f2u(1/2048))
    a("v_mul_f32 v5, s26, v5")
    a("v_lshlrev_b32 v6, 5, v3")
    a("v_cvt_f32_u32 v6, v6")
    a("v_mul_f32 v6, v6, v5")
    a("v_fract_f32 v6, v6")
    for kk in range(8):
        for pr in range(2):
            a(f"v_cos_f32 v16, v6")
            a(f"v_sin_f32 v18, v6")
            a("v_add_f32 v6, v6, v5")
            a(f"v_cos_f32 v17, v6")
            a(f"v_sin_f32 v19, v6")
            a("v_add_f32 v6, v6, v5")
            a(f"v_cvt_pk_bf16_f32 v{WF+4*kk+2*pr}, v16, v17")
            a(f"v_cvt_pk_bf16_f32 v{WF+4*kk+2*pr+1}, v18, v19")
    a("v_lshlrev_b32 v4, 10, v4")
    a("v_lshl_add_u32 v4, v3, 5, v4")
    a("s_lshl_b32 s22, s22, 1")
    for ks in range(4): a(f"v_add_u32 v{AO+8+ks}, 0x10000, v{AO+ks}")
    a(f"v_add_u32 v{AO+12}, 0x10000, v{AW}")
    stamp(a, 3)
    if STAMP: a("s_waitcnt lgkmcnt(0)")
    def steps_of(it):
        if it == 'G': return [('G', kk) for kk in range(8)]
        return [(it, ks) for ks in range(4)]
    def rd(step, f):
        it, k = step
        if it == 'G': return [f"ds_read_b128 {vr(f,4)}, v{AG} offset:{1024*k}"]
        hi = it >= 4
        o = (it & 3) * 0x4000
        aw = AO + 12 if hi else AW
        ao = AO + 8 + k if hi else AO + k
        return [f"ds_read_b64_tr_b16 {vr(f,2)}, v{aw} offset:{o + 4096*k}",
                f"ds_read_b64_tr_b16 {vr(f+2,2)}, v{aw} offset:{o + 4096*k + 512}",
                f"ds_read_b128 {vr(f+4,4)}, v{ao} offset:{o}"]
    firstB = True; firstY = True
    p = 0; bufno = 0
    for gi, gsz in enumerate(groups):
        st = []
        for it in items[p:p + gsz]: st += steps_of(it)
        p += gsz
        a("s_barrier")
        if gi == 0: stamp(a, 4)
        if gi == len(groups) - 1:
            stamp(a, 5)
        if STAMP and (gi == 0 or gi == len(groups) - 1): a("s_waitcnt lgkmcnt(0)")
        D = 3
        pend = []
        for n in range(min(D, len(st))):
            f = FB[bufno % 4]; bufno += 1
            r = rd(st[n], f)
            for x in r: a(x)
            pend.append((st[n], f, len(r)))
        for n in range(len(st)):
            if n + D < len(st):
                f = FB[bufno % 4]; bufno += 1
                r = rd(st[n + D], f)
                for x in r: a(x)
                pend.append((st[n + D], f, len(r)))
            step, f, _ = pend.pop(0)
            a("s_waitcnt lgkmcnt(%d)" % sum(x[2] for x in pend))
            if step[0] == 'G':
                a(f"v_mfma_f32_32x32x16_bf16 {vr(Y,16)}, {vr(f,4)}, {vr(WF+4*step[1],4)}, {'0' if firstY else vr(Y,16)}"); firstY = False
            else:
                a(f"v_mfma_f32_32x32x16_bf16 {vr(B,16)}, {vr(f,4)}, {vr(f+4,4)}, {'0' if firstB else vr(B,16)}"); firstB = False
    stamp(a, 6)
    a("s_waitcnt vmcnt(0)")
    for i in range(16): a(f"v_sub_f32 v{Y+i}, v{Y+i}, v{B+i}")
    for i in range(16): a(f"v_fma_f32 v{Y+i}, v{GT}, v{Y+i}, v{B+i}")
    for u in range(8): a(f"v_cvt_pk_bf16_f32 v{WF+u}, v{Y+2*u}, v{Y+2*u+1}")
    a(f"buffer_store_dwordx4 {vr(WF,4)}, v4, s[36:39], s22 offen {OUTF}")
    a(f"buffer_store_dwordx4 {vr(WF+4,4)}, v4, s[36:39], s22 offen offset:16 {OUTF}")
    stamp(a, 7); stamp_out(a, 2, wave=40)
    a.label("K3_done")
    a("s_endpgm")
    return a.lines, 176, 48

K1SCHED = [[0, 1, 2], [3, 4], [5], [6], [7]]
K3ORDER = [0, 1, 'G', 2, 3, 4, 5, 6, 7]
K3GROUPS = [2, 2, 2, 2, 1]
K3AHEAD = 5
STF = ""
OUTF = ""

def build(path):
    ks = [("fnet_k1_kernel", gen_k1, 512, 163840), ("fnet_k2_kernel", gen_k2, 512, 32768), ("fnet_k3_kernel", gen_k3, 512, 147456)]
    head = open(f"cdna_kernels/{NAME}.s.ref").read().split("; Override launch")[0]
    out = head
    for n, _, thr, lds in ks: out += f"; @launch kernel={n} grid=(256,1,1) block=({thr},1,1) lds={lds}\n"
    out += '.amdgcn_target "amdgcn-amd-amdhsa--gfx950"\n'
    kds = []
    for n, g, _, _ in ks:
        lines, v, s = g()
        print("kernel", n)
        lines = fix_hazards(lines)
        code, kd = kernel_text(n, lines, v, 102 if STAMP else s)
        out += code; kds.append(kd)
    out += '.section .rodata,"a"\n' + "".join(kds)
    open(path, "w").write(out)

if __name__ == "__main__":
    for x in list(sys.argv):
        if x.startswith("-D"):
            exec(x[2:], globals()); sys.argv.remove(x)
    if "--dbg" in sys.argv: DBGSTAMP = 37; sys.argv.remove("--dbg")
    if "--stamp" in sys.argv: STAMP = True; sys.argv.remove("--stamp")
    build(sys.argv[1] if len(sys.argv) > 1 else f"cdna_kernels/{NAME}.s")
```

```python
import sys, math, struct
sys.path.insert(0, "work")
from asmlib import *

MB = 1 << 20
Q_OFF, K_OFF, V_OFF, H_OFF, O_OFF, GT_OFF, FL_OFF = 0, 2 * MB, 4 * MB, 6 * MB, 8 * MB, 10 * MB, 10 * MB + 262144
WS_SIZE = 11 * MB
NAME = "gated_mix__spectral_fnet__sliding_block__prompt"
def f2u(f): return struct.unpack("<I", struct.pack("<f", f))[0]

FUSED = 1
STAMP = False
R = 4
K1SCHED = [[0, 1], [2], [3], [4], [5], [6], [7]]
K1ROT = (2, 3)
K1NT = (0, 1)
STF = "sc1"
LDF = "sc1"
OUTF = ""
P3G = [8, 8, 8, 8]
SPIN_MAX = 1 << 16
POLLSLEEP = 0
GATE_AT = 3
MAP = 0
LOCALFLAG = 0
POLL1F = 'sc1'
VLATE = 1
TBL_AT = 4
FORCE_GLOBAL = 0
MODE_L = 0x27ff0

ST_OFF = 16 * MB
SB0 = 72
def stamp(a, i, real=False):
    if STAMP: a(f"{'s_memrealtime' if real else 's_memtime'} {sr(SB0+2*i,2)}")
def stamp_out(a, kidx):
    if not STAMP: return
    a("s_waitcnt vmcnt(0) lgkmcnt(0)")
    stamp(a, 13); stamp(a, 14, True)
    a("s_waitcnt lgkmcnt(0)")
    a("s_mov_b64 exec, -1")
    for i in range(15): a(f"v_writelane_b32 v1, s{SB0+2*i}, {i}")
    a("v_mbcnt_lo_u32_b32 v2, -1, 0")
    a("v_lshlrev_b32 v2, 2, v2")
    a("s_lshl_b32 s70, s2, 9")
    a("s_lshl_b32 s71, s54, 6")
    a("s_add_u32 s70, s70, s71")
    a(f"s_add_u32 s70, s70, {ST_OFF + kidx * MB:#x}")
    a("v_add_u32 v2, s70, v2")
    a("s_mov_b64 exec, 0xffff")
    a("global_store_dword v2, v1, s[14:15]")

def srd(a, d, base, size):
    a(f"s_mov_b32 s{d}, s{base}")
    a(f"s_mov_b32 s{d+1}, s{base+1}")
    a(f"s_mov_b32 s{d+2}, {size:#x}")
    a(f"s_mov_b32 s{d+3}, 0x20000")
def csel(a, d, x, y):
    a(f"s_mov_b32 s{d}, {y:#x}")
    a(f"s_cselect_b32 s{d}, {x:#x}, s{d}")
def perm23(a, dst, src, t1, t2):
    a(f"v_and_b32 v{t1}, 0x13, v{src}")
    a(f"v_and_b32 v{t2}, 4, v{src}")
    a(f"v_lshl_or_b32 v{t1}, v{t2}, 1, v{t1}")
    a(f"v_and_b32 v{t2}, 8, v{src}")
    a(f"v_lshrrev_b32 v{t2}, 1, v{t2}")
    a(f"v_or_b32 v{dst}, v{t1}, v{t2}")
def mfma(D, A, B, C=None):
    return f"v_mfma_f32_32x32x16_bf16 {vr(D,16)}, {vr(A,4)}, {vr(B,4)}, {vr(D,16) if C is None else C}"

def prologue(a, done, which):
    a("s_cmp_ge_u32 s2, 256")
    a(f"s_cbranch_scc1 {done}")
    stamp(a, 0, True); stamp(a, 1)
    if 1 in which:
        a("s_load_dwordx2 s[4:5], s[0:1], 0")
        a("s_load_dwordx4 s[8:11], s[0:1], 24")
        a("s_load_dwordx2 s[12:13], s[0:1], 48")
        a("s_load_dwordx2 s[6:7], s[0:1], 64")
    a("s_load_dwordx2 s[14:15], s[0:1], 88")
    if 2 in which or 3 in which: a("s_load_dwordx2 s[58:59], s[0:1], 56")
    if 3 in which: a("s_load_dwordx4 s[60:63], s[0:1], 72")
    a("v_lshrrev_b32 v1, 6, v0")
    a("v_and_b32 v0, 63, v0")
    a("v_readfirstlane_b32 s54, v1")

_uid = [0]
def uid(p):
    _uid[0] += 1; return f"{p}{_uid[0]}"

def sync_flag(a, which):
    L = uid("Lflag")
    a("s_cmp_lg_u32 s54, 4")
    a(f"s_cbranch_scc1 {L}")
    a("v_mov_b32 v1, 1")
    a("s_lshl_b32 s47, s2, 8")
    a(f"s_add_u32 s47, s47, {FL_OFF + 128 * which:#x}")
    a("v_mov_b32 v2, 0")
    a("s_mov_b64 exec, 1")
    a("buffer_store_dword v1, v2, s[28:31], s47 offen sc1")
    a("s_mov_b64 exec, -1")
    a.label(L)

def poll(a, vaddr, vdata, soff, first_loaded=False, fl="sc1"):
    L = uid("Lpoll")
    a("s_mov_b32 s48, 0")
    if first_loaded: a(f"s_branch {L}c")
    a.label(L)
    a(f"buffer_load_dword v{vdata}, v{vaddr}, s[28:31], s{soff} offen {fl}")
    a("s_waitcnt vmcnt(0)")
    a.label(L + "c")
    a(f"v_cmp_eq_u32 vcc, 0, v{vdata}")
    a("s_add_u32 s48, s48, 1")
    a(f"s_cmp_ge_u32 s48, {SPIN_MAX}")
    a(f"s_cbranch_scc1 {L}x")
    a("s_and_b64 exec, exec, vcc")
    a(f"s_cbranch_scc1 {L}")
    a.label(L + "x")
    a("s_mov_b64 exec, -1")

def sync_wait2(a):
    a("v_lshlrev_b32 v2, 8, v0")
    a("s_lshl_b32 s47, s54, 14")
    a(f"s_add_u32 s47, s47, {FL_OFF + 128 - 4 * 16384:#x}")
    poll(a, 2, 4, 47)

def phase1(a, fin):
    XO, BO, AX, AB, PV, ST = 10, 14, 18, 22, 24, 25
    F = [28, 48]
    ACC = 68
    T = 132
    PK = 140
    AC2 = 172
    if MAP == 1:
        a("s_lshr_b32 s17, s2, 6")
        a("s_and_b32 s40, s2, 1")
        a("s_bfe_u32 s39, s2, 0x30003")
        a("s_bfe_u32 s41, s2, 0x20001")
        a("s_lshl_b32 s18, s40, 3")
        a("s_or_b32 s18, s18, s39")
        a("s_lshl_b32 s42, s41, 2")
        a("s_and_b32 s43, s39, 3")
        a("s_or_b32 s42, s42, s43")
        a("s_lshl_b32 s44, s40, 1")
        a("s_lshr_b32 s47, s39, 2")
        a("s_or_b32 s44, s44, s47")
        a(f"s_mul_i32 s32, s41, {K1ROT[0]}")
        a(f"s_mul_i32 s33, s17, {K1ROT[1]}")
        a("s_add_u32 s32, s32, s33")
        a("s_add_u32 s32, s32, s39")
        a("s_lshl_b32 s43, s43, 1")
        a("s_lshl_b32 s47, s47, 2")
        a("s_add_u32 s43, s43, s47")
        a("s_add_u32 s43, s43, s41")
        a("s_lshl_b32 s49, s18, 4")
        a("s_lshl_b32 s47, s17, 2")
        a("s_add_u32 s49, s49, s47")
        a("s_add_u32 s49, s49, s41")
        a("s_cmp_eq_u32 s17, 3")
        a("s_cselect_b32 s18, s42, s18")
        a("s_cselect_b32 s19, s44, s41")
        a("s_cselect_b32 s32, s43, s32")
        a("s_and_b32 s32, s32, 7")
    else:
        a("s_bfe_u32 s17, s2, 0x20001")
        a("s_and_b32 s18, s2, 1")
        a("s_lshl_b32 s18, s18, 3")
        a("s_bfe_u32 s39, s2, 0x30003")
        a("s_or_b32 s18, s18, s39")
        a("s_lshr_b32 s19, s2, 6")
        a("s_lshl_b32 s47, s17, 2")
        a("s_add_u32 s47, s47, s19")
        a("s_add_u32 s32, s47, s18")
        a("s_and_b32 s32, s32, 7")
        a("s_lshl_b32 s49, s18, 4")
        a("s_add_u32 s49, s49, s47")
    a("s_and_b32 s16, s54, 3")
    a("s_and_b32 s45, s16, 1")
    a("s_lshr_b32 s46, s16, 1")
    a("s_cmp_lt_u32 s54, 4")
    a("s_cbranch_scc1 P1_compute")
    a("s_lshl_b32 s40, s18, 7")
    a("s_lshl_b32 s41, s16, 5")
    a("s_add_u32 s40, s40, s41")
    a("s_lshl_b32 s41, s18, 2")
    a("s_add_u32 s41, s41, s16")
    a("s_cmp_eq_u32 s17, 3")
    a("s_cselect_b32 s40, s41, s40")
    a("s_cselect_b32 s41, 16, 10")
    csel(a, 42, 0x7fc00, 0x1c00)
    csel(a, 43, 0x400, 0xc00)
    a("s_lshl_b32 s40, s40, 10")
    a("v_lshrrev_b32 v2, 3, v0")
    a("v_and_b32 v3, 7, v0")
    a("v_lshlrev_b32 v4, s41, v2")
    a("v_add_u32 v4, s40, v4")
    a("v_lshrrev_b32 v5, 1, v2")
    a("v_xor_b32 v6, v3, v5")
    a("v_lshl_add_u32 v%d, v6, 4, v4" % XO)
    a("v_xor_b32 v6, 4, v6")
    a("v_lshl_add_u32 v%d, v6, 4, v4" % (XO + 1))
    a("v_add_u32 v%d, s42, v%d" % (XO + 1, XO + 1))
    a("s_lshl_b32 s44, s42, 1")
    a("v_add_u32 v%d, s44, v%d" % (XO + 2, XO))
    a("v_add_u32 v%d, s44, v%d" % (XO + 3, XO + 1))
    a("s_lshl_b32 s47, s17, 10")
    a("s_lshl_b32 s48, s19, 8")
    a("s_add_u32 s47, s47, s48")
    a("s_lshl_b32 s48, s46, 7")
    a("s_add_u32 s47, s47, s48")
    a("s_lshl_b32 s48, s19, 7")
    a("s_cmp_eq_u32 s17, 3")
    a("s_cselect_b32 s47, s48, s47")
    a("s_lshl_b32 s48, s45, 5")
    a("s_mul_i32 s48, s48, s43")
    a("s_add_u32 s47, s47, s48")
    a("v_mul_lo_u32 v4, v2, s43")
    a("v_add_u32 v4, s47, v4")
    a("v_and_b32 v5, 1, v5")
    a("v_lshlrev_b32 v5, 2, v5")
    a("v_xor_b32 v5, v3, v5")
    a("v_lshl_add_u32 v%d, v5, 4, v4" % BO)
    a("s_lshl_b32 s48, s43, 3")
    a("s_sub_u32 s48, s48, 0x400")
    for i in range(1, 4): a("v_add_u32 v%d, s48, v%d" % (BO + i, BO + i - 1))
    a("s_lshl_b32 s34, s43, 6")
    a("s_lshl_b32 s35, s16, 12")
    a("s_mul_i32 s33, s32, s34")
    a("s_lshl_b32 s32, s32, 7")
    a("s_waitcnt lgkmcnt(0)")
    stamp(a, 2)
    srd(a, 20, 4, 2 * MB)
    a("s_cmp_eq_u32 s46, 0")
    a("s_cselect_b32 s24, s8, s10")
    a("s_cselect_b32 s25, s9, s11")
    a("s_cmp_eq_u32 s17, 3")
    a("s_cselect_b32 s24, s24, s12")
    a("s_cselect_b32 s25, s25, s13")
    csel(a, 26, 0x80000, 0x180000)
    a("s_mov_b32 s27, 0x20000")
    def issue(c):
        sl = (c % R) * 0x8000
        a(f"s_add_u32 m0, s35, {sl:#x}")
        for i in range(4): a(f"buffer_load_dwordx4 v{XO+i}, s[20:23], s32 offen offset:{1024*i} {'nt' if c < K1NT[0] else ''} lds")
        a(f"s_add_u32 m0, s35, {sl+0x4000:#x}")
        for i in range(4): a(f"buffer_load_dwordx4 v{BO+i}, s[24:27], s33 offen offset:{1024*i} {'nt' if c < K1NT[1] else ''} lds")
        if c < 7:
            a("s_add_u32 s33, s33, s34")
            a("s_add_u32 s32, s32, 128")
            a("s_and_b32 s32, s32, 0x3ff")
            a("s_cselect_b32 s33, s33, 0")
    sched = K1SCHED
    for c in sched[0]: issue(c)
    a("s_lshl_b32 s49, s49, 3")
    a("s_lshl_b32 s48, s16, 1")
    a("s_add_u32 s49, s49, s48")
    a("s_lshl_b32 s48, s49, 10")
    a("v_lshlrev_b32 v6, 4, v0")
    a("v_add_u32 v7, s48, v6")
    a("v_lshlrev_b32 v8, 2, v0")
    a("v_mov_b32 v3, 0")
    srd(a, 28, 14, WS_SIZE)
    def gate_math():
        a("v_mov_b32 v1, 0")
        a("v_mov_b32 v2, 0")
        for i in range(4):
            a(f"v_dot2c_f32_bf16 v1, v{PK+i}, v{PK+8+i}")
            a(f"v_dot2c_f32_bf16 v2, v{PK+4+i}, v{PK+8+i}")
        for m in ["row_shr:1 row_mask:0xf bank_mask:0xf bound_ctrl:0", "row_shr:2 row_mask:0xf bank_mask:0xf bound_ctrl:0", "row_shr:4 row_mask:0xf bank_mask:0xf bound_ctrl:0",
                  "row_shr:8 row_mask:0xf bank_mask:0xf bound_ctrl:0", "row_bcast:15 row_mask:0xa bank_mask:0xf", "row_bcast:31 row_mask:0xc bank_mask:0xf"]:
            a(f"v_add_f32_dpp v1, v1, v1 {m}")
            a(f"v_add_f32_dpp v2, v2, v2 {m}")
        for v in (1, 2): a(f"v_mul_f32 v{v+3}, {f2u(-math.log2(math.e)):#x}, v{v}")
        for v in (4, 5): a(f"v_exp_f32 v{v}, v{v}")
        for v in (4, 5): a(f"v_add_f32 v{v}, 1.0, v{v}")
        for v in (4, 5): a(f"v_rcp_f32 v{v}, v{v}")
        a("s_lshl_b32 s49, s49, 6")
        a(f"s_add_u32 s49, s49, {GT_OFF:#x}")
        a("v_readlane_b32 s47, v4, 63")
        a("v_readlane_b32 s48, v5, 63")
        for i in range(4): a(f"v_mov_b32 v{PK+i}, s{47+(i&1)}")
        a("s_mov_b64 exec, 0xff")
        a(f"buffer_store_dwordx4 {vr(PK,4)}, v6, s[28:31], s49 offen {STF}")
        a("s_mov_b64 exec, -1")
    ops = [('c', c) for c in sched[0] for _ in range(8)]
    def allowed(tag):
        last = max(i for i, o in enumerate(ops) if o == tag)
        return len(ops) - 1 - last
    for c in range(8):
        a("s_waitcnt vmcnt(%d)" % allowed(('c', c)))
        if c == 0: stamp(a, 3)
        if c == 7: stamp(a, 4)
        a("s_barrier")
        if c == GATE_AT:
            a(f"global_load_dwordx4 {vr(PK,4)}, v7, s[4:5]")
            a(f"global_load_dwordx4 {vr(PK+4,4)}, v7, s[4:5] offset:1024")
            a(f"global_load_dwordx4 {vr(PK+8,4)}, v6, s[6:7]")
            ops += [('g', 0)] * 3
        if c + 1 < len(sched):
            for n in sched[c + 1]:
                issue(n); ops += [('c', n)] * 8
        if c == GATE_AT + 1:
            a("s_waitcnt vmcnt(%d)" % allowed(('g', 0)))
            gate_math()
            ops += [('s', 0)]
    if FUSED:
        a("s_cmp_lg_u32 s54, 4")
        a("s_cbranch_scc1 P1_initx")
        a("s_mov_b32 s48, 0")
        a.label("P1_init")
        a("global_load_dword v40, v8, s[62:63] sc1")
        a("s_waitcnt vmcnt(0)")
        a("v_cmp_eq_u32 vcc, 0, v40")
        a("s_add_u32 s48, s48, 1")
        a(f"s_cmp_ge_u32 s48, {SPIN_MAX}")
        a("s_cbranch_scc1 P1_initx")
        a("s_cbranch_vccnz P1_init")
        a.label("P1_initx")
    fin('L')
    a.label("P1_compute")
    a("v_and_b32 v7, 31, v0")
    a("v_lshrrev_b32 v8, 5, v0")
    perm23(a, 9, 7, 4, 5)
    a("s_lshl_b32 s47, s46, 13")
    a("s_cmp_eq_u32 s17, 3")
    a("s_cselect_b32 s48, s47, 0")
    a("s_cselect_b32 s47, 0, s47")
    a("s_add_u32 s48, s48, 0x4000")
    a("v_lshlrev_b32 v4, 7, v9")
    a("v_add_u32 v4, s47, v4")
    a("v_lshrrev_b32 v5, 1, v9")
    a("v_and_b32 v5, 7, v5")
    a("v_xor_b32 v5, v5, v8")
    for ks in range(4):
        a(f"v_xor_b32 v6, {2*ks}, v5")
        a(f"v_lshl_add_u32 v{AX+ks}, v6, 4, v4")
    a("v_lshrrev_b32 v4, 2, v0")
    a("v_and_b32 v4, 3, v4")
    a("v_lshl_add_u32 v5, v8, 3, v4")
    a("v_lshlrev_b32 v5, 7, v5")
    a("v_lshrrev_b32 v4, 1, v4")
    a("v_xor_b32 v4, s45, v4")
    a("v_lshl_add_u32 v5, v4, 6, v5")
    a("v_and_b32 v4, 16, v0")
    a("v_lshl_add_u32 v5, v4, 1, v5")
    a("v_and_b32 v4, 1, v0")
    a("v_lshl_add_u32 v5, v4, 4, v5")
    a("v_and_b32 v4, 2, v0")
    a("v_lshl_add_u32 v5, v4, 2, v5")
    a(f"v_add_u32 v{AB}, s48, v5")
    a("s_waitcnt lgkmcnt(0)")
    stamp(a, 2)
    srd(a, 28, 14, WS_SIZE)
    for i in range(64): a(f"v_mov_b32 v{ACC+i}, 0")
    if FUSED:
        a("s_lshl_b32 s47, s54, 8")
        a("s_or_b32 s47, s47, s2")
        a("s_cmp_ge_u32 s47, 64")
        a("s_cbranch_scc1 P1_noinit")
        a("v_lshlrev_b32 v4, 4, v0")
        a("s_lshl_b32 s47, s2, 10")
        a(f"s_add_u32 s47, s47, {FL_OFF:#x}")
        a(f"buffer_store_dwordx4 {vr(ACC,4)}, v4, s[28:31], s47 offen sc1")
        a("v_mov_b32 v5, 1")
        a("s_lshl_b32 s47, s2, 2")
        a("v_mov_b32 v4, s47")
        a("s_waitcnt vmcnt(0)")
        a("s_mov_b64 exec, 1")
        a("global_store_dword v4, v5, s[62:63] sc1")
        a("s_mov_b64 exec, -1")
        a.label("P1_noinit")
    a("s_mov_b32 s36, 0")
    a("s_cmp_lg_u32 s17, 3")
    a("s_cbranch_scc1 P1_noT")
    a("s_lshl_b32 s38, s19, 2")
    a("s_or_b32 s38, s38, s16")
    a("s_cmp_eq_u32 s38, 2")
    a("s_cselect_b32 s56, 1, 0")
    a("s_mov_b32 s57, s56")
    a(f"v_mov_b32 v{PV}, 0xbf803f80")
    a("v_lshrrev_b32 v4, 1, v7")
    a("v_cmp_eq_u32 vcc, 1, v7")
    a("v_cndmask_b32 v4, v4, 16, vcc")
    a("v_cvt_f32_u32 v4, v4")
    a(f"v_mul_f32 v4, {f2u(1/32):#x}, v4")
    a("v_and_b32 v5, 1, v7")
    a("v_cndmask_b32 v5, v5, 0, vcc")
    a("v_cvt_f32_u32 v5, v5")
    a("v_mul_f32 v5, 0x3e800000, v5")
    a("v_lshlrev_b32 v6, 3, v8")
    a("v_cvt_f32_u32 v6, v6")
    a("v_fma_f32 v5, v6, v4, v5")
    a("v_mul_f32 v6, 0x41100000, v4")
    for kk in range(2):
        for u in range(4):
            a(f"v_cos_f32 v{F[0]}, v5")
            a("v_add_f32 v5, v5, v4")
            a(f"v_cos_f32 v{F[0]+1}, v5")
            a(f"v_add_f32 v5, v5, v{6 if u == 3 else 4}")
            a(f"v_cvt_pk_bf16_f32 v{T+4*kk+u}, v{F[0]}, v{F[0]+1}")
    a.label("P1_noT")

    def reads(var, f, ks):
        if var < 2:
            x = [f"ds_read_b128 {vr(f+4*b,4)}, v{AX+ks} offset:{4096*b}" for b in range(2)]
            t = [f"ds_read_b64_tr_b16 {vr(f+8+4*j+2*q,2)}, v{AB} offset:{8192*j+2048*ks+512*q}" for j in range(2) for q in range(2)]
            return [x[0], t[0], t[1], x[1], t[2], t[3]]
        x = [f"ds_read_b128 {vr(f+4*b,4)}, v{AX+ks} offset:{4096*b}" for b in range(4)]
        t = [f"ds_read_b64_tr_b16 {vr(f+16+2*q,2)}, v{AB} offset:{2048*ks+512*q}" for q in range(2)]
        return [t[0], t[1], x[0], x[1], x[2], x[3]]
    def mf(var, f, n):
        D = ACC + 16 * n
        if var == 2: return mfma(D, f + 4 * n, f + 16)
        b, j = n & 1, n >> 1
        X, B = f + 4 * b, f + 8 + 4 * j
        return mfma(D, B, X) if var == 0 else mfma(D, X, B)
    def fixb(var, f):
        if var == 2:
            for u in range(4): a(f"v_cndmask_b32 v{f+16+u}, v{f+16+u}, v{PV}, s[56:57]")
    W = {0: [3, 5, 6, None], 1: [3, 5, 6, None], 2: [3, 5, 7, 6]}
    a("s_barrier")
    stamp(a, 3)
    if STAMP: a("s_waitcnt lgkmcnt(0)")
    a("s_cmp_eq_u32 s17, 3")
    a("s_cbranch_scc1 P1_pre2")
    for r in reads(0, F[0], 0): a(r)
    a("s_cmp_eq_u32 s17, 2")
    a("s_cbranch_scc1 P1_loop1")
    for var in (0, 1, 2):
        L = f"P1_loop{var}"
        if var == 2:
            a.label("P1_pre2")
            for r in reads(2, F[0], 0): a(r)
        a.label(L)
        for ks in range(3):
            cur, nxt = F[ks & 1], F[(ks + 1) & 1]
            rd = reads(var, nxt, ks + 1)
            if var == 2:
                a("s_waitcnt lgkmcnt(4)")
                fixb(var, cur)
            a(f"s_waitcnt lgkmcnt({W[var][0]})")
            a(mf(var, cur, 0))
            for r in rd[:3]: a(r)
            a(f"s_waitcnt lgkmcnt({W[var][1]})")
            a(mf(var, cur, 1))
            for r in rd[3:]: a(r)
            a(f"s_waitcnt lgkmcnt({W[var][2]})")
            a(mf(var, cur, 2))
            if ks == 2:
                a("s_add_u32 s36, s36, 1")
                a(f"s_cmp_lg_u32 s36, {R}")
                csel(a, 37, 0x8000, (-(R-1)*0x8000) & 0xffffffff)
                for k2 in range(4): a(f"v_add_u32 v{AX+k2}, s37, v{AX+k2}")
                a(f"v_add_u32 v{AB}, s37, v{AB}")
                a("s_cmp_eq_u32 s36, 8")
            if W[var][3] is not None: a(f"s_waitcnt lgkmcnt({W[var][3]})")
            a(mf(var, cur, 3))
        cur, nxt = F[1], F[0]
        if var == 2:
            a("s_waitcnt lgkmcnt(4)")
            fixb(var, cur)
        a(f"s_cbranch_scc1 {L}_last")
        a("s_waitcnt lgkmcnt(3)")
        a(mf(var, cur, 0))
        a("s_waitcnt lgkmcnt(0)")
        a("s_barrier")
        rd = reads(var, nxt, 0)
        for r in rd[:3]: a(r)
        a(mf(var, cur, 1))
        for r in rd[3:]: a(r)
        a(mf(var, cur, 2))
        a(mf(var, cur, 3))
        a(f"s_branch {L}")
        a.label(f"{L}_last")
        a("s_waitcnt lgkmcnt(0)")
        stamp(a, 5)
        for n in range(4): a(mf(var, cur, n))
        if var < 2:
            a("s_lshl_b32 s47, s46, 11")
            a("s_lshl_b32 s48, s45, 17")
            a("s_add_u32 s47, s47, s48")
            if var == 0:
                a(f"v_lshl_add_u32 v{ST}, v0, 4, s47")
            else:
                a("v_and_b32 v4, 15, v0")
                a("v_lshlrev_b32 v4, 4, v4")
                a("v_lshl_add_u32 v4, v8, 8, v4")
                a("v_lshrrev_b32 v5, 4, v7")
                a("v_lshl_add_u32 v4, v5, 16, v4")
                a(f"v_add_u32 v{ST}, s47, v4")
            a("s_lshl_b32 s47, s17, 21")
            a("s_lshl_b32 s48, s19, 19")
            a("s_add_u32 s47, s47, s48")
            a("s_lshl_b32 s48, s18, 12")
            a("s_add_u32 s50, s47, s48")
            a("s_add_u32 s51, s50, 0x10000")
            a("s_add_u32 s52, s50, 0x40000")
            a("s_add_u32 s53, s50, 0x50000")
            def epi(fl):
                for n in range(4):
                    b, j = n & 1, n >> 1
                    for hh in range(2):
                        d = PK + 4 * (2 * n + hh)
                        for u in range(4):
                            s = ACC + 16 * n + 8 * hh + 2 * u
                            a(f"v_cvt_pk_bf16_f32 v{d+u}, v{s}, v{s+1}")
                        if var == 0: a(f"buffer_store_dwordx4 {vr(d,4)}, v{ST}, s[28:31], s{50+2*j+hh} offen offset:{1024*b} {fl}")
                        else: a(f"buffer_store_dwordx4 {vr(d,4)}, v{ST}, s[28:31], s{50+2*j} offen offset:{512*(2*b+hh)} {fl}")
                stamp(a, 6)
                fin('C')
            epi(STF)
        else:
            a("s_lshl_b32 s47, s46, 12")
            a("s_lshl_b32 s48, s19, 10")
            a("s_add_u32 s47, s47, s48")
            a("s_lshl_b32 s48, s45, 9")
            a("s_add_u32 s47, s47, s48")
            a("v_lshlrev_b32 v4, 18, v8")
            a("v_lshl_add_u32 v4, v9, 4, v4")
            a(f"v_add_u32 v{ST}, s47, v4")
            a("s_lshl_b32 s50, s18, 13")
            a(f"s_add_u32 s50, s50, {H_OFF:#x}")
            for b in range(4):
                for u in range(8):
                    s = ACC + 16 * b + 2 * u
                    a(f"v_cvt_pk_bf16_f32 v{PK+8*b+u}, v{s}, v{s+1}")
                a(mfma(AC2 + 16 * b, T, PK + 8 * b, "0"))
                a(mfma(AC2 + 16 * b, T + 4, PK + 8 * b + 4))
            for i in range(8):
                d = ACC + 4 * i
                for pq in range(2):
                    for bp in range(2):
                        a(f"v_cvt_pk_bf16_f32 v{d+2*pq+bp}, v{AC2+32*bp+2*i+pq}, v{AC2+32*bp+16+2*i+pq}")
                a(f"buffer_store_dwordx4 {vr(d,4)}, v{ST}, s[28:31], s50 offen {STF}")
                if i < 7: a(f"s_add_u32 s50, s50, {(3 if i & 1 else 1) * 0x20000:#x}")
            stamp(a, 6)
            fin('C')

def p3_ids(a, t1=17, et=18, tau=19, tmp=20):
    a(f"s_and_b32 s{tau}, s2, 7")
    a(f"s_lshl_b32 s{tau}, s{tau}, 1")
    a(f"s_bfe_u32 s{tmp}, s2, 0x10003")
    a(f"s_or_b32 s{tau}, s{tau}, s{tmp}")
    a(f"s_sub_u32 s{tmp}, 32, s{tau}")
    a(f"s_cmp_eq_u32 s{tau}, 0")
    a(f"s_cselect_b32 s{tmp}, 16, s{tmp}")
    a("s_bitcmp1_b32 s2, 4")
    a(f"s_cselect_b32 s{t1}, s{tmp}, s{tau}")
    a(f"s_lshr_b32 s{et}, s2, 5")

WO_L, H_L = 0x10000, 0x20000
def p3_pref_setup(a, vWO, vH, t1, t2, sET, sTAU, sWO, sH, smW, smH, srdW):
    a(f"v_lshrrev_b32 v{t1}, 3, v0")
    a(f"v_lshrrev_b32 v{t2}, 1, v{t1}")
    a(f"v_and_b32 v{t2}, 1, v{t2}")
    a(f"v_lshlrev_b32 v{t2}, 2, v{t2}")
    a(f"v_and_b32 v{vWO}, 7, v0")
    a(f"v_xor_b32 v{vWO}, v{vWO}, v{t2}")
    a(f"v_lshlrev_b32 v{vWO}, 4, v{vWO}")
    a(f"v_lshl_add_u32 v{vWO}, v{t1}, 10, v{vWO}")
    a(f"s_lshl_b32 s{sWO}, s54, 16")
    a(f"s_lshl_b32 s{smW}, s{sET}, 7")
    a(f"s_add_u32 s{sWO}, s{sWO}, s{smW}")
    a(f"s_lshl_b32 s{smW}, s54, 13")
    a(f"s_add_u32 s{smW}, s{smW}, {WO_L:#x}")
    srd(a, srdW, 58, 512 * 1024)
    a(f"v_and_b32 v{t1}, 4, v0")
    a(f"v_lshlrev_b32 v{t1}, 2, v{t1}")
    a(f"v_bfe_u32 v{t2}, v0, 3, 2")
    a(f"v_lshl_add_u32 v{t1}, v{t2}, 2, v{t1}")
    a(f"v_and_b32 v{t2}, 3, v0")
    a(f"v_add_u32 v{t1}, v{t1}, v{t2}")
    a(f"s_lshl_b32 s{sH}, s{sET}, 6")
    a(f"s_bfe_u32 s{smH}, s54, 0x10001")
    a(f"s_lshl_b32 s{smH}, s{smH}, 5")
    a(f"s_add_u32 s{sH}, s{sH}, s{smH}")
    a(f"v_add_u32 v{t1}, s{sH}, v{t1}")
    a(f"v_sub_u32 v{t2}, 0x200, v{t1}")
    a(f"v_min_u32 v{t2}, v{t1}, v{t2}")
    a(f"v_and_b32 v{t1}, 0xff, v{t1}")
    a(f"s_lshr_b32 s{smH}, s54, 2")
    a(f"s_sub_u32 s{sH}, s{smH}, 1")
    a(f"v_cmp_eq_u32 vcc, s{sH}, v{t1}")
    a(f"v_lshrrev_b32 v{t1}, 5, v0")
    a(f"v_lshlrev_b32 v{t1}, 16, v{t1}")
    a(f"v_lshl_add_u32 v{vH}, v{t2}, 4, v{t1}")
    a(f"v_mov_b32 v{t1}, 0x7f000000")
    a(f"v_cndmask_b32 v{vH}, v{vH}, v{t1}, vcc")
    a(f"s_lshl_b32 s{smH}, s{smH}, 12")
    a(f"s_lshl_b32 s{sH}, s{sTAU}, 17")
    a(f"s_add_u32 s{sH}, s{sH}, s{smH}")
    a(f"s_and_b32 s{smH}, s54, 1")
    a(f"s_lshl_b32 s{smH}, s{smH}, 15")
    a(f"s_add_u32 s{sH}, s{sH}, s{smH}")
    a(f"s_add_u32 s{sH}, s{sH}, {H_OFF:#x}")
    a(f"s_lshl_b32 s{smH}, s54, 12")
    a(f"s_add_u32 s{smH}, s{smH}, {H_L:#x}")
def p3_pref_items(vWO, vH, sWO, sH, smW, smH, srdW):
    it = []
    for i in range(8):
        x = []
        if i == 0: x.append(f"s_mov_b32 m0, s{smW}")
        if i == 4: x.append(f"s_add_u32 m0, s{smW}, 0x1000")
        x.append(f"buffer_load_dwordx4 v{vWO}, {sr(srdW,4)}, s{sWO} offen offset:{1024*(i&3)} lds")
        if i < 7: x.append(f"s_add_u32 s{sWO}, s{sWO}, {(8192 + 3072) if i == 3 else 7168}")
        it.append(x)
    for i in range(4):
        x = []
        if i == 0: x.append(f"s_mov_b32 m0, s{smH}")
        x.append(f"buffer_load_dwordx4 v{vH}, s[28:31], s{sH} offen offset:{1024*i} {LDF} lds")
        if i < 3: x.append(f"s_add_u32 s{sH}, s{sH}, 7168")
        it.append(x)
    return it

def phase2(a, wait_data, ool_out):
    KF, VF, QF, SD = 8, 44, 116, 120
    SB = [136, 152, 168]
    Z, PM = 184, 200
    P = [208, 216]
    O, GX, M, NINF = 224, 240, 248, 249
    VWO, VH, VL = 250, 251, 252
    MK = 64 if not STAMP else None
    if STAMP: MKL = [4, 6, 8, 10, 12, 20, 22, 24, 26, 40, 42, 44, 50, 52, 64, 66]
    else: MKL = [64 + 2 * r for r in range(16)]
    if MAP == 1:
        a("s_bfe_u32 s17, s2, 0x20001")
        a("s_lshl_b32 s17, s17, 3")
        a("s_bfe_u32 s18, s2, 0x30003")
        a("s_or_b32 s17, s17, s18")
        a("s_and_b32 s19, s2, 1")
        a("s_lshl_b32 s19, s19, 2")
        a("s_lshr_b32 s18, s2, 6")
        a("s_or_b32 s19, s19, s18")
    else:
        a("s_and_b32 s17, s2, 7")
        a("s_lshl_b32 s17, s17, 2")
        a("s_bfe_u32 s18, s2, 0x20003")
        a("s_or_b32 s17, s17, s18")
        a("s_lshr_b32 s19, s2, 5")
    a("s_lshl_b32 s18, s19, 3")
    a("s_add_u32 s18, s18, s54")
    a(f"v_lshlrev_b32 v{VL}, 4, v0")
    a("s_lshl_b32 s32, s17, 16")
    a("s_lshl_b32 s33, s18, 10")
    a("s_add_u32 s33, s32, s33")
    a("s_cmp_eq_u32 s19, 0")
    a("s_cselect_b32 s34, 0, 0x2000")
    a("s_sub_u32 s34, s33, s34")
    a(f"s_add_u32 s35, s33, {K_OFF:#x}")
    a(f"s_add_u32 s36, s34, {K_OFF:#x}")
    a(f"s_add_u32 s37, s33, {V_OFF:#x}")
    a(f"s_add_u32 s38, s34, {V_OFF:#x}")
    a("s_lshl_b32 s39, s54, 10")
    def loads():
        a("s_add_u32 m0, s39, 0x2000")
        a(f"buffer_load_dwordx4 v{VL}, s[28:31], s35 offen {LDF} lds")
        a(f"buffer_load_dwordx4 {vr(QF,4)}, v{VL}, s[28:31], s33 offen {LDF}")
        a("s_mov_b32 m0, s39")
        a(f"buffer_load_dwordx4 v{VL}, s[28:31], s36 offen {LDF} lds")
    def vloads():
        a("s_add_u32 m0, s39, 0x6000")
        a(f"buffer_load_dwordx4 v{VL}, s[28:31], s37 offen {LDF} lds")
        a("s_add_u32 m0, s39, 0x4000")
        a(f"buffer_load_dwordx4 v{VL}, s[28:31], s38 offen {LDF} lds")
    if not FUSED:
        a("s_waitcnt lgkmcnt(0)")
        stamp(a, 2)
        srd(a, 28, 14, WS_SIZE)
        loads()
    a("s_mov_b32 s46, 0x3f803f80")
    for i in range(4): a(f"v_mov_b32 v{GX+i}, s46")
    a("s_lshl_b32 s46, s54, 11")
    a(f"v_add_u32 v6, s46, v{VL}")
    a(f"ds_write_b128 v6, {vr(GX,4)} offset:0x8000")
    a(f"ds_write_b128 v6, {vr(GX,4)} offset:0x8400")
    a("v_and_b32 v4, 31, v0")
    a("v_lshrrev_b32 v3, 5, v0")
    perm23(a, 253, 4, 5, 6)
    a("v_lshlrev_b32 v5, 3, v3")
    a("v_sub_u32 v5, v253, v5")
    for r in range(16): a(f"v_cmp_le_i32 {sr(MKL[r],2)}, {16*(r>>3)+(r&7)}, v5")
    a("v_mov_b32 v1, 0xffff")
    a(f"v_mov_b32 v{M}, 0xffff0000")
    for u in range(8):
        a(f"v_cndmask_b32 v{PM+u}, 0, v1, {sr(MKL[2*u],2)}")
        a(f"v_cndmask_b32 v{P[0]}, 0, v{M}, {sr(MKL[2*u+1],2)}")
        a(f"v_or_b32 v{PM+u}, v{PM+u}, v{P[0]}")
    for i in range(16): a(f"v_mov_b32 v{Z+i}, 0")
    a(f"v_mov_b32 v{NINF}, 0xff800000")
    a(f"v_add_u32 v254, s39, v{VL}")
    a("v_and_b32 v5, 15, v0")
    a("v_lshl_add_u32 v5, v3, 4, v5")
    a("v_lshl_add_u32 v5, v5, 4, s39")
    a("v_and_b32 v4, 16, v0")
    a("v_lshl_add_u32 v255, v4, 10, v5")
    if FUSED:
        p3_ids(a, 46, 47, 48, 49)
        p3_pref_setup(a, VWO, VH, 4, 5, 47, 48, 55, 56, 57, 16, 96 if not STAMP else 68)
        pf = p3_pref_items(VWO, VH, 55, 56, 57, 16, 96 if not STAMP else 68)
        wait_data()
        stamp(a, 7)
        loads()
        if not VLATE: vloads()
    else:
        pf = []
        vloads()
    a(f"s_mov_b32 s46, {f2u(0.25*math.log2(math.e)):#x}")
    a("s_waitcnt vmcnt(%d)" % (0 if (VLATE and FUSED) else 2))
    if VLATE and FUSED: vloads()
    stamp(a, 8)
    a("s_waitcnt lgkmcnt(0)")
    a("s_barrier")
    for j in range(9): a(f"ds_read_b128 {vr(KF+4*j,4)}, v254 offset:{(8-j)*1024}")
    if FUSED:
        a("s_cmp_lg_u32 s54, 7")
        a("s_cbranch_scc1 P2_nh")
        if MAP == 1:
            a("v_lshlrev_b32 v2, 8, v0")
            a(f"s_mov_b32 s47, {FL_OFF + 192 * 256:#x}")
        else:
            a("v_lshrrev_b32 v2, 1, v0")
            a("v_lshlrev_b32 v2, 3, v2")
            a("v_and_or_b32 v2, v0, 1, v2")
            a("v_lshlrev_b32 v2, 8, v2")
            a(f"s_mov_b32 s47, {FL_OFF + 6 * 256:#x}")
        a("buffer_load_dword v4, v2, s[28:31], s47 offen sc1")
        a.label("P2_nh")
    for i in range(4):
        a(f"v_lshlrev_b32 v{GX}, 16, v{QF+i}")
        a(f"v_and_b32 v{GX+1}, 0xffff0000, v{QF+i}")
        a(f"v_mul_f32 v{GX}, s46, v{GX}")
        a(f"v_mul_f32 v{GX+1}, s46, v{GX+1}")
        a(f"v_cvt_pk_bf16_f32 v{QF+i}, v{GX}, v{GX+1}")
    def smf(D, j, C): return mfma(D, KF + 4 * j, QF, C)
    def zswitch(j, tag):
        a(f"s_cmp_eq_u32 s18, {j-1}")
        a(f"s_cbranch_scc1 P2_o{tag}{j}")
        a.label(f"P2_z{tag}{j}")
        def emit(a, t=f"{tag}{j}"):
            a.label(f"P2_o{t}")
            a("s_nop 6")
            for i in range(16): a(f"v_mov_b32 v{Z+i}, v{NINF}")
            a("s_nop 0")
            a(f"s_branch P2_z{t}")
        ool_out.append(emit)
    def maxtile(S, first):
        if first:
            a(f"v_max3_f32 v{M}, v{S}, v{S+1}, v{S+2}")
            rest = list(range(3, 16))
        else: rest = list(range(16))
        while len(rest) >= 2:
            a(f"v_max3_f32 v{M}, v{M}, v{S+rest[0]}, v{S+rest[1]}"); rest = rest[2:]
        if rest: a(f"v_max_f32 v{M}, v{M}, v{S+rest[0]}")
    a("s_waitcnt lgkmcnt(8)")
    a(smf(SD, 0, "0"))
    order = [1, 2, 3, 4, 5, 6, 7, 0, 8]
    for j in range(1, 9):
        a(f"s_waitcnt lgkmcnt({8-j})")
        zswitch(j, "a")
        a(smf(SB[j % 3], j, vr(Z, 16)))
        if j >= 3: maxtile(SB[(j - 2) % 3], j == 3)
    a("s_waitcnt vmcnt(0)")
    if FUSED:
        a("s_cmp_lg_u32 s54, 7")
        a("s_cbranch_scc1 P2_nh2")
        poll(a, 2, 4, 47, True)
        a.label("P2_nh2")
    a("s_barrier")
    def vread(j):
        for u in range(2): a(f"ds_read_b128 {vr(VF+8*j+4*u,4)}, v255 offset:{0x4000+(8-j)*1024+512*u}")
    for j in order[:7]: vread(j)
    if not FUSED:
        a("s_cmp_ge_u32 s54, 3")
        a("s_cbranch_scc1 P2_nopf")
        a("s_mov_b32 m0, 0xe000")
        a("v_lshlrev_b32 v1, 7, v0")
        a("s_lshr_b32 s35, s2, 3")
        a("s_cmp_eq_u32 s54, 2")
        a("s_cbranch_scc1 P2_pfh")
        srd(a, 36, 58, 512 * 1024)
        a("s_lshl_b32 s35, s35, 1")
        a("s_add_u32 s35, s35, s54")
        a("s_lshl_b32 s35, s35, 13")
        a("buffer_load_dword v1, s[36:39], s35 offen lds")
        a("s_branch P2_nopf")
        a.label("P2_pfh")
        a("s_lshl_b32 s35, s35, 13")
        a("s_and_b32 s36, s2, 7")
        a("s_lshl_b32 s36, s36, 18")
        a("s_add_u32 s35, s35, s36")
        a(f"s_add_u32 s35, s35, {H_OFF:#x}")
        a("buffer_load_dword v1, s[28:31], s35 offen lds")
        a.label("P2_nopf")
    maxtile(SB[7 % 3], False)
    So = SB[8 % 3]
    for r in range(16): a(f"v_cndmask_b32 v{SD+r}, v{So+r}, v{SD+r}, {sr(MKL[r],2)}")
    maxtile(SD, False)
    a(f"v_mov_b32 v1, v{M}")
    a(f"v_permlane32_swap_b32 v1, v{M}")
    a(f"v_max_f32 v{M}, v1, v{M}")
    for i in range(16): a(f"v_sub_f32 v{Z+i}, 0, v{M}")
    def pv(j, Pb, u, first=False): return mfma(O, VF + 8 * j + 4 * u, Pb + 4 * u, "0" if first else None)
    def pfnext():
        if pf:
            for x in pf.pop(0): a(x)
    zswitch(1, "b")
    a(smf(SB[1], 1, vr(Z, 16)))
    zswitch(2, "b")
    a(smf(SB[2], 2, vr(Z, 16)))
    a("s_waitcnt lgkmcnt(0)")
    stamp(a, 9)
    for j in order[7:]: vread(j)
    for r in range(16): a(f"v_sub_f32 v{SD+r}, v{SD+r}, v{M}")
    for n, j in enumerate(range(1, 8)):
        S = SB[j % 3]; Pb = P[n & 1]
        pfnext()
        for r in range(8): a(f"v_exp_f32 v{S+r}, v{S+r}")
        if n > 0: a(pv(j - 1, P[(n - 1) & 1], 1))
        for u in range(4): a(f"v_cvt_pk_bf16_f32 v{Pb+u}, v{S+2*u}, v{S+2*u+1}")
        pfnext()
        for r in range(8, 16): a(f"v_exp_f32 v{S+r}, v{S+r}")
        a(pv(j, Pb, 0, n == 0))
        for u in range(4, 8): a(f"v_cvt_pk_bf16_f32 v{Pb+u}, v{S+2*u}, v{S+2*u+1}")
        if j + 2 <= 7:
            zswitch(j + 2, "b")
            a(smf(SB[(j + 2) % 3], j + 2, vr(Z, 16)))
    assert not pf
    for r in range(8): a(f"v_exp_f32 v{SD+r}, v{SD+r}")
    a(pv(7, P[0], 1))
    for r in range(8, 16): a(f"v_exp_f32 v{SD+r}, v{SD+r}")
    Pd, Po = P[1], SB[0]
    for u in range(8): a(f"v_cvt_pk_bf16_f32 v{Po+u}, v{SD+2*u}, v{SD+2*u+1}")
    for u in range(8): a(f"v_and_b32 v{Pd+u}, v{Po+u}, v{PM+u}")
    a("s_waitcnt lgkmcnt(0)")
    a(pv(0, Pd, 0))
    for u in range(8): a(f"v_xor_b32 v{Po+u}, v{Po+u}, v{Pd+u}")
    a(pv(0, Pd, 1))
    a(pv(8, Po, 0))
    a(pv(8, Po, 1))
    a("v_and_b32 v4, 7, v0")
    a("v_xor_b32 v5, s54, v4")
    a("v_lshlrev_b32 v5, 4, v5")
    a("v_lshl_add_u32 v5, v0, 7, v5")
    a("v_lshrrev_b32 v6, 3, v0")
    a("v_xor_b32 v4, v4, v6")
    a("s_and_b32 s32, s54, 3")
    a("s_lshl_b32 s32, s32, 3")
    a("v_add_u32 v6, s32, v6")
    perm23(a, 6, 6, 7, 2)
    a("v_lshlrev_b32 v4, 4, v4")
    a("v_lshl_add_u32 v4, v6, 16, v4")
    a("s_lshl_b32 s32, s17, 11")
    a("s_lshr_b32 s33, s19, 2")
    a("s_lshl_b32 s33, s33, 10")
    a("s_add_u32 s32, s32, s33")
    a("s_lshr_b32 s33, s54, 2")
    a("s_lshl_b32 s33, s33, 9")
    a("s_add_u32 s32, s32, s33")
    a("s_and_b32 s33, s19, 3")
    a("s_lshl_b32 s33, s33, 7")
    a("s_add_u32 s32, s32, s33")
    a(f"s_add_u32 s32, s32, {O_OFF:#x}")
    a(f"v_rcp_f32 v1, v{O+8}")
    for i in range(8): a(f"v_mul_f32 v{O+i}, v{O+i}, v1")
    for u in range(4): a(f"v_cvt_pk_bf16_f32 v{P[0]+u}, v{O+2*u}, v{O+2*u+1}")
    a(f"ds_write_b128 v5, {vr(P[0],4)} offset:0xc000")
    stamp(a, 10)
    a("s_waitcnt lgkmcnt(0)")
    a("s_barrier")
    a(f"ds_read_b128 {vr(P[0],4)}, v254 offset:0xc000")
    a("s_waitcnt lgkmcnt(0)")
    a(f"buffer_store_dwordx4 {vr(P[0],4)}, v4, s[28:31], s32 offen {STF}")

def phase3(a, wait_data, kidx):
    WA, WB = 48, 80
    Y, B = 112, 128
    GT = 12
    AO, AW, AH = 13, 14, 15
    FB = [16, 24, 32, 40]
    p3_ids(a)
    a("s_and_b32 s16, s54, 3")
    a("s_and_b32 s21, s16, 1")
    a("s_lshr_b32 s20, s16, 1")
    if not FUSED:
        a("s_waitcnt lgkmcnt(0)")
        stamp(a, 2)
        srd(a, 28, 14, WS_SIZE)
        p3_pref_setup(a, 8, 9, 4, 5, 18, 19, 55, 56, 57, 49, 32)
        for x in p3_pref_items(8, 9, 55, 56, 57, 49, 32):
            for y in x: a(y)
    a("s_cmp_lt_u32 s54, 4")
    a("s_cbranch_scc1 P3_compute")
    a("v_lshlrev_b32 v8, 4, v0")
    a("s_lshl_b32 s22, s17, 16")
    a("s_lshl_b32 s23, s16, 12")
    a("s_add_u32 s22, s22, s23")
    a(f"s_add_u32 s22, s22, {O_OFF:#x}")
    if FUSED:
        wait_data('L')
    else:
        pass
    stamp(a, 11)
    nst = 4
    for g in range(nst):
        a(f"s_add_u32 m0, s23, {g*0x4000:#x}")
        for i in range(4): a(f"buffer_load_dwordx4 v8, s[28:31], s22 offen offset:{1024*i} {LDF} lds")
        if g < nst - 1: a("s_add_u32 s22, s22, 0x4000")
    if not FUSED:
        a("s_waitcnt vmcnt(16)")
        a("s_barrier")
    for g in range(nst):
        a(f"s_waitcnt vmcnt({4*(nst-1-g)})")
        a("s_barrier")
    stamp(a, 12)
    stamp_out(a, kidx)
    a("s_endpgm")
    a.label("P3_compute")
    a("v_and_b32 v2, 31, v0")
    a("v_lshrrev_b32 v3, 5, v0")
    a("s_lshl_b32 s22, s20, 10")
    a("s_add_u32 s23, s22, s17")
    a("v_lshl_add_u32 v4, v2, 5, s23")
    a("v_lshrrev_b32 v10, 1, v4")
    a("v_lshlrev_b32 v10, 7, v10")
    a("s_and_b32 s23, s17, 1")
    a("s_lshl_b32 s23, s23, 2")
    a("v_add_u32 v10, s23, v10")
    a(f"v_lshl_add_u32 v{AO}, v0, 4, s22")
    a("v_lshrrev_b32 v1, 2, v0")
    a("v_and_b32 v1, 3, v1")
    a("v_lshl_add_u32 v7, v3, 3, v1")
    a("v_lshlrev_b32 v7, 7, v7")
    a("v_lshrrev_b32 v1, 1, v1")
    a("v_xor_b32 v1, s21, v1")
    a("v_lshl_add_u32 v7, v1, 6, v7")
    a("v_and_b32 v1, 1, v0")
    a("v_lshl_add_u32 v7, v1, 5, v7")
    a("v_and_b32 v1, 16, v0")
    a("v_add_u32 v7, v1, v7")
    a("v_and_b32 v1, 2, v0")
    a("v_lshl_add_u32 v7, v1, 2, v7")
    a(f"v_add_u32 v{AW}, {WO_L:#x}, v7")
    a("s_lshl_b32 s24, s21, 13")
    a(f"s_add_u32 s24, s24, {H_L:#x}")
    a(f"v_lshl_add_u32 v{AH}, v0, 4, s24")
    srd(a, 36, 60, 2 * MB)
    a(f"s_mov_b32 s40, {GT_OFF:#x}")
    if not FUSED: a(f"buffer_load_dword v{GT}, v10, s[28:31], s40 offen {LDF}")
    a("v_cvt_f32_u32 v5, v4")
    a("s_cmp_gt_u32 s17, 16")
    csel(a, 26, f2u(-1/2048), f2u(1/2048))
    a("s_cselect_b32 s27, 1, 0")
    a("s_lshr_b32 s24, s18, 2")
    a("s_xor_b32 s27, s27, s24")
    a("s_cselect_b32 s24, 0x80008000, 0")
    a("s_xor_b32 s25, s24, 0x80008000")
    a("v_mul_f32 v5, s26, v5")
    a("v_lshlrev_b32 v6, 5, v3")
    a("v_cvt_f32_u32 v6, v6")
    a("v_mul_f32 v6, v6, v5")
    a("v_fract_f32 v6, v6")
    for kk in range(8):
        for pr in range(2):
            a("v_cos_f32 v16, v6")
            a("v_sin_f32 v18, v6")
            a("v_add_f32 v6, v6, v5")
            a("v_cos_f32 v17, v6")
            a("v_sin_f32 v19, v6")
            a("v_add_f32 v6, v6, v5")
            a(f"v_cvt_pk_bf16_f32 v{WA+4*kk+pr}, v16, v17")
            a(f"v_cvt_pk_bf16_f32 v{WA+4*kk+2+pr}, v18, v19")
            a(f"v_xor_b32 v{WB+4*kk+2+pr}, s25, v{WA+4*kk+pr}")
            a(f"v_xor_b32 v{WB+4*kk+pr}, s24, v{WA+4*kk+2+pr}")
    a("s_cmp_lg_u32 s19, 0")
    a("s_cbranch_scc1 P3_wdone")
    a("s_cmp_eq_u32 s17, 0")
    a("s_cbranch_scc1 P3_w0")
    for W_ in (WA, WB):
        for kk in range(8):
            for pr in range(2):
                a(f"v_mov_b32 v{W_+4*kk+2+pr}, v{W_+4*kk+pr}")
                a(f"v_mov_b32 v{W_+4*kk+pr}, 0")
    a("s_branch P3_wdone")
    a.label("P3_w0")
    for W_ in (WA, WB):
        for kk in range(8):
            for pr in range(2): a(f"v_mov_b32 v{W_+4*kk+2+pr}, 0")
    a.label("P3_wdone")
    a("v_lshlrev_b32 v4, 10, v4")
    a("v_lshl_add_u32 v4, v3, 5, v4")
    a("s_lshl_b32 s22, s18, 7")
    a("s_lshl_b32 s23, s21, 6")
    a("s_add_u32 s22, s22, s23")
    def run(steps, firstflag):
        D = 3
        pend = []
        def rd(step, f):
            kind, k = step
            if kind == 'H': return [f"ds_read_b128 {vr(f,4)}, v{AH} offset:{(k>>3)*0x4000 + (k&7)*1024}"]
            return [f"ds_read_b64_tr_b16 {vr(f,2)}, v{AW} offset:{2048*k}",
                    f"ds_read_b64_tr_b16 {vr(f+2,2)}, v{AW} offset:{2048*k + 512}",
                    f"ds_read_b128 {vr(f+4,4)}, v{AO} offset:{2048*k}"]
        bn = [0]
        def issue(st):
            f = FB[bn[0] % 4]; bn[0] += 1
            r = rd(st, f)
            for x in r: a(x)
            pend.append((st, f, len(r)))
        for n in range(min(D, len(steps))): issue(steps[n])
        for n in range(len(steps)):
            if n + D < len(steps): issue(steps[n + D])
            st, f, _ = pend.pop(0)
            a("s_waitcnt lgkmcnt(%d)" % sum(x[2] for x in pend))
            if st[0] == 'H': a(mfma(Y, f, (WA if st[1] < 8 else WB) + 4 * (st[1] & 7), "0" if st[1] == 0 else None))
            else: a(mfma(B, f, f + 4, "0" if st[1] == 0 else None))
    if not FUSED:
        a("s_waitcnt vmcnt(1)")
        a("s_barrier")
    run([('H', k) for k in range(16)], True)
    if FUSED:
        wait_data('C')
        a(f"buffer_load_dword v{GT}, v10, s[28:31], s40 offen {LDF}")
    stamp(a, 11)
    if STAMP: a("s_waitcnt lgkmcnt(0)")
    for g in range(4):
        a("s_barrier")
        run([('O', 8 * g + k) for k in range(8)], g == 0)
    stamp(a, 12)
    a("s_waitcnt vmcnt(0)")
    for i in range(16): a(f"v_sub_f32 v{Y+i}, v{Y+i}, v{B+i}")
    for i in range(16): a(f"v_fma_f32 v{Y+i}, v{GT}, v{Y+i}, v{B+i}")
    for u in range(8): a(f"v_cvt_pk_bf16_f32 v{WA+u}, v{Y+2*u}, v{Y+2*u+1}")
    a(f"buffer_store_dwordx4 {vr(WA,4)}, v4, s[36:39], s22 offen {OUTF}")
    a(f"buffer_store_dwordx4 {vr(WA+4,4)}, v4, s[36:39], s22 offen offset:16 {OUTF}")
    stamp_out(a, kidx)

def gen_fused():
    a = Asm(); ool = []
    prologue(a, "F_done", (1, 2, 3))
    def fin(role): a("s_branch P2_start")
    phase1(a, fin)
    a.label("P2_start")
    a("s_waitcnt vmcnt(0)")
    a("s_barrier")
    stamp(a, 2)
    sync_flag(a, 0)
    def wait1():
        a("s_lshr_b32 s47, s18, 2")
        a("s_cmp_eq_u32 s19, 0")
        a("s_cselect_b32 s48, 0, 2")
        a("s_sub_u32 s48, s47, s48")
        for r in (47, 48):
            a(f"s_lshr_b32 s49, s{r}, 3")
            a(f"s_and_b32 s{r}, s{r}, 7")
            a(f"s_lshl_b32 s{r}, s{r}, 3")
            a(f"s_or_b32 s{r}, s{r}, s49")
        a(f"s_sub_u32 s48, s48, {128 if MAP == 1 else 4}")
        a("v_mov_b32 v4, s47")
        a("v_mov_b32 v5, s48")
        a("v_cmp_gt_u32 vcc, 3, v0")
        a("v_cndmask_b32 v4, v5, v4, vcc")
        a(f"v_lshl_add_u32 v4, v0, {6 if MAP == 1 else 1}, v4")
        if MAP == 1: a("s_and_b32 s47, s2, 6")
        else:
            a("s_lshr_b32 s47, s17, 3")
            a("s_lshl_b32 s47, s47, 6")
        a("v_add_lshl_u32 v2, v4, s47, 8")
        a(f"s_mov_b32 s47, {FL_OFF:#x}")
        a("s_mov_b64 exec, 0x1f")
        poll(a, 2, 4, 47, fl=POLL1F)
    phase2(a, wait1, ool)
    a("s_waitcnt vmcnt(0)")
    a("s_barrier")
    stamp(a, 3)
    sync_flag(a, 1)
    def wait2(role):
        if role == 'L':
            sync_wait2(a)
        a("s_barrier")
    phase3(a, wait2, 0)
    a.label("F_done")
    a("s_endpgm")
    for e in ool: e(a)
    return a.lines, 256, 102

def gen_k1():
    a = Asm(); prologue(a, "K1_done", (1,))
    def fin(role): stamp_out(a, 0); a("s_endpgm")
    phase1(a, fin)
    a.label("K1_done"); a("s_endpgm")
    return a.lines, 240, 102
def gen_k2():
    a = Asm(); ool = []; prologue(a, "K2_done", (2,))
    phase2(a, None, ool)
    stamp_out(a, 1)
    a.label("K2_done"); a("s_endpgm")
    for e in ool: e(a)
    return a.lines, 256, 102
def gen_k3():
    a = Asm(); prologue(a, "K3_done", (3,))
    phase3(a, None, 2)
    a.label("K3_done"); a("s_endpgm")
    return a.lines, 144, 102

def build(path):
    head = open(f"cdna_kernels/{NAME}.s.ref").read().split("; Override launch")[0]
    out = head
    if FUSED:
        ks = [(NAME + "_kernel", gen_fused, 512, 163840)]
        out += "; @launch grid=(256,1,1) block=(512,1,1) lds=163840\n"
    else:
        ks = [("fnet_k1_kernel", gen_k1, 512, R * 32768), ("fnet_k2_kernel", gen_k2, 512, 0xe100), ("fnet_k3_kernel", gen_k3, 512, 163840)]
        for n, _, thr, lds in ks: out += f"; @launch kernel={n} grid=(256,1,1) block=({thr},1,1) lds={lds}\n"
    out += '.amdgcn_target "amdgcn-amd-amdhsa--gfx950"\n'
    kds = []
    for n, g, _, _ in ks:
        lines, v, s = g()
        print("kernel", n, len(lines))
        lines = fix_hazards(lines, VERB)
        code, kd = kernel_text(n, lines, v, s)
        out += code; kds.append(kd)
    out += '.section .rodata,"a"\n' + "".join(kds)
    open(path, "w").write(out)

VERB = False
if __name__ == "__main__":
    for x in list(sys.argv):
        if x.startswith("-D"):
            exec(x[2:], globals()); sys.argv.remove(x)
    if "--stamp" in sys.argv: STAMP = True; sys.argv.remove("--stamp")
    build(sys.argv[1] if len(sys.argv) > 1 else f"cdna_kernels/{NAME}.s")
```

```python
import sys, math, struct
sys.path.insert(0, "work")
from asmlib import *

MB = 1 << 20
Q_OFF, K_OFF, V_OFF, H_OFF, O_OFF, GT_OFF, FL_OFF = 0, 2 * MB, 4 * MB, 6 * MB, 8 * MB, 10 * MB, 10 * MB + 262144
WS_SIZE = 11 * MB
NAME = "gated_mix__spectral_fnet__sliding_block__prompt"
def f2u(f): return struct.unpack("<I", struct.pack("<f", f))[0]

FUSED = 1
STAMP = False
R = 4
K1SCHED = [[0, 1], [2], [3], [4], [5], [6], [7]]
K1ROT = (2, 3)
K1NT = (0, 1)
STF = "sc1"
LDF = "sc1"
OUTF = ""
P3G = [8, 8, 8, 8]
SPIN_MAX = 1 << 16
POLLSLEEP = 0
GATE_AT = 3
MAP = 0
LOCALFLAG = 0
POLL1F = 'sc1'
VLATE = 1
TBL_AT = 4
FORCE_GLOBAL = 0
MODE_L = 0x27ff0

ST_OFF = 16 * MB
SB0 = 72
TENC = None
def stamp(a, i, real=False):
    if TENC is not None:
        if i == 0:
            a(f"s_memrealtime {sr(SB0,2)}")
            a("s_waitcnt lgkmcnt(0)")
            a(f"s_mov_b32 s{SB0+2}, s{SB0}")
        elif i == TENC: a(f"s_memrealtime {sr(SB0+2,2)}")
        return
    if STAMP: a(f"{'s_memrealtime' if real else 's_memtime'} {sr(SB0+2*i,2)}")
def stamp_out(a, kidx):
    if TENC is not None:
        L = uid("Ltenc")
        a("s_waitcnt vmcnt(0) lgkmcnt(0)")
        stamp(a, 13)
        a("s_waitcnt lgkmcnt(0)")
        a(f"s_sub_u32 s70, s{SB0+2}, s{SB0}")
        a("s_lshl_b32 s70, s70, 1")
        a("s_add_u32 s70, s70, 4000")
        a("s_min_u32 s70, s70, 20000")
        a.label(L)
        a(f"s_memrealtime {sr(SB0+4,2)}")
        a("s_waitcnt lgkmcnt(0)")
        a(f"s_sub_u32 s71, s{SB0+4}, s{SB0}")
        a("s_cmp_lt_u32 s71, s70")
        a(f"s_cbranch_scc1 {L}")
        return
    if not STAMP: return
    a("s_waitcnt vmcnt(0) lgkmcnt(0)")
    stamp(a, 13); stamp(a, 14, True)
    a("s_waitcnt lgkmcnt(0)")
    a("s_mov_b64 exec, -1")
    for i in range(15): a(f"v_writelane_b32 v1, s{SB0+2*i}, {i}")
    a("v_mbcnt_lo_u32_b32 v2, -1, 0")
    a("v_lshlrev_b32 v2, 2, v2")
    a("s_lshl_b32 s70, s2, 9")
    a("s_lshl_b32 s71, s54, 6")
    a("s_add_u32 s70, s70, s71")
    a(f"s_add_u32 s70, s70, {ST_OFF + kidx * MB:#x}")
    a("v_add_u32 v2, s70, v2")
    a("s_mov_b64 exec, 0xffff")
    a("global_store_dword v2, v1, s[14:15]")

def srd(a, d, base, size):
    a(f"s_mov_b32 s{d}, s{base}")
    a(f"s_mov_b32 s{d+1}, s{base+1}")
    a(f"s_mov_b32 s{d+2}, {size:#x}")
    a(f"s_mov_b32 s{d+3}, 0x20000")
def csel(a, d, x, y):
    a(f"s_mov_b32 s{d}, {y:#x}")
    a(f"s_cselect_b32 s{d}, {x:#x}, s{d}")
def perm23(a, dst, src, t1, t2):
    a(f"v_and_b32 v{t1}, 0x13, v{src}")
    a(f"v_and_b32 v{t2}, 4, v{src}")
    a(f"v_lshl_or_b32 v{t1}, v{t2}, 1, v{t1}")
    a(f"v_and_b32 v{t2}, 8, v{src}")
    a(f"v_lshrrev_b32 v{t2}, 1, v{t2}")
    a(f"v_or_b32 v{dst}, v{t1}, v{t2}")
def mfma(D, A, B, C=None):
    return f"v_mfma_f32_32x32x16_bf16 {vr(D,16)}, {vr(A,4)}, {vr(B,4)}, {vr(D,16) if C is None else C}"

def prologue(a, done, which):
    a("s_cmp_ge_u32 s2, 256")
    a(f"s_cbranch_scc1 {done}")
    stamp(a, 0, True); stamp(a, 1)
    if 1 in which:
        a("s_load_dwordx2 s[4:5], s[0:1], 0")
        a("s_load_dwordx4 s[8:11], s[0:1], 24")
        a("s_load_dwordx2 s[12:13], s[0:1], 48")
        a("s_load_dwordx2 s[6:7], s[0:1], 64")
    a("s_load_dwordx2 s[14:15], s[0:1], 88")
    if 2 in which or 3 in which: a("s_load_dwordx2 s[58:59], s[0:1], 56")
    if 3 in which: a("s_load_dwordx4 s[60:63], s[0:1], 72")
    a("v_lshrrev_b32 v1, 6, v0")
    a("v_and_b32 v0, 63, v0")
    a("v_readfirstlane_b32 s54, v1")

_uid = [0]
def uid(p):
    _uid[0] += 1; return f"{p}{_uid[0]}"

def sync_flag(a, which):
    L = uid("Lflag")
    a("s_cmp_lg_u32 s54, 4")
    a(f"s_cbranch_scc1 {L}")
    a("v_mov_b32 v1, 1")
    a("s_lshl_b32 s47, s2, 8")
    a(f"s_add_u32 s47, s47, {FL_OFF + 128 * which:#x}")
    a("v_mov_b32 v2, 0")
    a("s_mov_b64 exec, 1")
    a("buffer_store_dword v1, v2, s[28:31], s47 offen sc1")
    a("s_mov_b64 exec, -1")
    a.label(L)

def poll(a, vaddr, vdata, soff, first_loaded=False, fl="sc1"):
    L = uid("Lpoll")
    a("s_mov_b32 s48, 0")
    if first_loaded: a(f"s_branch {L}c")
    a.label(L)
    a(f"buffer_load_dword v{vdata}, v{vaddr}, s[28:31], s{soff} offen {fl}")
    a("s_waitcnt vmcnt(0)")
    a.label(L + "c")
    a(f"v_cmp_eq_u32 vcc, 0, v{vdata}")
    a("s_add_u32 s48, s48, 1")
    a(f"s_cmp_ge_u32 s48, {SPIN_MAX}")
    a(f"s_cbranch_scc1 {L}x")
    a("s_and_b64 exec, exec, vcc")
    a(f"s_cbranch_scc1 {L}")
    a.label(L + "x")
    a("s_mov_b64 exec, -1")

def sync_wait2(a):
    a("v_lshlrev_b32 v2, 8, v0")
    a("s_lshl_b32 s47, s54, 14")
    a(f"s_add_u32 s47, s47, {FL_OFF + 128 - 4 * 16384:#x}")
    poll(a, 2, 4, 47)

def phase1(a, fin):
    XO, BO, AX, AB, PV, ST = 10, 14, 18, 22, 24, 25
    F = [28, 48]
    ACC = 68
    T = 132
    PK = 140
    AC2 = 172
    if MAP == 1:
        a("s_lshr_b32 s17, s2, 6")
        a("s_and_b32 s40, s2, 1")
        a("s_bfe_u32 s39, s2, 0x30003")
        a("s_bfe_u32 s41, s2, 0x20001")
        a("s_lshl_b32 s18, s40, 3")
        a("s_or_b32 s18, s18, s39")
        a("s_lshl_b32 s42, s41, 2")
        a("s_and_b32 s43, s39, 3")
        a("s_or_b32 s42, s42, s43")
        a("s_lshl_b32 s44, s40, 1")
        a("s_lshr_b32 s47, s39, 2")
        a("s_or_b32 s44, s44, s47")
        a(f"s_mul_i32 s32, s41, {K1ROT[0]}")
        a(f"s_mul_i32 s33, s17, {K1ROT[1]}")
        a("s_add_u32 s32, s32, s33")
        a("s_add_u32 s32, s32, s39")
        a("s_lshl_b32 s43, s43, 1")
        a("s_lshl_b32 s47, s47, 2")
        a("s_add_u32 s43, s43, s47")
        a("s_add_u32 s43, s43, s41")
        a("s_lshl_b32 s49, s18, 4")
        a("s_lshl_b32 s47, s17, 2")
        a("s_add_u32 s49, s49, s47")
        a("s_add_u32 s49, s49, s41")
        a("s_cmp_eq_u32 s17, 3")
        a("s_cselect_b32 s18, s42, s18")
        a("s_cselect_b32 s19, s44, s41")
        a("s_cselect_b32 s32, s43, s32")
        a("s_and_b32 s32, s32, 7")
    else:
        a("s_bfe_u32 s17, s2, 0x20001")
        a("s_and_b32 s18, s2, 1")
        a("s_lshl_b32 s18, s18, 3")
        a("s_bfe_u32 s39, s2, 0x30003")
        a("s_or_b32 s18, s18, s39")
        a("s_lshr_b32 s19, s2, 6")
        a("s_lshl_b32 s47, s17, 2")
        a("s_add_u32 s47, s47, s19")
        a("s_add_u32 s32, s47, s18")
        a("s_and_b32 s32, s32, 7")
        a("s_lshl_b32 s49, s18, 4")
        a("s_add_u32 s49, s49, s47")
    a("s_and_b32 s16, s54, 3")
    a("s_and_b32 s45, s16, 1")
    a("s_lshr_b32 s46, s16, 1")
    a("s_cmp_lt_u32 s54, 4")
    a("s_cbranch_scc1 P1_compute")
    a("s_lshl_b32 s40, s18, 7")
    a("s_lshl_b32 s41, s16, 5")
    a("s_add_u32 s40, s40, s41")
    a("s_lshl_b32 s41, s18, 2")
    a("s_add_u32 s41, s41, s16")
    a("s_cmp_eq_u32 s17, 3")
    a("s_cselect_b32 s40, s41, s40")
    a("s_cselect_b32 s41, 16, 10")
    csel(a, 42, 0x7fc00, 0x1c00)
    csel(a, 43, 0x400, 0xc00)
    a("s_lshl_b32 s40, s40, 10")
    a("v_lshrrev_b32 v2, 3, v0")
    a("v_and_b32 v3, 7, v0")
    a("v_lshlrev_b32 v4, s41, v2")
    a("v_add_u32 v4, s40, v4")
    a("v_lshrrev_b32 v5, 1, v2")
    a("v_xor_b32 v6, v3, v5")
    a("v_lshl_add_u32 v%d, v6, 4, v4" % XO)
    a("v_xor_b32 v6, 4, v6")
    a("v_lshl_add_u32 v%d, v6, 4, v4" % (XO + 1))
    a("v_add_u32 v%d, s42, v%d" % (XO + 1, XO + 1))
    a("s_lshl_b32 s44, s42, 1")
    a("v_add_u32 v%d, s44, v%d" % (XO + 2, XO))
    a("v_add_u32 v%d, s44, v%d" % (XO + 3, XO + 1))
    a("s_lshl_b32 s47, s17, 10")
    a("s_lshl_b32 s48, s19, 8")
    a("s_add_u32 s47, s47, s48")
    a("s_lshl_b32 s48, s46, 7")
    a("s_add_u32 s47, s47, s48")
    a("s_lshl_b32 s48, s19, 7")
    a("s_cmp_eq_u32 s17, 3")
    a("s_cselect_b32 s47, s48, s47")
    a("s_lshl_b32 s48, s45, 5")
    a("s_mul_i32 s48, s48, s43")
    a("s_add_u32 s47, s47, s48")
    a("v_mul_lo_u32 v4, v2, s43")
    a("v_add_u32 v4, s47, v4")
    a("v_and_b32 v5, 1, v5")
    a("v_lshlrev_b32 v5, 2, v5")
    a("v_xor_b32 v5, v3, v5")
    a("v_lshl_add_u32 v%d, v5, 4, v4" % BO)
    a("s_lshl_b32 s48, s43, 3")
    a("s_sub_u32 s48, s48, 0x400")
    for i in range(1, 4): a("v_add_u32 v%d, s48, v%d" % (BO + i, BO + i - 1))
    a("s_lshl_b32 s34, s43, 6")
    a("s_lshl_b32 s35, s16, 12")
    a("s_mul_i32 s33, s32, s34")
    a("s_lshl_b32 s32, s32, 7")
    a("s_waitcnt lgkmcnt(0)")
    stamp(a, 2)
    srd(a, 20, 4, 2 * MB)
    a("s_cmp_eq_u32 s46, 0")
    a("s_cselect_b32 s24, s8, s10")
    a("s_cselect_b32 s25, s9, s11")
    a("s_cmp_eq_u32 s17, 3")
    a("s_cselect_b32 s24, s24, s12")
    a("s_cselect_b32 s25, s25, s13")
    csel(a, 26, 0x80000, 0x180000)
    a("s_mov_b32 s27, 0x20000")
    def issue(c):
        sl = (c % R) * 0x8000
        a(f"s_add_u32 m0, s35, {sl:#x}")
        for i in range(4): a(f"buffer_load_dwordx4 v{XO+i}, s[20:23], s32 offen offset:{1024*i} {'nt' if c < K1NT[0] else ''} lds")
        a(f"s_add_u32 m0, s35, {sl+0x4000:#x}")
        for i in range(4): a(f"buffer_load_dwordx4 v{BO+i}, s[24:27], s33 offen offset:{1024*i} {'nt' if c < K1NT[1] else ''} lds")
        if c < 7:
            a("s_add_u32 s33, s33, s34")
            a("s_add_u32 s32, s32, 128")
            a("s_and_b32 s32, s32, 0x3ff")
            a("s_cselect_b32 s33, s33, 0")
    sched = K1SCHED
    for c in sched[0]: issue(c)
    a("s_lshl_b32 s49, s49, 3")
    a("s_lshl_b32 s48, s16, 1")
    a("s_add_u32 s49, s49, s48")
    a("s_lshl_b32 s48, s49, 10")
    a("v_lshlrev_b32 v6, 4, v0")
    a("v_add_u32 v7, s48, v6")
    a("v_lshlrev_b32 v8, 2, v0")
    a("v_mov_b32 v3, 0")
    srd(a, 28, 14, WS_SIZE)
    def gate_math():
        a("v_mov_b32 v1, 0")
        a("v_mov_b32 v2, 0")
        for i in range(4):
            a(f"v_dot2c_f32_bf16 v1, v{PK+i}, v{PK+8+i}")
            a(f"v_dot2c_f32_bf16 v2, v{PK+4+i}, v{PK+8+i}")
        for m in ["row_shr:1 row_mask:0xf bank_mask:0xf bound_ctrl:0", "row_shr:2 row_mask:0xf bank_mask:0xf bound_ctrl:0", "row_shr:4 row_mask:0xf bank_mask:0xf bound_ctrl:0",
                  "row_shr:8 row_mask:0xf bank_mask:0xf bound_ctrl:0", "row_bcast:15 row_mask:0xa bank_mask:0xf", "row_bcast:31 row_mask:0xc bank_mask:0xf"]:
            a(f"v_add_f32_dpp v1, v1, v1 {m}")
            a(f"v_add_f32_dpp v2, v2, v2 {m}")
        for v in (1, 2): a(f"v_mul_f32 v{v+3}, {f2u(-math.log2(math.e)):#x}, v{v}")
        for v in (4, 5): a(f"v_exp_f32 v{v}, v{v}")
        for v in (4, 5): a(f"v_add_f32 v{v}, 1.0, v{v}")
        for v in (4, 5): a(f"v_rcp_f32 v{v}, v{v}")
        a("s_lshl_b32 s49, s49, 6")
        a(f"s_add_u32 s49, s49, {GT_OFF:#x}")
        a("v_readlane_b32 s47, v4, 63")
        a("v_readlane_b32 s48, v5, 63")
        for i in range(4): a(f"v_mov_b32 v{PK+i}, s{47+(i&1)}")
        a("s_mov_b64 exec, 0xff")
        a(f"buffer_store_dwordx4 {vr(PK,4)}, v6, s[28:31], s49 offen {STF}")
        a("s_mov_b64 exec, -1")
    ops = [('c', c) for c in sched[0] for _ in range(8)]
    def allowed(tag):
        last = max(i for i, o in enumerate(ops) if o == tag)
        return len(ops) - 1 - last
    for c in range(8):
        a("s_waitcnt vmcnt(%d)" % allowed(('c', c)))
        if c == 0: stamp(a, 3)
        if c == 7: stamp(a, 4)
        a("s_barrier")
        if c == GATE_AT:
            a(f"global_load_dwordx4 {vr(PK,4)}, v7, s[4:5]")
            a(f"global_load_dwordx4 {vr(PK+4,4)}, v7, s[4:5] offset:1024")
            a(f"global_load_dwordx4 {vr(PK+8,4)}, v6, s[6:7]")
            ops += [('g', 0)] * 3
        if c + 1 < len(sched):
            for n in sched[c + 1]:
                issue(n); ops += [('c', n)] * 8
        if c == GATE_AT + 1:
            a("s_waitcnt vmcnt(%d)" % allowed(('g', 0)))
            gate_math()
            ops += [('s', 0)]
    if FUSED:
        a("s_cmp_lg_u32 s54, 4")
        a("s_cbranch_scc1 P1_initx")
        a("s_mov_b32 s48, 0")
        a.label("P1_init")
        a("global_load_dword v40, v8, s[62:63] sc1")
        a("s_waitcnt vmcnt(0)")
        a("v_cmp_eq_u32 vcc, 0, v40")
        a("s_add_u32 s48, s48, 1")
        a(f"s_cmp_ge_u32 s48, {SPIN_MAX}")
        a("s_cbranch_scc1 P1_initx")
        a("s_cbranch_vccnz P1_init")
        a.label("P1_initx")
    fin('L')
    a.label("P1_compute")
    a("v_and_b32 v7, 31, v0")
    a("v_lshrrev_b32 v8, 5, v0")
    perm23(a, 9, 7, 4, 5)
    a("s_lshl_b32 s47, s46, 13")
    a("s_cmp_eq_u32 s17, 3")
    a("s_cselect_b32 s48, s47, 0")
    a("s_cselect_b32 s47, 0, s47")
    a("s_add_u32 s48, s48, 0x4000")
    a("v_lshlrev_b32 v4, 7, v9")
    a("v_add_u32 v4, s47, v4")
    a("v_lshrrev_b32 v5, 1, v9")
    a("v_and_b32 v5, 7, v5")
    a("v_xor_b32 v5, v5, v8")
    for ks in range(4):
        a(f"v_xor_b32 v6, {2*ks}, v5")
        a(f"v_lshl_add_u32 v{AX+ks}, v6, 4, v4")
    a("v_lshrrev_b32 v4, 2, v0")
    a("v_and_b32 v4, 3, v4")
    a("v_lshl_add_u32 v5, v8, 3, v4")
    a("v_lshlrev_b32 v5, 7, v5")
    a("v_lshrrev_b32 v4, 1, v4")
    a("v_xor_b32 v4, s45, v4")
    a("v_lshl_add_u32 v5, v4, 6, v5")
    a("v_and_b32 v4, 16, v0")
    a("v_lshl_add_u32 v5, v4, 1, v5")
    a("v_and_b32 v4, 1, v0")
    a("v_lshl_add_u32 v5, v4, 4, v5")
    a("v_and_b32 v4, 2, v0")
    a("v_lshl_add_u32 v5, v4, 2, v5")
    a(f"v_add_u32 v{AB}, s48, v5")
    a("s_waitcnt lgkmcnt(0)")
    stamp(a, 2)
    srd(a, 28, 14, WS_SIZE)
    for i in range(64): a(f"v_mov_b32 v{ACC+i}, 0")
    if FUSED:
        a("s_lshl_b32 s47, s54, 8")
        a("s_or_b32 s47, s47, s2")
        a("s_cmp_ge_u32 s47, 64")
        a("s_cbranch_scc1 P1_noinit")
        a("v_lshlrev_b32 v4, 4, v0")
        a("s_lshl_b32 s47, s2, 10")
        a(f"s_add_u32 s47, s47, {FL_OFF:#x}")
        a(f"buffer_store_dwordx4 {vr(ACC,4)}, v4, s[28:31], s47 offen sc1")
        a("v_mov_b32 v5, 1")
        a("s_lshl_b32 s47, s2, 2")
        a("v_mov_b32 v4, s47")
        a("s_waitcnt vmcnt(0)")
        a("s_mov_b64 exec, 1")
        a("global_store_dword v4, v5, s[62:63] sc1")
        a("s_mov_b64 exec, -1")
        a.label("P1_noinit")
    a("s_mov_b32 s36, 0")
    a("s_cmp_lg_u32 s17, 3")
    a("s_cbranch_scc1 P1_noT")
    a("s_lshl_b32 s38, s19, 2")
    a("s_or_b32 s38, s38, s16")
    a("s_cmp_eq_u32 s38, 2")
    a("s_cselect_b32 s56, 1, 0")
    a("s_mov_b32 s57, s56")
    a(f"v_mov_b32 v{PV}, 0xbf803f80")
    a("v_lshrrev_b32 v4, 1, v7")
    a("v_cmp_eq_u32 vcc, 1, v7")
    a("v_cndmask_b32 v4, v4, 16, vcc")
    a("v_cvt_f32_u32 v4, v4")
    a(f"v_mul_f32 v4, {f2u(1/32):#x}, v4")
    a("v_and_b32 v5, 1, v7")
    a("v_cndmask_b32 v5, v5, 0, vcc")
    a("v_cvt_f32_u32 v5, v5")
    a("v_mul_f32 v5, 0x3e800000, v5")
    a("v_lshlrev_b32 v6, 3, v8")
    a("v_cvt_f32_u32 v6, v6")
    a("v_fma_f32 v5, v6, v4, v5")
    a("v_mul_f32 v6, 0x41100000, v4")
    for kk in range(2):
        for u in range(4):
            a(f"v_cos_f32 v{F[0]}, v5")
            a("v_add_f32 v5, v5, v4")
            a(f"v_cos_f32 v{F[0]+1}, v5")
            a(f"v_add_f32 v5, v5, v{6 if u == 3 else 4}")
            a(f"v_cvt_pk_bf16_f32 v{T+4*kk+u}, v{F[0]}, v{F[0]+1}")
    a.label("P1_noT")

    def reads(var, f, ks):
        if var < 2:
            x = [f"ds_read_b128 {vr(f+4*b,4)}, v{AX+ks} offset:{4096*b}" for b in range(2)]
            t = [f"ds_read_b64_tr_b16 {vr(f+8+4*j+2*q,2)}, v{AB} offset:{8192*j+2048*ks+512*q}" for j in range(2) for q in range(2)]
            return [x[0], t[0], t[1], x[1], t[2], t[3]]
        x = [f"ds_read_b128 {vr(f+4*b,4)}, v{AX+ks} offset:{4096*b}" for b in range(4)]
        t = [f"ds_read_b64_tr_b16 {vr(f+16+2*q,2)}, v{AB} offset:{2048*ks+512*q}" for q in range(2)]
        return [t[0], t[1], x[0], x[1], x[2], x[3]]
    def mf(var, f, n):
        D = ACC + 16 * n
        if var == 2: return mfma(D, f + 4 * n, f + 16)
        b, j = n & 1, n >> 1
        X, B = f + 4 * b, f + 8 + 4 * j
        return mfma(D, B, X) if var == 0 else mfma(D, X, B)
    def fixb(var, f):
        if var == 2:
            for u in range(4): a(f"v_cndmask_b32 v{f+16+u}, v{f+16+u}, v{PV}, s[56:57]")
    W = {0: [3, 5, 6, None], 1: [3, 5, 6, None], 2: [3, 5, 7, 6]}
    a("s_barrier")
    stamp(a, 3)
    if STAMP: a("s_waitcnt lgkmcnt(0)")
    a("s_cmp_eq_u32 s17, 3")
    a("s_cbranch_scc1 P1_pre2")
    for r in reads(0, F[0], 0): a(r)
    a("s_cmp_eq_u32 s17, 2")
    a("s_cbranch_scc1 P1_loop1")
    for var in (0, 1, 2):
        L = f"P1_loop{var}"
        if var == 2:
            a.label("P1_pre2")
            for r in reads(2, F[0], 0): a(r)
        a.label(L)
        for ks in range(3):
            cur, nxt = F[ks & 1], F[(ks + 1) & 1]
            rd = reads(var, nxt, ks + 1)
            if var == 2:
                a("s_waitcnt lgkmcnt(4)")
                fixb(var, cur)
            a(f"s_waitcnt lgkmcnt({W[var][0]})")
            a(mf(var, cur, 0))
            for r in rd[:3]: a(r)
            a(f"s_waitcnt lgkmcnt({W[var][1]})")
            a(mf(var, cur, 1))
            for r in rd[3:]: a(r)
            a(f"s_waitcnt lgkmcnt({W[var][2]})")
            a(mf(var, cur, 2))
            if ks == 2:
                a("s_add_u32 s36, s36, 1")
                a(f"s_cmp_lg_u32 s36, {R}")
                csel(a, 37, 0x8000, (-(R-1)*0x8000) & 0xffffffff)
                for k2 in range(4): a(f"v_add_u32 v{AX+k2}, s37, v{AX+k2}")
                a(f"v_add_u32 v{AB}, s37, v{AB}")
                a("s_cmp_eq_u32 s36, 8")
            if W[var][3] is not None: a(f"s_waitcnt lgkmcnt({W[var][3]})")
            a(mf(var, cur, 3))
        cur, nxt = F[1], F[0]
        if var == 2:
            a("s_waitcnt lgkmcnt(4)")
            fixb(var, cur)
        a(f"s_cbranch_scc1 {L}_last")
        a("s_waitcnt lgkmcnt(3)")
        a(mf(var, cur, 0))
        a("s_waitcnt lgkmcnt(0)")
        a("s_barrier")
        rd = reads(var, nxt, 0)
        for r in rd[:3]: a(r)
        a(mf(var, cur, 1))
        for r in rd[3:]: a(r)
        a(mf(var, cur, 2))
        a(mf(var, cur, 3))
        a(f"s_branch {L}")
        a.label(f"{L}_last")
        a("s_waitcnt lgkmcnt(0)")
        stamp(a, 5)
        for n in range(4): a(mf(var, cur, n))
        if var < 2:
            a("s_lshl_b32 s47, s46, 11")
            a("s_lshl_b32 s48, s45, 17")
            a("s_add_u32 s47, s47, s48")
            if var == 0:
                a(f"v_lshl_add_u32 v{ST}, v0, 4, s47")
            else:
                a("v_and_b32 v4, 15, v0")
                a("v_lshlrev_b32 v4, 4, v4")
                a("v_lshl_add_u32 v4, v8, 8, v4")
                a("v_lshrrev_b32 v5, 4, v7")
                a("v_lshl_add_u32 v4, v5, 16, v4")
                a(f"v_add_u32 v{ST}, s47, v4")
            a("s_lshl_b32 s47, s17, 21")
            a("s_lshl_b32 s48, s19, 19")
            a("s_add_u32 s47, s47, s48")
            a("s_lshl_b32 s48, s18, 12")
            a("s_add_u32 s50, s47, s48")
            a("s_add_u32 s51, s50, 0x10000")
            a("s_add_u32 s52, s50, 0x40000")
            a("s_add_u32 s53, s50, 0x50000")
            def epi(fl):
                for n in range(4):
                    b, j = n & 1, n >> 1
                    for hh in range(2):
                        d = PK + 4 * (2 * n + hh)
                        for u in range(4):
                            s = ACC + 16 * n + 8 * hh + 2 * u
                            a(f"v_cvt_pk_bf16_f32 v{d+u}, v{s}, v{s+1}")
                        if var == 0: a(f"buffer_store_dwordx4 {vr(d,4)}, v{ST}, s[28:31], s{50+2*j+hh} offen offset:{1024*b} {fl}")
                        else: a(f"buffer_store_dwordx4 {vr(d,4)}, v{ST}, s[28:31], s{50+2*j} offen offset:{512*(2*b+hh)} {fl}")
                stamp(a, 6)
                fin('C')
            epi(STF)
        else:
            a("s_lshl_b32 s47, s46, 12")
            a("s_lshl_b32 s48, s19, 10")
            a("s_add_u32 s47, s47, s48")
            a("s_lshl_b32 s48, s45, 9")
            a("s_add_u32 s47, s47, s48")
            a("v_lshlrev_b32 v4, 18, v8")
            a("v_lshl_add_u32 v4, v9, 4, v4")
            a(f"v_add_u32 v{ST}, s47, v4")
            a("s_lshl_b32 s50, s18, 13")
            a(f"s_add_u32 s50, s50, {H_OFF:#x}")
            for b in range(4):
                for u in range(8):
                    s = ACC + 16 * b + 2 * u
                    a(f"v_cvt_pk_bf16_f32 v{PK+8*b+u}, v{s}, v{s+1}")
                a(mfma(AC2 + 16 * b, T, PK + 8 * b, "0"))
                a(mfma(AC2 + 16 * b, T + 4, PK + 8 * b + 4))
            for i in range(8):
                d = ACC + 4 * i
                for pq in range(2):
                    for bp in range(2):
                        a(f"v_cvt_pk_bf16_f32 v{d+2*pq+bp}, v{AC2+32*bp+2*i+pq}, v{AC2+32*bp+16+2*i+pq}")
                a(f"buffer_store_dwordx4 {vr(d,4)}, v{ST}, s[28:31], s50 offen {STF}")
                if i < 7: a(f"s_add_u32 s50, s50, {(3 if i & 1 else 1) * 0x20000:#x}")
            stamp(a, 6)
            fin('C')

def p3_ids(a, t1=17, et=18, tau=19, tmp=20):
    a(f"s_and_b32 s{tau}, s2, 7")
    a(f"s_lshl_b32 s{tau}, s{tau}, 1")
    a(f"s_bfe_u32 s{tmp}, s2, 0x10003")
    a(f"s_or_b32 s{tau}, s{tau}, s{tmp}")
    a(f"s_sub_u32 s{tmp}, 32, s{tau}")
    a(f"s_cmp_eq_u32 s{tau}, 0")
    a(f"s_cselect_b32 s{tmp}, 16, s{tmp}")
    a("s_bitcmp1_b32 s2, 4")
    a(f"s_cselect_b32 s{t1}, s{tmp}, s{tau}")
    a(f"s_lshr_b32 s{et}, s2, 5")

WO_L, H_L = 0x10000, 0x20000
def p3_pref_setup(a, vWO, vH, t1, t2, sET, sTAU, sWO, sH, smW, smH, srdW):
    a(f"v_lshrrev_b32 v{t1}, 3, v0")
    a(f"v_lshrrev_b32 v{t2}, 1, v{t1}")
    a(f"v_and_b32 v{t2}, 1, v{t2}")
    a(f"v_lshlrev_b32 v{t2}, 2, v{t2}")
    a(f"v_and_b32 v{vWO}, 7, v0")
    a(f"v_xor_b32 v{vWO}, v{vWO}, v{t2}")
    a(f"v_lshlrev_b32 v{vWO}, 4, v{vWO}")
    a(f"v_lshl_add_u32 v{vWO}, v{t1}, 10, v{vWO}")
    a(f"s_lshl_b32 s{sWO}, s54, 16")
    a(f"s_lshl_b32 s{smW}, s{sET}, 7")
    a(f"s_add_u32 s{sWO}, s{sWO}, s{smW}")
    a(f"s_lshl_b32 s{smW}, s54, 13")
    a(f"s_add_u32 s{smW}, s{smW}, {WO_L:#x}")
    srd(a, srdW, 58, 512 * 1024)
    a(f"v_and_b32 v{t1}, 4, v0")
    a(f"v_lshlrev_b32 v{t1}, 2, v{t1}")
    a(f"v_bfe_u32 v{t2}, v0, 3, 2")
    a(f"v_lshl_add_u32 v{t1}, v{t2}, 2, v{t1}")
    a(f"v_and_b32 v{t2}, 3, v0")
    a(f"v_add_u32 v{t1}, v{t1}, v{t2}")
    a(f"s_lshl_b32 s{sH}, s{sET}, 6")
    a(f"s_bfe_u32 s{smH}, s54, 0x10001")
    a(f"s_lshl_b32 s{smH}, s{smH}, 5")
    a(f"s_add_u32 s{sH}, s{sH}, s{smH}")
    a(f"v_add_u32 v{t1}, s{sH}, v{t1}")
    a(f"v_sub_u32 v{t2}, 0x200, v{t1}")
    a(f"v_min_u32 v{t2}, v{t1}, v{t2}")
    a(f"v_and_b32 v{t1}, 0xff, v{t1}")
    a(f"s_lshr_b32 s{smH}, s54, 2")
    a(f"s_sub_u32 s{sH}, s{smH}, 1")
    a(f"v_cmp_eq_u32 vcc, s{sH}, v{t1}")
    a(f"v_lshrrev_b32 v{t1}, 5, v0")
    a(f"v_lshlrev_b32 v{t1}, 16, v{t1}")
    a(f"v_lshl_add_u32 v{vH}, v{t2}, 4, v{t1}")
    a(f"v_mov_b32 v{t1}, 0x7f000000")
    a(f"v_cndmask_b32 v{vH}, v{vH}, v{t1}, vcc")
    a(f"s_lshl_b32 s{smH}, s{smH}, 12")
    a(f"s_lshl_b32 s{sH}, s{sTAU}, 17")
    a(f"s_add_u32 s{sH}, s{sH}, s{smH}")
    a(f"s_and_b32 s{smH}, s54, 1")
    a(f"s_lshl_b32 s{smH}, s{smH}, 15")
    a(f"s_add_u32 s{sH}, s{sH}, s{smH}")
    a(f"s_add_u32 s{sH}, s{sH}, {H_OFF:#x}")
    a(f"s_lshl_b32 s{smH}, s54, 12")
    a(f"s_add_u32 s{smH}, s{smH}, {H_L:#x}")
def p3_pref_items(vWO, vH, sWO, sH, smW, smH, srdW):
    it = []
    for i in range(8):
        x = []
        if i == 0: x.append(f"s_mov_b32 m0, s{smW}")
        if i == 4: x.append(f"s_add_u32 m0, s{smW}, 0x1000")
        x.append(f"buffer_load_dwordx4 v{vWO}, {sr(srdW,4)}, s{sWO} offen offset:{1024*(i&3)} lds")
        if i < 7: x.append(f"s_add_u32 s{sWO}, s{sWO}, {(8192 + 3072) if i == 3 else 7168}")
        it.append(x)
    for i in range(4):
        x = []
        if i == 0: x.append(f"s_mov_b32 m0, s{smH}")
        x.append(f"buffer_load_dwordx4 v{vH}, s[28:31], s{sH} offen offset:{1024*i} {LDF} lds")
        if i < 3: x.append(f"s_add_u32 s{sH}, s{sH}, 7168")
        it.append(x)
    return it

def phase2(a, wait_data, ool_out):
    KF, VF, QF, SD = 8, 44, 116, 120
    SB = [136, 152, 168]
    Z, PM = 184, 200
    P = [208, 216]
    O, GX, M, NINF = 224, 240, 248, 249
    VWO, VH, VL = 250, 251, 252
    MK = 64 if not STAMP else None
    if STAMP: MKL = [4, 6, 8, 10, 12, 20, 22, 24, 26, 40, 42, 44, 50, 52, 64, 66]
    else: MKL = [64 + 2 * r for r in range(16)]
    if MAP == 1:
        a("s_bfe_u32 s17, s2, 0x20001")
        a("s_lshl_b32 s17, s17, 3")
        a("s_bfe_u32 s18, s2, 0x30003")
        a("s_or_b32 s17, s17, s18")
        a("s_and_b32 s19, s2, 1")
        a("s_lshl_b32 s19, s19, 2")
        a("s_lshr_b32 s18, s2, 6")
        a("s_or_b32 s19, s19, s18")
    else:
        a("s_and_b32 s17, s2, 7")
        a("s_lshl_b32 s17, s17, 2")
        a("s_bfe_u32 s18, s2, 0x20003")
        a("s_or_b32 s17, s17, s18")
        a("s_lshr_b32 s19, s2, 5")
    a("s_lshl_b32 s18, s19, 3")
    a("s_add_u32 s18, s18, s54")
    a(f"v_lshlrev_b32 v{VL}, 4, v0")
    a("s_lshl_b32 s32, s17, 16")
    a("s_lshl_b32 s33, s18, 10")
    a("s_add_u32 s33, s32, s33")
    a("s_cmp_eq_u32 s19, 0")
    a("s_cselect_b32 s34, 0, 0x2000")
    a("s_sub_u32 s34, s33, s34")
    a(f"s_add_u32 s35, s33, {K_OFF:#x}")
    a(f"s_add_u32 s36, s34, {K_OFF:#x}")
    a(f"s_add_u32 s37, s33, {V_OFF:#x}")
    a(f"s_add_u32 s38, s34, {V_OFF:#x}")
    a("s_lshl_b32 s39, s54, 10")
    def loads():
        a("s_add_u32 m0, s39, 0x2000")
        a(f"buffer_load_dwordx4 v{VL}, s[28:31], s35 offen {LDF} lds")
        a(f"buffer_load_dwordx4 {vr(QF,4)}, v{VL}, s[28:31], s33 offen {LDF}")
        a("s_mov_b32 m0, s39")
        a(f"buffer_load_dwordx4 v{VL}, s[28:31], s36 offen {LDF} lds")
    def vloads():
        a("s_add_u32 m0, s39, 0x6000")
        a(f"buffer_load_dwordx4 v{VL}, s[28:31], s37 offen {LDF} lds")
        a("s_add_u32 m0, s39, 0x4000")
        a(f"buffer_load_dwordx4 v{VL}, s[28:31], s38 offen {LDF} lds")
    if not FUSED:
        a("s_waitcnt lgkmcnt(0)")
        stamp(a, 2)
        srd(a, 28, 14, WS_SIZE)
        loads()
    a("s_mov_b32 s46, 0x3f803f80")
    for i in range(4): a(f"v_mov_b32 v{GX+i}, s46")
    a("s_lshl_b32 s46, s54, 11")
    a(f"v_add_u32 v6, s46, v{VL}")
    a(f"ds_write_b128 v6, {vr(GX,4)} offset:0x8000")
    a(f"ds_write_b128 v6, {vr(GX,4)} offset:0x8400")
    a("v_and_b32 v4, 31, v0")
    a("v_lshrrev_b32 v3, 5, v0")
    perm23(a, 253, 4, 5, 6)
    a("v_lshlrev_b32 v5, 3, v3")
    a("v_sub_u32 v5, v253, v5")
    for r in range(16): a(f"v_cmp_le_i32 {sr(MKL[r],2)}, {16*(r>>3)+(r&7)}, v5")
    a("v_mov_b32 v1, 0xffff")
    a(f"v_mov_b32 v{M}, 0xffff0000")
    for u in range(8):
        a(f"v_cndmask_b32 v{PM+u}, 0, v1, {sr(MKL[2*u],2)}")
        a(f"v_cndmask_b32 v{P[0]}, 0, v{M}, {sr(MKL[2*u+1],2)}")
        a(f"v_or_b32 v{PM+u}, v{PM+u}, v{P[0]}")
    for i in range(16): a(f"v_mov_b32 v{Z+i}, 0")
    a(f"v_mov_b32 v{NINF}, 0xff800000")
    a(f"v_add_u32 v254, s39, v{VL}")
    a("v_and_b32 v5, 15, v0")
    a("v_lshl_add_u32 v5, v3, 4, v5")
    a("v_lshl_add_u32 v5, v5, 4, s39")
    a("v_and_b32 v4, 16, v0")
    a("v_lshl_add_u32 v255, v4, 10, v5")
    if FUSED:
        p3_ids(a, 46, 47, 48, 49)
        p3_pref_setup(a, VWO, VH, 4, 5, 47, 48, 55, 56, 57, 16, 96 if not STAMP else 68)
        pf = p3_pref_items(VWO, VH, 55, 56, 57, 16, 96 if not STAMP else 68)
        wait_data()
        stamp(a, 7)
        loads()
        if not VLATE: vloads()
    else:
        pf = []
        vloads()
    a(f"s_mov_b32 s46, {f2u(0.25*math.log2(math.e)):#x}")
    a("s_waitcnt vmcnt(%d)" % (0 if (VLATE and FUSED) else 2))
    if VLATE and FUSED: vloads()
    stamp(a, 8)
    a("s_waitcnt lgkmcnt(0)")
    a("s_barrier")
    for j in range(9): a(f"ds_read_b128 {vr(KF+4*j,4)}, v254 offset:{(8-j)*1024}")
    if FUSED:
        a("s_cmp_lg_u32 s54, 7")
        a("s_cbranch_scc1 P2_nh")
        if MAP == 1:
            a("v_lshlrev_b32 v2, 8, v0")
            a(f"s_mov_b32 s47, {FL_OFF + 192 * 256:#x}")
        else:
            a("v_lshrrev_b32 v2, 1, v0")
            a("v_lshlrev_b32 v2, 3, v2")
            a("v_and_or_b32 v2, v0, 1, v2")
            a("v_lshlrev_b32 v2, 8, v2")
            a(f"s_mov_b32 s47, {FL_OFF + 6 * 256:#x}")
        a("buffer_load_dword v4, v2, s[28:31], s47 offen sc1")
        a.label("P2_nh")
    for i in range(4):
        a(f"v_lshlrev_b32 v{GX}, 16, v{QF+i}")
        a(f"v_and_b32 v{GX+1}, 0xffff0000, v{QF+i}")
        a(f"v_mul_f32 v{GX}, s46, v{GX}")
        a(f"v_mul_f32 v{GX+1}, s46, v{GX+1}")
        a(f"v_cvt_pk_bf16_f32 v{QF+i}, v{GX}, v{GX+1}")
    def smf(D, j, C): return mfma(D, KF + 4 * j, QF, C)
    def zswitch(j, tag):
        a(f"s_cmp_eq_u32 s18, {j-1}")
        a(f"s_cbranch_scc1 P2_o{tag}{j}")
        a.label(f"P2_z{tag}{j}")
        def emit(a, t=f"{tag}{j}"):
            a.label(f"P2_o{t}")
            a("s_nop 6")
            for i in range(16): a(f"v_mov_b32 v{Z+i}, v{NINF}")
            a("s_nop 0")
            a(f"s_branch P2_z{t}")
        ool_out.append(emit)
    def maxtile(S, first):
        if first:
            a(f"v_max3_f32 v{M}, v{S}, v{S+1}, v{S+2}")
            rest = list(range(3, 16))
        else: rest = list(range(16))
        while len(rest) >= 2:
            a(f"v_max3_f32 v{M}, v{M}, v{S+rest[0]}, v{S+rest[1]}"); rest = rest[2:]
        if rest: a(f"v_max_f32 v{M}, v{M}, v{S+rest[0]}")
    a("s_waitcnt lgkmcnt(8)")
    a(smf(SD, 0, "0"))
    order = [1, 2, 3, 4, 5, 6, 7, 0, 8]
    for j in range(1, 9):
        a(f"s_waitcnt lgkmcnt({8-j})")
        zswitch(j, "a")
        a(smf(SB[j % 3], j, vr(Z, 16)))
        if j >= 3: maxtile(SB[(j - 2) % 3], j == 3)
    a("s_waitcnt vmcnt(0)")
    if FUSED:
        a("s_cmp_lg_u32 s54, 7")
        a("s_cbranch_scc1 P2_nh2")
        poll(a, 2, 4, 47, True)
        a.label("P2_nh2")
    a("s_barrier")
    def vread(j):
        for u in range(2): a(f"ds_read_b128 {vr(VF+8*j+4*u,4)}, v255 offset:{0x4000+(8-j)*1024+512*u}")
    for j in order[:7]: vread(j)
    if not FUSED:
        a("s_cmp_ge_u32 s54, 3")
        a("s_cbranch_scc1 P2_nopf")
        a("s_mov_b32 m0, 0xe000")
        a("v_lshlrev_b32 v1, 7, v0")
        a("s_lshr_b32 s35, s2, 3")
        a("s_cmp_eq_u32 s54, 2")
        a("s_cbranch_scc1 P2_pfh")
        srd(a, 36, 58, 512 * 1024)
        a("s_lshl_b32 s35, s35, 1")
        a("s_add_u32 s35, s35, s54")
        a("s_lshl_b32 s35, s35, 13")
        a("buffer_load_dword v1, s[36:39], s35 offen lds")
        a("s_branch P2_nopf")
        a.label("P2_pfh")
        a("s_lshl_b32 s35, s35, 13")
        a("s_and_b32 s36, s2, 7")
        a("s_lshl_b32 s36, s36, 18")
        a("s_add_u32 s35, s35, s36")
        a(f"s_add_u32 s35, s35, {H_OFF:#x}")
        a("buffer_load_dword v1, s[28:31], s35 offen lds")
        a.label("P2_nopf")
    maxtile(SB[7 % 3], False)
    So = SB[8 % 3]
    for r in range(16): a(f"v_cndmask_b32 v{SD+r}, v{So+r}, v{SD+r}, {sr(MKL[r],2)}")
    maxtile(SD, False)
    a(f"v_mov_b32 v1, v{M}")
    a(f"v_permlane32_swap_b32 v1, v{M}")
    a(f"v_max_f32 v{M}, v1, v{M}")
    for i in range(16): a(f"v_sub_f32 v{Z+i}, 0, v{M}")
    def pv(j, Pb, u, first=False): return mfma(O, VF + 8 * j + 4 * u, Pb + 4 * u, "0" if first else None)
    def pfnext():
        if pf:
            for x in pf.pop(0): a(x)
    zswitch(1, "b")
    a(smf(SB[1], 1, vr(Z, 16)))
    zswitch(2, "b")
    a(smf(SB[2], 2, vr(Z, 16)))
    a("s_waitcnt lgkmcnt(0)")
    stamp(a, 9)
    for j in order[7:]: vread(j)
    for r in range(16): a(f"v_sub_f32 v{SD+r}, v{SD+r}, v{M}")
    for n, j in enumerate(range(1, 8)):
        S = SB[j % 3]; Pb = P[n & 1]
        pfnext()
        for r in range(8): a(f"v_exp_f32 v{S+r}, v{S+r}")
        if n > 0: a(pv(j - 1, P[(n - 1) & 1], 1))
        for u in range(4): a(f"v_cvt_pk_bf16_f32 v{Pb+u}, v{S+2*u}, v{S+2*u+1}")
        pfnext()
        for r in range(8, 16): a(f"v_exp_f32 v{S+r}, v{S+r}")
        a(pv(j, Pb, 0, n == 0))
        for u in range(4, 8): a(f"v_cvt_pk_bf16_f32 v{Pb+u}, v{S+2*u}, v{S+2*u+1}")
        if j + 2 <= 7:
            zswitch(j + 2, "b")
            a(smf(SB[(j + 2) % 3], j + 2, vr(Z, 16)))
    assert not pf
    for r in range(8): a(f"v_exp_f32 v{SD+r}, v{SD+r}")
    a(pv(7, P[0], 1))
    for r in range(8, 16): a(f"v_exp_f32 v{SD+r}, v{SD+r}")
    Pd, Po = P[1], SB[0]
    for u in range(8): a(f"v_cvt_pk_bf16_f32 v{Po+u}, v{SD+2*u}, v{SD+2*u+1}")
    for u in range(8): a(f"v_and_b32 v{Pd+u}, v{Po+u}, v{PM+u}")
    a("s_waitcnt lgkmcnt(0)")
    a(pv(0, Pd, 0))
    for u in range(8): a(f"v_xor_b32 v{Po+u}, v{Po+u}, v{Pd+u}")
    a(pv(0, Pd, 1))
    a(pv(8, Po, 0))
    a(pv(8, Po, 1))
    a("v_and_b32 v4, 7, v0")
    a("v_xor_b32 v5, s54, v4")
    a("v_lshlrev_b32 v5, 4, v5")
    a("v_lshl_add_u32 v5, v0, 7, v5")
    a("v_lshrrev_b32 v6, 3, v0")
    a("v_xor_b32 v4, v4, v6")
    a("s_and_b32 s32, s54, 3")
    a("s_lshl_b32 s32, s32, 3")
    a("v_add_u32 v6, s32, v6")
    perm23(a, 6, 6, 7, 2)
    a("v_lshlrev_b32 v4, 4, v4")
    a("v_lshl_add_u32 v4, v6, 16, v4")
    a("s_lshl_b32 s32, s17, 11")
    a("s_lshr_b32 s33, s19, 2")
    a("s_lshl_b32 s33, s33, 10")
    a("s_add_u32 s32, s32, s33")
    a("s_lshr_b32 s33, s54, 2")
    a("s_lshl_b32 s33, s33, 9")
    a("s_add_u32 s32, s32, s33")
    a("s_and_b32 s33, s19, 3")
    a("s_lshl_b32 s33, s33, 7")
    a("s_add_u32 s32, s32, s33")
    a(f"s_add_u32 s32, s32, {O_OFF:#x}")
    a(f"v_rcp_f32 v1, v{O+8}")
    for i in range(8): a(f"v_mul_f32 v{O+i}, v{O+i}, v1")
    for u in range(4): a(f"v_cvt_pk_bf16_f32 v{P[0]+u}, v{O+2*u}, v{O+2*u+1}")
    a(f"ds_write_b128 v5, {vr(P[0],4)} offset:0xc000")
    stamp(a, 10)
    a("s_waitcnt lgkmcnt(0)")
    a("s_barrier")
    a(f"ds_read_b128 {vr(P[0],4)}, v254 offset:0xc000")
    a("s_waitcnt lgkmcnt(0)")
    a(f"buffer_store_dwordx4 {vr(P[0],4)}, v4, s[28:31], s32 offen {STF}")

def phase3(a, wait_data, kidx):
    WA, WB = 48, 80
    Y, B = 112, 128
    GT = 12
    AO, AW, AH = 13, 14, 15
    FB = [16, 24, 32, 40]
    p3_ids(a)
    a("s_and_b32 s16, s54, 3")
    a("s_and_b32 s21, s16, 1")
    a("s_lshr_b32 s20, s16, 1")
    if not FUSED:
        a("s_waitcnt lgkmcnt(0)")
        stamp(a, 2)
        srd(a, 28, 14, WS_SIZE)
        p3_pref_setup(a, 8, 9, 4, 5, 18, 19, 55, 56, 57, 49, 32)
        for x in p3_pref_items(8, 9, 55, 56, 57, 49, 32):
            for y in x: a(y)
    a("s_cmp_lt_u32 s54, 4")
    a("s_cbranch_scc1 P3_compute")
    a("v_lshlrev_b32 v8, 4, v0")
    a("s_lshl_b32 s22, s17, 16")
    a("s_lshl_b32 s23, s16, 12")
    a("s_add_u32 s22, s22, s23")
    a(f"s_add_u32 s22, s22, {O_OFF:#x}")
    if FUSED:
        wait_data('L')
    else:
        pass
    stamp(a, 11)
    nst = 4
    for g in range(nst):
        a(f"s_add_u32 m0, s23, {g*0x4000:#x}")
        for i in range(4): a(f"buffer_load_dwordx4 v8, s[28:31], s22 offen offset:{1024*i} {LDF} lds")
        if g < nst - 1: a("s_add_u32 s22, s22, 0x4000")
    if not FUSED:
        a("s_waitcnt vmcnt(16)")
        a("s_barrier")
    for g in range(nst):
        a(f"s_waitcnt vmcnt({4*(nst-1-g)})")
        a("s_barrier")
    stamp(a, 12)
    stamp_out(a, kidx)
    a("s_endpgm")
    a.label("P3_compute")
    a("v_and_b32 v2, 31, v0")
    a("v_lshrrev_b32 v3, 5, v0")
    a("s_lshl_b32 s22, s20, 10")
    a("s_add_u32 s23, s22, s17")
    a("v_lshl_add_u32 v4, v2, 5, s23")
    a("v_lshrrev_b32 v10, 1, v4")
    a("v_lshlrev_b32 v10, 7, v10")
    a("s_and_b32 s23, s17, 1")
    a("s_lshl_b32 s23, s23, 2")
    a("v_add_u32 v10, s23, v10")
    a(f"v_lshl_add_u32 v{AO}, v0, 4, s22")
    a("v_lshrrev_b32 v1, 2, v0")
    a("v_and_b32 v1, 3, v1")
    a("v_lshl_add_u32 v7, v3, 3, v1")
    a("v_lshlrev_b32 v7, 7, v7")
    a("v_lshrrev_b32 v1, 1, v1")
    a("v_xor_b32 v1, s21, v1")
    a("v_lshl_add_u32 v7, v1, 6, v7")
    a("v_and_b32 v1, 1, v0")
    a("v_lshl_add_u32 v7, v1, 5, v7")
    a("v_and_b32 v1, 16, v0")
    a("v_add_u32 v7, v1, v7")
    a("v_and_b32 v1, 2, v0")
    a("v_lshl_add_u32 v7, v1, 2, v7")
    a(f"v_add_u32 v{AW}, {WO_L:#x}, v7")
    a("s_lshl_b32 s24, s21, 13")
    a(f"s_add_u32 s24, s24, {H_L:#x}")
    a(f"v_lshl_add_u32 v{AH}, v0, 4, s24")
    srd(a, 36, 60, 2 * MB)
    a(f"s_mov_b32 s40, {GT_OFF:#x}")
    if not FUSED: a(f"buffer_load_dword v{GT}, v10, s[28:31], s40 offen {LDF}")
    a("v_cvt_f32_u32 v5, v4")
    a("s_cmp_gt_u32 s17, 16")
    csel(a, 26, f2u(-1/2048), f2u(1/2048))
    a("s_cselect_b32 s27, 1, 0")
    a("s_lshr_b32 s24, s18, 2")
    a("s_xor_b32 s27, s27, s24")
    a("s_cselect_b32 s24, 0x80008000, 0")
    a("s_xor_b32 s25, s24, 0x80008000")
    a("v_mul_f32 v5, s26, v5")
    a("v_lshlrev_b32 v6, 5, v3")
    a("v_cvt_f32_u32 v6, v6")
    a("v_mul_f32 v6, v6, v5")
    a("v_fract_f32 v6, v6")
    for kk in range(8):
        for pr in range(2):
            a("v_cos_f32 v16, v6")
            a("v_sin_f32 v18, v6")
            a("v_add_f32 v6, v6, v5")
            a("v_cos_f32 v17, v6")
            a("v_sin_f32 v19, v6")
            a("v_add_f32 v6, v6, v5")
            a(f"v_cvt_pk_bf16_f32 v{WA+4*kk+pr}, v16, v17")
            a(f"v_cvt_pk_bf16_f32 v{WA+4*kk+2+pr}, v18, v19")
            a(f"v_xor_b32 v{WB+4*kk+2+pr}, s25, v{WA+4*kk+pr}")
            a(f"v_xor_b32 v{WB+4*kk+pr}, s24, v{WA+4*kk+2+pr}")
    a("s_cmp_lg_u32 s19, 0")
    a("s_cbranch_scc1 P3_wdone")
    a("s_cmp_eq_u32 s17, 0")
    a("s_cbranch_scc1 P3_w0")
    for W_ in (WA, WB):
        for kk in range(8):
            for pr in range(2):
                a(f"v_mov_b32 v{W_+4*kk+2+pr}, v{W_+4*kk+pr}")
                a(f"v_mov_b32 v{W_+4*kk+pr}, 0")
    a("s_branch P3_wdone")
    a.label("P3_w0")
    for W_ in (WA, WB):
        for kk in range(8):
            for pr in range(2): a(f"v_mov_b32 v{W_+4*kk+2+pr}, 0")
    a.label("P3_wdone")
    a("v_lshlrev_b32 v4, 10, v4")
    a("v_lshl_add_u32 v4, v3, 5, v4")
    a("s_lshl_b32 s22, s18, 7")
    a("s_lshl_b32 s23, s21, 6")
    a("s_add_u32 s22, s22, s23")
    def run(steps, firstflag):
        D = 3
        pend = []
        def rd(step, f):
            kind, k = step
            if kind == 'H': return [f"ds_read_b128 {vr(f,4)}, v{AH} offset:{(k>>3)*0x4000 + (k&7)*1024}"]
            return [f"ds_read_b64_tr_b16 {vr(f,2)}, v{AW} offset:{2048*k}",
                    f"ds_read_b64_tr_b16 {vr(f+2,2)}, v{AW} offset:{2048*k + 512}",
                    f"ds_read_b128 {vr(f+4,4)}, v{AO} offset:{2048*k}"]
        bn = [0]
        def issue(st):
            f = FB[bn[0] % 4]; bn[0] += 1
            r = rd(st, f)
            for x in r: a(x)
            pend.append((st, f, len(r)))
        for n in range(min(D, len(steps))): issue(steps[n])
        for n in range(len(steps)):
            if n + D < len(steps): issue(steps[n + D])
            st, f, _ = pend.pop(0)
            a("s_waitcnt lgkmcnt(%d)" % sum(x[2] for x in pend))
            if st[0] == 'H': a(mfma(Y, f, (WA if st[1] < 8 else WB) + 4 * (st[1] & 7), "0" if st[1] == 0 else None))
            else: a(mfma(B, f, f + 4, "0" if st[1] == 0 else None))
    if not FUSED:
        a("s_waitcnt vmcnt(1)")
        a("s_barrier")
    run([('H', k) for k in range(16)], True)
    if FUSED:
        wait_data('C')
        a(f"buffer_load_dword v{GT}, v10, s[28:31], s40 offen {LDF}")
    stamp(a, 11)
    if STAMP: a("s_waitcnt lgkmcnt(0)")
    for g in range(4):
        a("s_barrier")
        run([('O', 8 * g + k) for k in range(8)], g == 0)
    stamp(a, 12)
    a("s_waitcnt vmcnt(0)")
    for i in range(16): a(f"v_sub_f32 v{Y+i}, v{Y+i}, v{B+i}")
    for i in range(16): a(f"v_fma_f32 v{Y+i}, v{GT}, v{Y+i}, v{B+i}")
    for u in range(8): a(f"v_cvt_pk_bf16_f32 v{WA+u}, v{Y+2*u}, v{Y+2*u+1}")
    a(f"buffer_store_dwordx4 {vr(WA,4)}, v4, s[36:39], s22 offen {OUTF}")
    a(f"buffer_store_dwordx4 {vr(WA+4,4)}, v4, s[36:39], s22 offen offset:16 {OUTF}")
    stamp_out(a, kidx)

def gen_fused():
    a = Asm(); ool = []
    prologue(a, "F_done", (1, 2, 3))
    def fin(role): a("s_branch P2_start")
    phase1(a, fin)
    a.label("P2_start")
    a("s_waitcnt vmcnt(0)")
    a("s_barrier")
    stamp(a, 2)
    sync_flag(a, 0)
    def wait1():
        a("s_lshr_b32 s47, s18, 2")
        a("s_cmp_eq_u32 s19, 0")
        a("s_cselect_b32 s48, 0, 2")
        a("s_sub_u32 s48, s47, s48")
        for r in (47, 48):
            a(f"s_lshr_b32 s49, s{r}, 3")
            a(f"s_and_b32 s{r}, s{r}, 7")
            a(f"s_lshl_b32 s{r}, s{r}, 3")
            a(f"s_or_b32 s{r}, s{r}, s49")
        a(f"s_sub_u32 s48, s48, {128 if MAP == 1 else 4}")
        a("v_mov_b32 v4, s47")
        a("v_mov_b32 v5, s48")
        a("v_cmp_gt_u32 vcc, 3, v0")
        a("v_cndmask_b32 v4, v5, v4, vcc")
        a(f"v_lshl_add_u32 v4, v0, {6 if MAP == 1 else 1}, v4")
        if MAP == 1: a("s_and_b32 s47, s2, 6")
        else:
            a("s_lshr_b32 s47, s17, 3")
            a("s_lshl_b32 s47, s47, 6")
        a("v_add_lshl_u32 v2, v4, s47, 8")
        a(f"s_mov_b32 s47, {FL_OFF:#x}")
        a("s_mov_b64 exec, 0x1f")
        poll(a, 2, 4, 47, fl=POLL1F)
    phase2(a, wait1, ool)
    a("s_waitcnt vmcnt(0)")
    a("s_barrier")
    stamp(a, 3)
    sync_flag(a, 1)
    def wait2(role):
        if role == 'L':
            sync_wait2(a)
        a("s_barrier")
    phase3(a, wait2, 0)
    a.label("F_done")
    a("s_endpgm")
    for e in ool: e(a)
    return a.lines, 256, 102

def gen_k1():
    a = Asm(); prologue(a, "K1_done", (1,))
    def fin(role): stamp_out(a, 0); a("s_endpgm")
    phase1(a, fin)
    a.label("K1_done"); a("s_endpgm")
    return a.lines, 240, 102
def gen_k2():
    a = Asm(); ool = []; prologue(a, "K2_done", (2,))
    phase2(a, None, ool)
    stamp_out(a, 1)
    a.label("K2_done"); a("s_endpgm")
    for e in ool: e(a)
    return a.lines, 256, 102
def gen_k3():
    a = Asm(); prologue(a, "K3_done", (3,))
    phase3(a, None, 2)
    a.label("K3_done"); a("s_endpgm")
    return a.lines, 144, 102

def build(path):
    head = open(f"cdna_kernels/{NAME}.s.ref").read().split("; Override launch")[0]
    out = head
    if FUSED:
        ks = [(NAME + "_kernel", gen_fused, 512, 163840)]
        out += "; @launch grid=(256,1,1) block=(512,1,1) lds=163840\n"
    else:
        ks = [("fnet_k1_kernel", gen_k1, 512, R * 32768), ("fnet_k2_kernel", gen_k2, 512, 0xe100), ("fnet_k3_kernel", gen_k3, 512, 163840)]
        for n, _, thr, lds in ks: out += f"; @launch kernel={n} grid=(256,1,1) block=({thr},1,1) lds={lds}\n"
    out += '.amdgcn_target "amdgcn-amd-amdhsa--gfx950"\n'
    kds = []
    for n, g, _, _ in ks:
        lines, v, s = g()
        print("kernel", n, len(lines))
        lines = fix_hazards(lines, VERB)
        code, kd = kernel_text(n, lines, v, s)
        out += code; kds.append(kd)
    out += '.section .rodata,"a"\n' + "".join(kds)
    open(path, "w").write(out)

VERB = False
if __name__ == "__main__":
    for x in list(sys.argv):
        if x.startswith("-D"):
            exec(x[2:], globals()); sys.argv.remove(x)
    if "--stamp" in sys.argv: STAMP = True; sys.argv.remove("--stamp")
    build(sys.argv[1] if len(sys.argv) > 1 else f"cdna_kernels/{NAME}.s")
```

```python
import sys, math, struct
sys.path.insert(0, "work")
from asmlib import *

MB = 1 << 20
Q_OFF, K_OFF, V_OFF, H_OFF, O_OFF, GT_OFF, FL_OFF = 0, 2 * MB, 4 * MB, 6 * MB, 8 * MB, 10 * MB, 10 * MB + 262144
FB_OFF = FL_OFF + 32768
WS_SIZE = 11 * MB
NAME = "gated_mix__spectral_fnet__sliding_block__prompt"
def f2u(f): return struct.unpack("<I", struct.pack("<f", f))[0]

STAMP = False
VERB = False
K1NT = (0, 1)
OUTF = ""
SPIN_MAX = 1 << 16
GATE_AT = 3
MIDJ = 4
STANDIN = 1
FORCE_FB = 0
WO_IN_P1 = 0
CLR_AT = 4
SLEEP1 = 0
SLEEP3 = 2
WOROT = 1
OROT = 1
PROBE = 1
PRETOUCH = 0
H_L, WO_L, OTR_L = 0x10000, 0x18000, 0xc000
SLOT = [0x8000, 0x10000, 0x0]

ST_OFF = 16 * MB
SB0 = 72
TENC = None
def stamp(a, i, real=False):
    if TENC is not None:
        if i == 0:
            a(f"s_memrealtime {sr(SB0,2)}")
            a("s_waitcnt lgkmcnt(0)")
            a(f"s_mov_b32 s{SB0+2}, s{SB0}")
        elif i == TENC: a(f"s_memrealtime {sr(SB0+2,2)}")
        return
    if STAMP: a(f"{'s_memrealtime' if real else 's_memtime'} {sr(SB0+2*i,2)}")
def stamp_out(a):
    if TENC is not None:
        L = uid("Ltenc")
        a("s_waitcnt vmcnt(0) lgkmcnt(0)")
        stamp(a, 13)
        a("s_waitcnt lgkmcnt(0)")
        a(f"s_sub_u32 s70, s{SB0+2}, s{SB0}")
        a("s_lshl_b32 s70, s70, 1")
        a("s_add_u32 s70, s70, 4000")
        a("s_min_u32 s70, s70, 20000")
        a.label(L)
        a(f"s_memrealtime {sr(SB0+4,2)}")
        a("s_waitcnt lgkmcnt(0)")
        a(f"s_sub_u32 s71, s{SB0+4}, s{SB0}")
        a("s_cmp_lt_u32 s71, s70")
        a(f"s_cbranch_scc1 {L}")
        return
    if not STAMP: return
    a("s_waitcnt vmcnt(0) lgkmcnt(0)")
    stamp(a, 13); stamp(a, 14, True)
    a("s_waitcnt lgkmcnt(0)")
    for i in range(15): a(f"v_writelane_b32 v1, s{SB0+2*i}, {i}")
    a("v_lshlrev_b32 v2, 2, v0")
    a("s_lshl_b32 s70, s2, 9")
    a("s_lshl_b32 s71, s54, 6")
    a("s_add_u32 s70, s70, s71")
    a(f"s_add_u32 s70, s70, {ST_OFF:#x}")
    a("v_add_u32 v2, s70, v2")
    a("s_mov_b64 exec, 0xffff")
    a("global_store_dword v2, v1, s[14:15]")

def srd(a, d, base, size):
    a(f"s_mov_b32 s{d}, s{base}")
    a(f"s_mov_b32 s{d+1}, s{base+1}")
    a(f"s_mov_b32 s{d+2}, {size:#x}")
    a(f"s_mov_b32 s{d+3}, 0x20000")
def csel(a, d, x, y):
    a(f"s_mov_b32 s{d}, {y:#x}")
    a(f"s_cselect_b32 s{d}, {x:#x}, s{d}")
def perm23(a, dst, src, t1, t2):
    a(f"v_and_b32 v{t1}, 0x13, v{src}")
    a(f"v_and_b32 v{t2}, 4, v{src}")
    a(f"v_lshl_or_b32 v{t1}, v{t2}, 1, v{t1}")
    a(f"v_and_b32 v{t2}, 8, v{src}")
    a(f"v_lshrrev_b32 v{t2}, 1, v{t2}")
    a(f"v_or_b32 v{dst}, v{t1}, v{t2}")
def mfma(D, A, B, C=None):
    return f"v_mfma_f32_32x32x16_bf16 {vr(D,16)}, {vr(A,4)}, {vr(B,4)}, {vr(D,16) if C is None else C}"
_uid = [0]
def uid(p):
    _uid[0] += 1; return f"{p}{_uid[0]}"

def poll(a, load, vdata, first_loaded=False, sleep=0, pre=()):
    L = uid("Lpoll")
    a("s_mov_b32 s48, 0")
    if first_loaded: a(f"s_branch {L}c")
    if sleep and not first_loaded: a(f"s_branch {L}l")
    a.label(L)
    if sleep: a(f"s_sleep {sleep}")
    a.label(L + "l")
    a(load)
    a("s_waitcnt vmcnt(0)")
    a.label(L + "c")
    for x in pre: a(x)
    a(f"v_cmp_eq_u32 vcc, 0, v{vdata}")
    a("s_add_u32 s48, s48, 1")
    a(f"s_cmp_ge_u32 s48, {SPIN_MAX}")
    a(f"s_cbranch_scc1 {L}x")
    a("s_and_b64 exec, exec, vcc")
    a(f"s_cbranch_scc1 {L}")
    a.label(L + "x")
    a("s_mov_b64 exec, -1")

def p3_ids(a, t1, et, tau, tmp):
    a(f"s_and_b32 s{tau}, s2, 7")
    a(f"s_lshl_b32 s{tau}, s{tau}, 1")
    a(f"s_bfe_u32 s{tmp}, s2, 0x10003")
    a(f"s_or_b32 s{tau}, s{tau}, s{tmp}")
    a(f"s_sub_u32 s{tmp}, 32, s{tau}")
    a(f"s_cmp_eq_u32 s{tau}, 0")
    a(f"s_cselect_b32 s{tmp}, 16, s{tmp}")
    a("s_bitcmp1_b32 s2, 4")
    a(f"s_cselect_b32 s{t1}, s{tmp}, s{tau}")
    a(f"s_lshr_b32 s{et}, s2, 5")

def phase1(a):
    XO, BO, AX, AB, PV, ST = 10, 14, 18, 22, 24, 25
    F = [28, 48]
    ACC, T, PK, AC2 = 68, 132, 140, 172
    a("s_bfe_u32 s17, s2, 0x20001")
    a("s_and_b32 s18, s2, 1")
    a("s_lshl_b32 s18, s18, 3")
    a("s_bfe_u32 s39, s2, 0x30003")
    a("s_or_b32 s18, s18, s39")
    a("s_lshr_b32 s19, s2, 6")
    a("s_and_b32 s16, s54, 3")
    a("s_and_b32 s45, s16, 1")
    a("s_lshr_b32 s46, s16, 1")
    a("s_cmp_lt_u32 s54, 4")
    a("s_cbranch_scc1 P1_compute")
    a("s_lshl_b32 s40, s18, 7")
    a("s_lshl_b32 s41, s16, 5")
    a("s_add_u32 s40, s40, s41")
    a("s_lshl_b32 s41, s18, 2")
    a("s_add_u32 s41, s41, s16")
    a("s_cmp_eq_u32 s17, 3")
    a("s_cselect_b32 s40, s41, s40")
    a("s_cselect_b32 s41, 16, 10")
    csel(a, 42, 0x7fc00, 0x1c00)
    csel(a, 43, 0x400, 0xc00)
    a("s_lshl_b32 s40, s40, 10")
    a("v_lshrrev_b32 v2, 3, v0")
    a("v_and_b32 v3, 7, v0")
    a("v_lshlrev_b32 v4, s41, v2")
    a("v_add_u32 v4, s40, v4")
    a("v_lshrrev_b32 v5, 1, v2")
    a("v_xor_b32 v6, v3, v5")
    a("v_lshl_add_u32 v%d, v6, 4, v4" % XO)
    a("v_xor_b32 v6, 4, v6")
    a("v_lshl_add_u32 v%d, v6, 4, v4" % (XO + 1))
    a("v_add_u32 v%d, s42, v%d" % (XO + 1, XO + 1))
    a("s_lshl_b32 s44, s42, 1")
    a("v_add_u32 v%d, s44, v%d" % (XO + 2, XO))
    a("v_add_u32 v%d, s44, v%d" % (XO + 3, XO + 1))
    a("s_lshl_b32 s47, s17, 10")
    a("s_lshl_b32 s48, s19, 8")
    a("s_add_u32 s47, s47, s48")
    a("s_lshl_b32 s48, s46, 7")
    a("s_add_u32 s47, s47, s48")
    a("s_lshl_b32 s48, s19, 7")
    a("s_cmp_eq_u32 s17, 3")
    a("s_cselect_b32 s47, s48, s47")
    a("s_lshl_b32 s48, s45, 5")
    a("s_mul_i32 s48, s48, s43")
    a("s_add_u32 s47, s47, s48")
    a("v_mul_lo_u32 v4, v2, s43")
    a("v_add_u32 v4, s47, v4")
    a("v_and_b32 v5, 1, v5")
    a("v_lshlrev_b32 v5, 2, v5")
    a("v_xor_b32 v5, v3, v5")
    a("v_lshl_add_u32 v%d, v5, 4, v4" % BO)
    a("s_lshl_b32 s48, s43, 3")
    a("s_sub_u32 s48, s48, 0x400")
    for i in range(1, 4): a("v_add_u32 v%d, s48, v%d" % (BO + i, BO + i - 1))
    a("s_lshl_b32 s34, s43, 6")
    a("s_lshl_b32 s35, s16, 12")
    a("s_lshl_b32 s49, s17, 2")
    a("s_add_u32 s49, s49, s19")
    a("s_add_u32 s32, s49, s18")
    a("s_and_b32 s32, s32, 7")
    a("s_mul_i32 s33, s32, s34")
    a("s_lshl_b32 s32, s32, 7")
    a("s_waitcnt lgkmcnt(0)")
    srd(a, 20, 4, 2 * MB)
    a("s_cmp_eq_u32 s46, 0")
    a("s_cselect_b32 s24, s8, s10")
    a("s_cselect_b32 s25, s9, s11")
    a("s_cmp_eq_u32 s17, 3")
    a("s_cselect_b32 s24, s24, s12")
    a("s_cselect_b32 s25, s25, s13")
    csel(a, 26, 0x80000, 0x180000)
    a("s_mov_b32 s27, 0x20000")
    ops = []
    def issue(c):
        if c < 8:
            sl = SLOT[c % 3]
            a(f"s_add_u32 m0, s35, {sl:#x}")
            for i in range(4): a(f"buffer_load_dwordx4 v{XO+i}, s[20:23], s32 offen offset:{1024*i} {'nt' if c < K1NT[0] else ''} lds")
            a(f"s_add_u32 m0, s35, {sl+0x4000:#x}")
            for i in range(4): a(f"buffer_load_dwordx4 v{BO+i}, s[24:27], s33 offen offset:{1024*i} {'nt' if c < K1NT[1] else ''} lds")
            if c < 7:
                a("s_add_u32 s33, s33, s34")
                a("s_add_u32 s32, s32, 128")
                a("s_and_b32 s32, s32, 0x3ff")
                a("s_cselect_b32 s33, s33, 0")
        ops.extend([('c', c)] * 8)
    def allowed(tag):
        last = max(i for i, o in enumerate(ops) if o == tag)
        return len(ops) - 1 - last
    a("s_lshl_b32 s44, s17, 3")
    a("s_or_b32 s44, s44, s54")
    a("s_cmp_eq_u32 s44, 7")
    a("s_cselect_b32 s44, 1, 0")
    a("v_lshlrev_b32 v6, 4, v0")
    a("s_cbranch_scc0 P1_ng0")
    srd(a, 40, 6, 1024)
    a(f"s_mov_b32 m0, {WO_L:#x}")
    a("v_lshrrev_b32 v7, 5, v0")
    a("buffer_load_dwordx4 v6, s[40:43], 0 offen lds")
    a("v_lshlrev_b32 v9, 6, v7")
    a("v_add_u32 v9, s32, v9")
    a.label("P1_ng0")
    issue(0); issue(1)
    a("v_lshlrev_b32 v8, 2, v0")
    srd(a, 28, 14, WS_SIZE)
    GA, GD = 44, 52
    a("v_and_b32 v1, 31, v0")
    a("v_lshrrev_b32 v2, 1, v1")
    a("v_and_b32 v2, 7, v2")
    a("v_lshrrev_b32 v3, 5, v0")
    a("v_lshlrev_b32 v3, 2, v3")
    a("v_xor_b32 v2, v2, v3")
    a("s_lshl_b32 s47, s19, 12")
    a("v_lshl_add_u32 v1, v1, 7, s47")
    for i in range(4):
        a(f"v_xor_b32 v3, {i}, v2")
        a(f"v_lshl_add_u32 v{GA+i}, v3, 4, v1")
        a(f"v_add_u32 v{GA+4+i}, 0x10000, v{GA+i}")
    a("v_mov_b32 v1, 0")
    dbgload = "global_load_dword v40, v8, s[62:63] sc1"
    for c in range(8):
        a("s_waitcnt vmcnt(%d)" % allowed(('c', c)))
        if c == 0: stamp(a, 3)
        if c == 7: stamp(a, 4)
        a("s_barrier")
        a("s_cmp_eq_u32 s44, 0")
        a(f"s_cbranch_scc1 P1_nr{c}")
        sl = SLOT[c % 3]
        a(f"v_add_u32 v2, {WO_L:#x}, v9")
        for i in range(4):
            a(f"ds_read_b128 {vr(GD+8*i,4)}, v{GA+i+(4 if sl >= 0x10000 else 0)} offset:{sl & 0xffff}")
            a(f"ds_read_b128 {vr(GD+8*i+4,4)}, v2 offset:{16*i}")
        a("v_add_u32 v9, 0x80, v9")
        a("v_and_b32 v9, 0x3ff, v9")
        a.label(f"P1_nr{c}")
        if c == 6:
            a(dbgload); ops += [('d', 0)]
        if c + 2 < 8: issue(c + 2)
        if c == CLR_AT:
            for i in range(4): a(f"v_mov_b32 v{PK+12+i}, -1")
            a("s_lshl_b32 s47, s2, 13")
            a("s_lshl_b32 s48, s16, 11")
            a("s_add_u32 s47, s47, s48")
            a(f"s_add_u32 s47, s47, {O_OFF:#x}")
            a(f"buffer_store_dwordx4 {vr(PK+12,4)}, v6, s[28:31], s47 offen sc1")
            a(f"buffer_store_dwordx4 {vr(PK+12,4)}, v6, s[28:31], s47 offen offset:1024 sc1")
            ops += [('z', 0)] * 2
        a("s_cmp_eq_u32 s44, 0")
        a(f"s_cbranch_scc1 P1_ng{c+1}")
        for i in range(4):
            a(f"s_waitcnt lgkmcnt({6-2*i})")
            for u in range(4): a(f"v_dot2c_f32_bf16 v1, v{GD+8*i+u}, v{GD+8*i+4+u}")
        if c == 7:
            a("v_mov_b32 v2, v1")
            a("v_permlane32_swap_b32 v2, v1")
            a("v_add_f32 v1, v1, v2")
            a("v_min_f32 v1, 0x41f00000, v1")
            a(f"v_mul_f32 v1, {f2u(math.log2(math.e)):#x}, v1")
            a("v_exp_f32 v1, v1")
            a("s_lshl_b32 s47, s18, 2")
            a("s_add_u32 s47, s47, s19")
            a("s_lshl_b32 s47, s47, 7")
            a(f"s_add_u32 s47, s47, {GT_OFF:#x}")
            a("s_mov_b32 exec_hi, 0")
            a("buffer_store_dword v1, v8, s[28:31], s47 offen sc1")
            a("s_mov_b64 exec, -1")
        a.label(f"P1_ng{c+1}")
    a("s_waitcnt vmcnt(0)")
    poll(a, dbgload, 40, True)
    a("s_branch P2_start")
    a.label("P1_compute")
    a("v_and_b32 v7, 31, v0")
    a("v_lshrrev_b32 v8, 5, v0")
    perm23(a, 9, 7, 4, 5)
    a("s_lshl_b32 s47, s46, 13")
    a("s_cmp_eq_u32 s17, 3")
    a("s_cselect_b32 s48, s47, 0")
    a("s_cselect_b32 s47, 0, s47")
    a(f"s_add_u32 s48, s48, {0x4000 + SLOT[0]:#x}")
    a(f"s_add_u32 s47, s47, {SLOT[0]:#x}")
    a("v_lshlrev_b32 v4, 7, v9")
    a("v_add_u32 v4, s47, v4")
    a("v_lshrrev_b32 v5, 1, v9")
    a("v_and_b32 v5, 7, v5")
    a("v_xor_b32 v5, v5, v8")
    for ks in range(4):
        a(f"v_xor_b32 v6, {2*ks}, v5")
        a(f"v_lshl_add_u32 v{AX+ks}, v6, 4, v4")
    a("v_lshrrev_b32 v4, 2, v0")
    a("v_and_b32 v4, 3, v4")
    a("v_lshl_add_u32 v5, v8, 3, v4")
    a("v_lshlrev_b32 v5, 7, v5")
    a("v_lshrrev_b32 v4, 1, v4")
    a("v_xor_b32 v4, s45, v4")
    a("v_lshl_add_u32 v5, v4, 6, v5")
    a("v_and_b32 v4, 16, v0")
    a("v_lshl_add_u32 v5, v4, 1, v5")
    a("v_and_b32 v4, 1, v0")
    a("v_lshl_add_u32 v5, v4, 4, v5")
    a("v_and_b32 v4, 2, v0")
    a("v_lshl_add_u32 v5, v4, 2, v5")
    a(f"v_add_u32 v{AB}, s48, v5")
    for i in range(64): a(f"v_mov_b32 v{ACC+i}, 0")
    a("v_lshlrev_b32 v4, 4, v0")
    a("s_waitcnt lgkmcnt(0)")
    srd(a, 28, 14, WS_SIZE)
    a("s_lshl_b32 s48, s54, 8")
    a("s_or_b32 s48, s48, s2")
    a("s_cmp_ge_u32 s48, 64")
    a("s_cbranch_scc1 P1_noinit")
    a("s_lshl_b32 s48, s2, 9")
    a(f"s_add_u32 s48, s48, {FL_OFF:#x}")
    a("s_cmp_lg_u32 s2, 0")
    a("s_cbranch_scc1 P1_init1")
    a(f"s_mov_b32 s47, {FB_OFF:#x}")
    a(f"buffer_store_dwordx4 {vr(ACC,4)}, v4, s[28:31], s47 offen sc1")
    a.label("P1_init1")
    a("s_mov_b32 exec_hi, 0")
    a(f"buffer_store_dwordx4 {vr(ACC,4)}, v4, s[28:31], s48 offen sc1")
    a("v_mov_b32 v5, 1")
    a("s_lshl_b32 s48, s2, 2")
    a("v_mov_b32 v6, s48")
    a("s_waitcnt vmcnt(0)")
    a("s_mov_b64 exec, 1")
    a("global_store_dword v6, v5, s[62:63] sc1")
    a("s_mov_b64 exec, -1")
    a.label("P1_noinit")
    a("s_mov_b32 s36, 0")
    a("s_mov_b32 s38, 1")
    a("s_cmp_lg_u32 s17, 3")
    a("s_cbranch_scc1 P1_noT")
    a("s_lshl_b32 s47, s19, 2")
    a("s_or_b32 s47, s47, s16")
    a("s_cmp_eq_u32 s47, 2")
    a("s_cselect_b32 s56, 1, 0")
    a("s_mov_b32 s57, s56")
    a(f"v_mov_b32 v{PV}, 0xbf803f80")
    a("v_lshrrev_b32 v4, 1, v7")
    a("v_cmp_eq_u32 vcc, 1, v7")
    a("v_and_b32 v5, 1, v7")
    a("v_lshlrev_b32 v6, 3, v8")
    a("v_cndmask_b32 v4, v4, 16, vcc")
    a("v_cndmask_b32 v5, v5, 0, vcc")
    a("v_cvt_f32_u32 v4, v4")
    a(f"v_mul_f32 v4, {f2u(1/32):#x}, v4")
    a("v_cvt_f32_u32 v5, v5")
    a("v_mul_f32 v5, 0x3e800000, v5")
    a("v_cvt_f32_u32 v6, v6")
    a("v_fma_f32 v5, v6, v4, v5")
    a("v_mul_f32 v6, 0x41100000, v4")
    for kk in range(2):
        for u in range(4):
            a(f"v_cos_f32 v{F[0]}, v5")
            a("v_add_f32 v5, v5, v4")
            a(f"v_cos_f32 v{F[0]+1}, v5")
            a(f"v_add_f32 v5, v5, v{6 if u == 3 else 4}")
            a(f"v_cvt_pk_bf16_f32 v{T+4*kk+u}, v{F[0]}, v{F[0]+1}")
    a.label("P1_noT")

    def reads(var, f, ks):
        if var < 2:
            x = [f"ds_read_b128 {vr(f+4*b,4)}, v{AX+ks} offset:{4096*b}" for b in range(2)]
            t = [f"ds_read_b64_tr_b16 {vr(f+8+4*j+2*q,2)}, v{AB} offset:{8192*j+2048*ks+512*q}" for j in range(2) for q in range(2)]
            return [x[0], t[0], t[1], x[1], t[2], t[3]]
        x = [f"ds_read_b128 {vr(f+4*b,4)}, v{AX+ks} offset:{4096*b}" for b in range(4)]
        t = [f"ds_read_b64_tr_b16 {vr(f+16+2*q,2)}, v{AB} offset:{2048*ks+512*q}" for q in range(2)]
        return [t[0], t[1], x[0], x[1], x[2], x[3]]
    def mf(var, f, n):
        D = ACC + 16 * n
        if var == 2: return mfma(D, f + 4 * n, f + 16)
        b, j = n & 1, n >> 1
        X, B = f + 4 * b, f + 8 + 4 * j
        return mfma(D, B, X) if var == 0 else mfma(D, X, B)
    def fixb(var, f):
        if var == 2:
            for u in range(4): a(f"v_cndmask_b32 v{f+16+u}, v{f+16+u}, v{PV}, s[56:57]")
    W = {0: [3, 5, 6, None], 1: [3, 5, 6, None], 2: [3, 5, 7, 6]}
    if PRETOUCH:
        a("v_lshlrev_b32 v4, 7, v7")
        a("v_lshl_add_u32 v4, v8, 16, v4")
        a("s_lshl_b32 s47, s17, 21")
        a("s_lshl_b32 s48, s19, 19")
        a("s_add_u32 s47, s47, s48")
        a("s_lshl_b32 s48, s18, 12")
        a("s_add_u32 s47, s47, s48")
        a("s_lshl_b32 s48, s16, 17")
        a("s_add_u32 s47, s47, s48")
        a("v_and_b32 v5, 7, v0")
        a("v_lshlrev_b32 v5, 7, v5")
        a("v_and_b32 v6, 8, v0")
        a("v_lshl_add_u32 v5, v6, 9, v5")
        a("v_lshrrev_b32 v6, 4, v0")
        a("v_lshl_add_u32 v5, v6, 17, v5")
        a("s_lshl_b32 s48, s16, 19")
        a("s_lshl_b32 s49, s18, 13")
        a("s_add_u32 s48, s48, s49")
        a("s_lshl_b32 s49, s19, 10")
        a("s_add_u32 s48, s48, s49")
        a(f"s_add_u32 s48, s48, {H_OFF:#x}")
        a("s_cmp_eq_u32 s17, 3")
        a("s_cselect_b32 s47, s48, s47")
        a("s_cselect_b64 vcc, -1, 0")
        a("v_cndmask_b32 v4, v4, v5, vcc")
    a("s_barrier")
    if PRETOUCH: a(f"buffer_store_dword v4, v4, s[28:31], s47 offen {'sc1' if PRETOUCH == 1 else ''}")
    stamp(a, 3)
    if STAMP: a("s_waitcnt lgkmcnt(0)")
    a("s_cmp_eq_u32 s17, 3")
    a("s_cbranch_scc1 P1_pre2")
    for r in reads(0, F[0], 0): a(r)
    a("s_cmp_eq_u32 s17, 2")
    a("s_cbranch_scc1 P1_loop1")
    for var in (0, 1, 2):
        L = f"P1_loop{var}"
        if var == 2:
            a.label("P1_pre2")
            for r in reads(2, F[0], 0): a(r)
        a.label(L)
        for ks in range(3):
            cur, nxt = F[ks & 1], F[(ks + 1) & 1]
            rd = reads(var, nxt, ks + 1)
            if var == 2:
                a("s_waitcnt lgkmcnt(4)")
                fixb(var, cur)
            a(f"s_waitcnt lgkmcnt({W[var][0]})")
            a(mf(var, cur, 0))
            for r in rd[:3]: a(r)
            a(f"s_waitcnt lgkmcnt({W[var][1]})")
            a(mf(var, cur, 1))
            for r in rd[3:]: a(r)
            if ks == 0 and PRETOUCH:
                a("s_cmp_lg_u32 s36, 6")
                a(f"s_cbranch_scc1 {L}_pt")
                a("s_waitcnt vmcnt(0)")
                a.label(f"{L}_pt")
            if ks == 1:
                a("s_add_u32 s38, s38, 1")
                a("s_cmp_lg_u32 s38, 3")
                csel(a, 37, 0x8000, (-0x10000) & 0xffffffff)
                a("s_cselect_b32 s38, s38, 0")
            a(f"s_waitcnt lgkmcnt({W[var][2]})")
            a(mf(var, cur, 2))
            if ks == 2:
                a("s_add_u32 s36, s36, 1")
                for k2 in range(4): a(f"v_add_u32 v{AX+k2}, s37, v{AX+k2}")
                a(f"v_add_u32 v{AB}, s37, v{AB}")
                a("s_cmp_eq_u32 s36, 8")
            if W[var][3] is not None: a(f"s_waitcnt lgkmcnt({W[var][3]})")
            a(mf(var, cur, 3))
        cur, nxt = F[1], F[0]
        if var == 2:
            a("s_waitcnt lgkmcnt(4)")
            fixb(var, cur)
        a(f"s_cbranch_scc1 {L}_last")
        a("s_waitcnt lgkmcnt(3)")
        a(mf(var, cur, 0))
        a("s_waitcnt lgkmcnt(0)")
        a("s_barrier")
        rd = reads(var, nxt, 0)
        for r in rd[:3]: a(r)
        a(mf(var, cur, 1))
        for r in rd[3:]: a(r)
        a(mf(var, cur, 2))
        a(mf(var, cur, 3))
        a(f"s_branch {L}")
        a.label(f"{L}_last")
        a("s_waitcnt lgkmcnt(0)")
        stamp(a, 5)
        for n in range(4): a(mf(var, cur, n))
        if var < 2:
            a("s_lshl_b32 s47, s46, 11")
            a("s_lshl_b32 s48, s45, 17")
            a("s_add_u32 s47, s47, s48")
            if var == 0:
                a(f"v_lshl_add_u32 v{ST}, v0, 4, s47")
            else:
                a("v_and_b32 v4, 15, v0")
                a("v_lshlrev_b32 v4, 4, v4")
                a("v_lshl_add_u32 v4, v8, 8, v4")
                a("v_lshrrev_b32 v5, 4, v7")
                a("v_lshl_add_u32 v4, v5, 16, v4")
                a(f"v_add_u32 v{ST}, s47, v4")
            a("s_lshl_b32 s47, s17, 21")
            a("s_lshl_b32 s48, s19, 19")
            a("s_add_u32 s47, s47, s48")
            a("s_lshl_b32 s48, s18, 12")
            a("s_add_u32 s50, s47, s48")
            a("s_add_u32 s51, s50, 0x10000")
            a("s_add_u32 s52, s50, 0x40000")
            a("s_add_u32 s53, s50, 0x50000")
            for n in range(4):
                b, j = n & 1, n >> 1
                for hh in range(2):
                    d = PK + 4 * (2 * n + hh)
                    for u in range(4):
                        s = ACC + 16 * n + 8 * hh + 2 * u
                        a(f"v_cvt_pk_bf16_f32 v{d+u}, v{s}, v{s+1}")
                    if var == 0: a(f"buffer_store_dwordx4 {vr(d,4)}, v{ST}, s[28:31], s{50+2*j+hh} offen offset:{1024*b} sc1")
                    else: a(f"buffer_store_dwordx4 {vr(d,4)}, v{ST}, s[28:31], s{50+2*j} offen offset:{512*(2*b+hh)} sc1")
            stamp(a, 6)
            a("s_branch P2_start")
        else:
            a("s_lshl_b32 s47, s46, 12")
            a("s_lshl_b32 s48, s19, 10")
            a("s_add_u32 s47, s47, s48")
            a("s_lshl_b32 s48, s45, 9")
            a("s_add_u32 s47, s47, s48")
            a("v_lshlrev_b32 v4, 18, v8")
            a("v_lshl_add_u32 v4, v9, 4, v4")
            a(f"v_add_u32 v{ST}, s47, v4")
            a("s_lshl_b32 s50, s18, 13")
            a(f"s_add_u32 s50, s50, {H_OFF:#x}")
            for b in range(4):
                for u in range(8):
                    s = ACC + 16 * b + 2 * u
                    a(f"v_cvt_pk_bf16_f32 v{PK+8*b+u}, v{s}, v{s+1}")
                a(mfma(AC2 + 16 * b, T, PK + 8 * b, "0"))
                a(mfma(AC2 + 16 * b, T + 4, PK + 8 * b + 4))
            for i in range(8):
                d = ACC + 4 * i
                for pq in range(2):
                    for bp in range(2):
                        a(f"v_cvt_pk_bf16_f32 v{d+2*pq+bp}, v{AC2+32*bp+2*i+pq}, v{AC2+32*bp+16+2*i+pq}")
                a(f"buffer_store_dwordx4 {vr(d,4)}, v{ST}, s[28:31], s50 offen sc1")
                if i < 7: a(f"s_add_u32 s50, s50, {(3 if i & 1 else 1) * 0x20000:#x}")
            stamp(a, 6)

GTT = 247
def phase2(a, ool):
    KF, VF, QF, SD = 8, 44, 116, 120
    SB = [136, 152, 168]
    Z, PM = 184, 200
    P = [208, 216]
    O, GX, GQ, M, NINF = 224, 240, 246, 248, 249
    VH, VL, VQ, AK, AV, VGQ, VGT = 250, 251, 252, 253, 254, 244, 245
    VFL = 255
    if STAMP: MKL = [4, 6, 8, 10, 12, 20, 22, 24, 26, 40, 42, 44, 50, 52, 64, 66]
    else: MKL = [64 + 2 * r for r in range(16)]
    WSRD = 68 if STAMP else 96
    pf = []
    if not WO_IN_P1:
        for i in range(8):
            x = []
            if i == 0: x.append("s_mov_b32 m0, s1")
            if i == 4: x.append("s_add_u32 m0, s1, 0x1000")
            x.append(f"buffer_load_dwordx4 v7, {sr(WSRD,4)}, s0 offen offset:{1024*(i&3)} lds")
            if i < 7: x.append(f"s_add_u32 s0, s0, {(8192 + 3072) if i == 3 else 7168}")
            pf.append(x)
    def pfnext(n=1):
        for _ in range(n):
            if pf:
                for x in pf.pop(0): a(x)
    a.label("P2_start")
    a("s_and_b32 s17, s2, 7")
    a("s_lshl_b32 s17, s17, 2")
    a("s_bfe_u32 s18, s2, 0x20003")
    a("s_or_b32 s17, s17, s18")
    a("s_lshr_b32 s19, s2, 5")
    a("s_lshl_b32 s18, s19, 3")
    a("s_add_u32 s18, s18, s54")
    a(f"v_lshlrev_b32 v{VL}, 4, v0")
    a("s_lshl_b32 s32, s17, 16")
    a("s_lshl_b32 s33, s18, 10")
    a("s_add_u32 s33, s32, s33")
    a("s_cmp_eq_u32 s19, 0")
    a("s_cselect_b32 s34, 0, 0x2000")
    a("s_cselect_b32 s55, 0xff800000, 0")
    a("s_sub_u32 s34, s33, s34")
    a(f"s_add_u32 s35, s33, {K_OFF:#x}")
    a(f"s_add_u32 s36, s34, {K_OFF:#x}")
    a(f"s_add_u32 s37, s33, {V_OFF:#x}")
    a(f"s_add_u32 s38, s34, {V_OFF:#x}")
    a("s_lshl_b32 s39, s54, 10")
    a("s_mov_b32 s46, 0x3f803f80")
    for i in range(4): a(f"v_mov_b32 v{GX+i}, s46")
    a("s_lshl_b32 s46, s54, 11")
    a(f"v_add_u32 v6, s46, v{VL}")
    a(f"ds_write_b128 v6, {vr(GX,4)} offset:0x8000")
    a(f"ds_write_b128 v6, {vr(GX,4)} offset:0x8400")
    a("v_and_b32 v4, 31, v0")
    a("v_lshrrev_b32 v3, 5, v0")
    perm23(a, VQ, 4, 5, 6)
    a("v_lshlrev_b32 v5, 3, v3")
    a(f"v_sub_u32 v5, v{VQ}, v5")
    for r in range(16): a(f"v_cmp_le_i32 {sr(MKL[r],2)}, {16*(r>>3)+(r&7)}, v5")
    a("v_mov_b32 v1, 0xffff")
    a(f"v_mov_b32 v{M}, 0xffff0000")
    for u in range(8):
        a(f"v_cndmask_b32 v{PM+u}, 0, v1, {sr(MKL[2*u],2)}")
        a(f"v_cndmask_b32 v{P[0]}, 0, v{M}, {sr(MKL[2*u+1],2)}")
        a(f"v_or_b32 v{PM+u}, v{PM+u}, v{P[0]}")
    for i in range(16): a(f"v_mov_b32 v{Z+i}, {'s55' if STANDIN else '0'}")
    a(f"v_mov_b32 v{NINF}, 0xff800000")
    a(f"v_add_u32 v{AK}, s39, v{VL}")
    a("v_and_b32 v5, 15, v0")
    a("v_lshl_add_u32 v5, v3, 4, v5")
    a("v_lshl_add_u32 v5, v5, 4, s39")
    a("v_and_b32 v6, 16, v0")
    a(f"v_lshl_add_u32 v{AV}, v6, 10, v5")
    p3_ids(a, 46, 47, 48, 49)
    a("s_and_b32 s49, s54, 1")
    a("s_lshl_b32 s49, s49, 12")
    a("s_lshl_b32 s56, s46, 2")
    a("s_add_u32 s49, s49, s56")
    a(f"v_lshl_add_u32 v{VGT}, v4, 7, s49")
    a("v_and_b32 v5, 4, v0")
    a("v_lshlrev_b32 v5, 2, v5")
    a("v_bfe_u32 v6, v0, 3, 2")
    a("v_lshl_add_u32 v5, v6, 2, v5")
    a("v_and_b32 v6, 3, v0")
    a("v_add_u32 v5, v5, v6")
    a("s_lshl_b32 s56, s47, 6")
    a("s_bfe_u32 s57, s54, 0x10001")
    a("s_lshl_b32 s57, s57, 5")
    a("s_add_u32 s56, s56, s57")
    a("v_add_u32 v5, s56, v5")
    a("v_sub_u32 v6, 0x200, v5")
    a("v_min_u32 v6, v5, v6")
    a("v_and_b32 v5, 0xff, v5")
    a("s_lshr_b32 s57, s54, 2")
    a("s_sub_u32 s56, s57, 1")
    a("v_cmp_eq_u32 vcc, s56, v5")
    a("v_lshlrev_b32 v5, 16, v3")
    a(f"v_lshl_add_u32 v{VH}, v6, 4, v5")
    a("v_mov_b32 v5, 0x7f000000")
    a(f"v_cndmask_b32 v{VH}, v{VH}, v5, vcc")
    a("s_lshl_b32 s57, s57, 12")
    a("s_lshl_b32 s56, s48, 17")
    a("s_add_u32 s56, s56, s57")
    a("s_and_b32 s57, s54, 1")
    a("s_lshl_b32 s57, s57, 15")
    a("s_add_u32 s56, s56, s57")
    a(f"s_add_u32 s56, s56, {H_OFF:#x}")
    a("s_lshl_b32 s57, s54, 12")
    a(f"s_add_u32 s57, s57, {H_L:#x}")
    if not WO_IN_P1:
        a("v_lshrrev_b32 v5, 3, v0")
        a("v_bfe_u32 v6, v0, 4, 1")
        a("v_lshlrev_b32 v6, 2, v6")
        a("v_and_b32 v7, 7, v0")
        a("v_xor_b32 v7, v7, v6")
        a("v_lshlrev_b32 v7, 4, v7")
        a("v_lshl_add_u32 v7, v5, 10, v7")
        a("s_bfe_u32 s3, s2, 0x20003")
        a(f"s_mul_i32 s3, s3, {2 * WOROT}")
        a("s_add_u32 s3, s3, s54")
        a("s_and_b32 s3, s3, 7")
        a("s_lshl_b32 s0, s3, 16")
        a("s_lshl_b32 s1, s47, 7")
        a("s_add_u32 s0, s0, s1")
        a("s_lshl_b32 s1, s3, 13")
        a(f"s_add_u32 s1, s1, {WO_L:#x}")
        srd(a, WSRD, 58, 512 * 1024)
    a("s_lshr_b32 s47, s18, 2")
    a("s_cmp_eq_u32 s19, 0")
    a("s_cselect_b32 s48, 0, 2")
    a("s_sub_u32 s48, s47, s48")
    for r in (47, 48):
        a(f"s_lshr_b32 s49, s{r}, 3")
        a(f"s_and_b32 s{r}, s{r}, 7")
        a(f"s_lshl_b32 s{r}, s{r}, 3")
        a(f"s_or_b32 s{r}, s{r}, s49")
    a("s_sub_u32 s48, s48, 4")
    a("v_mov_b32 v4, s47")
    a("v_mov_b32 v5, s48")
    a("v_cmp_gt_u32 vcc, 3, v0")
    a("s_lshr_b32 s47, s17, 3")
    a("s_lshl_b32 s47, s47, 6")
    a("v_cndmask_b32 v4, v5, v4, vcc")
    a("v_lshl_add_u32 v4, v0, 1, v4")
    a("v_add_lshl_u32 v2, v4, s47, 7")
    a(f"s_mov_b32 s16, {FB_OFF:#x}")
    a(f"s_mov_b32 s46, {f2u(0.25*math.log2(math.e)):#x}")
    a("s_waitcnt vmcnt(0)")
    a("s_barrier")
    stamp(a, 2)
    a("s_cmp_lg_u32 s54, 0")
    a("s_cbranch_scc1 P2_nf")
    a("v_mov_b32 v1, 1")
    a("s_lshl_b32 s47, s2, 7")
    a(f"s_add_u32 s47, s47, {FL_OFF:#x}")
    a("s_mov_b64 exec, 1")
    a(f"buffer_store_dword v1, v{VL}, s[28:31], s47 offen sc1")
    a("s_lshl_b32 s47, s2, 2")
    a("s_add_u32 s47, s47, s16")
    a(f"buffer_store_dword v1, v{VL}, s[28:31], s47 offen sc1")
    a.label("P2_nf")
    a(f"s_mov_b32 s47, {FL_OFF:#x}")
    a("s_mov_b64 exec, 0x1f")
    poll(a, "buffer_load_dword v4, v2, s[28:31], s47 offen sc1", 4, sleep=SLEEP1)
    stamp(a, 7)
    a("s_add_u32 m0, s39, 0x2000")
    a(f"buffer_load_dwordx4 v{VL}, s[28:31], s35 offen sc1 lds")
    a(f"buffer_load_dwordx4 {vr(QF,4)}, v{VL}, s[28:31], s33 offen sc1")
    a("s_mov_b32 m0, s39")
    a(f"buffer_load_dwordx4 v{VL}, s[28:31], s36 offen sc1 lds")
    a("s_add_u32 m0, s39, 0x6000")
    a(f"buffer_load_dwordx4 v{VL}, s[28:31], s37 offen sc1 lds")
    a("s_add_u32 m0, s39, 0x4000")
    a(f"buffer_load_dwordx4 v{VL}, s[28:31], s38 offen sc1 lds")
    a("s_waitcnt vmcnt(3)")
    for i in range(4):
        a(f"v_lshlrev_b32 v{GX}, 16, v{QF+i}")
        a(f"v_and_b32 v{GX+1}, 0xffff0000, v{QF+i}")
        a(f"v_mul_f32 v{GX}, s46, v{GX}")
        a(f"v_mul_f32 v{GX+1}, s46, v{GX+1}")
        a(f"v_cvt_pk_bf16_f32 v{QF+i}, v{GX}, v{GX+1}")
    a("s_waitcnt vmcnt(2)")
    stamp(a, 8)
    a("s_waitcnt lgkmcnt(0)")
    a("s_barrier")
    korder = [0, 8, 1, 2, 3, 4, 5, 6, 7]
    for j in korder: a(f"ds_read_b128 {vr(KF+4*j,4)}, v{AK} offset:{(8-j)*1024}")
    def smf(D, j, C): return mfma(D, KF + 4 * j, QF, C)
    def zswitch(a, j, tag):
        a(f"s_cmp_eq_u32 s18, {j-1}")
        a(f"s_cbranch_scc1 P2_o{tag}{j}")
        a.label(f"P2_z{tag}{j}")
        def emit(a, t=f"{tag}{j}"):
            a.label(f"P2_o{t}")
            a("s_nop 6")
            for i in range(16): a(f"v_mov_b32 v{Z+i}, v{NINF}")
            a("s_nop 0")
            a(f"s_branch P2_z{t}")
        ool.append(emit)
    def maxtile(a, S, first):
        if first:
            a(f"v_max3_f32 v{M}, v{S}, v{S+1}, v{S+2}")
            rest = list(range(3, 16))
        else: rest = list(range(16))
        while len(rest) >= 2:
            a(f"v_max3_f32 v{M}, v{M}, v{S+rest[0]}, v{S+rest[1]}"); rest = rest[2:]
        if rest: a(f"v_max_f32 v{M}, v{M}, v{S+rest[0]}")
    def vread(j):
        for u in range(2): a(f"ds_read_b128 {vr(VF+8*j+4*u,4)}, v{AV} offset:{0x4000+(8-j)*1024+512*u}")
    def pv(j, Pb, u, first=False): return mfma(O, VF + 8 * j + 4 * u, Pb + 4 * u, "0" if first else None)
    def truemax(a, tag):
        for i in range(16): a(f"v_mov_b32 v{Z+i}, 0")
        for j in range(1, 8):
            zswitch(a, j, tag)
            a(smf(SB[j % 3], j, vr(Z, 16)))
            if j >= 2: maxtile(a, SB[(j - 1) % 3], j == 2)
        maxtile(a, SB[7 % 3], False)
        for i in range(16): a(f"v_mov_b32 v{Z+i}, s55")
    fbload = f"buffer_load_dwordx4 {vr(GX,4)}, v{VL}, s[28:31], s16 offen sc1"
    def core(a, main, havemax, tag):
        if main: a("s_waitcnt lgkmcnt(8)")
        a(smf(SD, 0, "0"))
        if main: a("s_waitcnt lgkmcnt(7)")
        a(smf(SB[0], 8, vr(Z, 16)))
        for r in range(16): a(f"v_cndmask_b32 v{SD+r}, v{SB[0]+r}, v{SD+r}, {sr(MKL[r],2)}")
        maxtile(a, SD, not havemax)
        a(f"v_mov_b32 v1, v{M}")
        a(f"v_permlane32_swap_b32 v1, v{M}")
        a(f"v_max_f32 v{M}, v1, v{M}")
        for i in range(16): a(f"v_sub_f32 v{Z+i}, 0, v{M}")
        if main: a("s_waitcnt lgkmcnt(0)")
        zswitch(a, 1, tag)
        a(smf(SB[1], 1, vr(Z, 16)))
        zswitch(a, 2, tag)
        a(smf(SB[2], 2, vr(Z, 16)))
        if main:
            a("s_waitcnt vmcnt(0)")
            a("s_barrier")
            stamp(a, 9)
            if STAMP: a("s_waitcnt lgkmcnt(0)")
            for j in korder[:7]: vread(j)
            pfnext(2)
        for r in range(16): a(f"v_sub_f32 v{SD+r}, v{SD+r}, v{M}")
        for r in range(16): a(f"v_exp_f32 v{SD+r}, v{SD+r}")
        Pd, Po = P[0], P[1]
        for u in range(8): a(f"v_cvt_pk_bf16_f32 v{Po+u}, v{SD+2*u}, v{SD+2*u+1}")
        for u in range(8): a(f"v_and_b32 v{Pd+u}, v{Po+u}, v{PM+u}")
        if main:
            a("s_waitcnt lgkmcnt(0)")
            for j in korder[7:]: vread(j)
            pfnext(2)
        a(pv(0, Pd, 0, True))
        for u in range(8): a(f"v_xor_b32 v{Po+u}, v{Po+u}, v{Pd+u}")
        a(pv(0, Pd, 1))
        pend = [pv(8, Po, 0), pv(8, Po, 1)]
        for n, j in enumerate(range(1, 8)):
            S = SB[j % 3]; Pb = P[n & 1]
            if main and j == MIDJ:
                a(fbload)
            if main and j == 6: a("s_waitcnt lgkmcnt(0)")
            for r in range(4): a(f"v_exp_f32 v{S+r}, v{S+r}")
            a(pend.pop(0))
            for r in range(4, 8): a(f"v_exp_f32 v{S+r}, v{S+r}")
            if pend: a(pend.pop(0))
            for u in range(4): a(f"v_cvt_pk_bf16_f32 v{Pb+u}, v{S+2*u}, v{S+2*u+1}")
            if main: pfnext(2)
            for r in range(8, 16): a(f"v_exp_f32 v{S+r}, v{S+r}")
            a(pv(j, Pb, 0))
            for u in range(4, 8): a(f"v_cvt_pk_bf16_f32 v{Pb+u}, v{S+2*u}, v{S+2*u+1}")
            pend.append(pv(j, Pb, 1))
            if j + 2 <= 7:
                zswitch(a, j + 2, tag)
                a(smf(SB[(j + 2) % 3], j + 2, vr(Z, 16)))
            if main and j == MIDJ:
                a("s_waitcnt vmcnt(0)")
                poll(a, fbload, GX, True, sleep=4, pre=[f"v_and_b32 v{GX}, v{GX}, v{GX+1}", f"v_and_b32 v{GX+2}, v{GX+2}, v{GX+3}", f"v_and_b32 v{GX}, v{GX}, v{GX+2}"])
                a("s_mov_b32 m0, s57")
                a(f"s_mov_b32 s47, {GT_OFF:#x}")
                a(f"buffer_load_dword v{GTT}, v{VGT}, s[28:31], s47 offen sc1")
                for i in range(4):
                    a(f"buffer_load_dwordx4 v{VH}, s[28:31], s56 offen offset:{1024*i} sc1 lds")
                    if i < 3: a("s_add_u32 s56, s56, 7168")
        a(pend.pop(0))
    if not STANDIN:
        a("s_waitcnt lgkmcnt(0)")
        truemax(a, "m")
    core(a, True, not STANDIN, "b")
    a("v_and_b32 v4, 7, v0")
    a("v_xor_b32 v5, s54, v4")
    a("v_lshlrev_b32 v5, 4, v5")
    a("v_lshl_add_u32 v5, v0, 7, v5")
    a("v_lshrrev_b32 v6, 3, v0")
    a("v_xor_b32 v4, v4, v6")
    a("s_and_b32 s32, s54, 3")
    a("s_lshl_b32 s32, s32, 3")
    a("v_add_u32 v6, s32, v6")
    perm23(a, 6, 6, 7, 2)
    a("v_lshlrev_b32 v4, 4, v4")
    a("v_lshl_add_u32 v4, v6, 16, v4")
    a("s_lshl_b32 s32, s17, 11")
    a("s_lshr_b32 s33, s19, 2")
    a("s_lshl_b32 s33, s33, 10")
    a("s_add_u32 s32, s32, s33")
    a("s_lshr_b32 s33, s54, 2")
    a("s_lshl_b32 s33, s33, 9")
    a("s_add_u32 s32, s32, s33")
    a("s_and_b32 s33, s19, 3")
    a("s_lshl_b32 s33, s33, 7")
    a("s_add_u32 s32, s32, s33")
    a(f"s_add_u32 s32, s32, {O_OFF:#x}")
    if STANDIN:
        a(f"v_add_f32 v1, |v{O}|, |v{O+1}|")
        a(f"v_add_f32 v2, |v{O+2}|, |v{O+3}|")
        for i in (4, 6):
            a(f"v_add_f32 v1, v1, |v{O+i}|")
            a(f"v_add_f32 v2, v2, |v{O+i+1}|")
        a(f"s_mov_b32 s33, {f2u(2.0**-60):#x}")
        a(f"v_add_f32 v1, v1, v2")
        a(f"v_fma_f32 v1, v1, s33, v{O+8}")
        a(f"v_cmp_ngt_f32 vcc, {f2u(2.0**40):#x}, v1")
        if FORCE_FB: a("s_mov_b64 vcc, -1")
        a("s_cbranch_vccnz P2_fb")
        a.label("P2_fbret")
        def emit(a):
            a.label("P2_fb")
            truemax(a, "f")
            core(a, False, True, "g")
            a("s_nop 11")
            a("s_branch P2_fbret")
        ool.insert(0, emit)
    a(f"v_rcp_f32 v1, v{O+8}")
    for i in range(8): a(f"v_mul_f32 v{O+i}, v{O+i}, v1")
    for u in range(4): a(f"v_cvt_pk_bf16_f32 v{P[0]+u}, v{O+2*u}, v{O+2*u+1}")
    a(f"v_min_u32 v{P[0]}, -2, v{P[0]}")
    a(f"v_min_u32 v{P[0]+3}, -2, v{P[0]+3}")
    a(f"ds_write_b128 v5, {vr(P[0],4)} offset:{OTR_L:#x}")
    stamp(a, 10)
    a("s_waitcnt vmcnt(0) lgkmcnt(0)")
    a("s_barrier")
    a(f"ds_read_b128 {vr(P[0],4)}, v{AK} offset:{OTR_L:#x}")
    a("s_waitcnt lgkmcnt(0)")
    a(f"buffer_store_dwordx4 {vr(P[0],4)}, v4, s[28:31], s32 offen sc1")

def phase3(a):
    OF, WOF, HF, WF, AC = 8, 40, 104, 136, 152
    RD = 184
    p3_ids(a, 17, 18, 19, 20)
    a("s_and_b32 s20, s54, 1")
    a("s_lshr_b32 s21, s54, 1")
    a("s_lshl_b32 s22, s17, 16")
    a("s_lshl_b32 s23, s21, 14")
    a("s_add_u32 s22, s22, s23")
    a("s_lshl_b32 s24, s20, 10")
    a("s_add_u32 s22, s22, s24")
    a(f"s_add_u32 s22, s22, {O_OFF:#x}")
    a(f"s_mul_i32 s16, s18, {2048 * OROT}")
    a("s_or_b32 s22, s22, s16")
    OS = [32, 33, 34, 35, 44, 45, 46, 47]
    a("v_lshlrev_b32 v7, 4, v0")
    def oload(k): return f"buffer_load_dwordx4 {vr(OF+4*k,4)}, v7, s[28:31], s{OS[k]} offen sc1"
    for k in range(8):
        a(f"s_xor_b32 s{OS[k]}, s22, {2048*k}")
        a(oload(k))
    stamp(a, 11)
    if STAMP: a("s_waitcnt lgkmcnt(0)")
    a("s_and_b32 s25, s21, 1")
    a("s_lshr_b32 s26, s21, 1")
    a("s_lshl_b32 s27, s25, 8")
    a("v_xor_b32 v1, s27, v7")
    a("s_lshl_b32 s27, s21, 11")
    a(f"s_add_u32 s27, s27, {H_L:#x}")
    a("s_lshl_b32 s36, s26, 13")
    a("s_add_u32 s37, s27, s36")
    a("s_xor_b32 s36, s36, 0x2000")
    a("s_add_u32 s36, s27, s36")
    a("v_add_u32 v2, s37, v1")
    a("v_add_u32 v1, s36, v1")
    for p in range(2):
        for i in range(2):
            for iw in range(2):
                a(f"ds_read_b128 {vr(HF+16*p+8*i+4*iw,4)}, v{2-iw} offset:{0x4000*p + 1024*i}")
    a("v_and_b32 v2, 31, v0")
    a("v_lshrrev_b32 v3, 5, v0")
    a("s_add_u32 s23, s24, s17")
    a("v_lshl_add_u32 v4, v2, 5, s23")
    a("v_cvt_f32_u32 v5, v4")
    a("s_cmp_gt_u32 s17, 16")
    csel(a, 36, f2u(-1/2048), f2u(1/2048))
    a("s_cselect_b32 s37, 1, 0")
    a("s_lshr_b32 s38, s18, 2")
    a("s_xor_b32 s37, s37, s38")
    a("s_cselect_b32 s38, 0x80008000, 0")
    a("s_xor_b32 s39, s38, 0x80008000")
    a("v_mul_f32 v5, s36, v5")
    a("s_lshl_b32 s36, s21, 3")
    a("v_lshl_add_u32 v6, v3, 5, s36")
    a("v_cvt_f32_u32 v6, v6")
    a("v_mul_f32 v6, v6, v5")
    a("v_fract_f32 v6, v6")
    WA, WB = WF, WF + 8
    for i in range(2):
        for pr in range(2):
            a(f"v_cos_f32 v{RD}, v6")
            a(f"v_sin_f32 v{RD+2}, v6")
            a("v_add_f32 v6, v6, v5")
            a(f"v_cos_f32 v{RD+1}, v6")
            a(f"v_sin_f32 v{RD+3}, v6")
            a("v_add_f32 v6, v6, v5")
            for q in range(4): a(f"v_mul_f32 v{RD+q}, v{GTT}, v{RD+q}")
            a(f"v_cvt_pk_bf16_f32 v{WA+4*i+pr}, v{RD}, v{RD+1}")
            a(f"v_cvt_pk_bf16_f32 v{WA+4*i+2+pr}, v{RD+2}, v{RD+3}")
            a(f"v_xor_b32 v{WB+4*i+2+pr}, s39, v{WA+4*i+pr}")
            a(f"v_xor_b32 v{WB+4*i+pr}, s38, v{WA+4*i+2+pr}")
    a("s_cmp_lg_u32 s19, 0")
    a("s_cbranch_scc1 P3_wdone")
    a("s_cmp_eq_u32 s17, 0")
    a("s_cselect_b64 vcc, -1, 0")
    for q in range(4):
        for pr in range(2):
            a(f"v_cndmask_b32 v{WF+4*q+2+pr}, v{WF+4*q+pr}, 0, vcc")
            a(f"v_cndmask_b32 v{WF+4*q+pr}, 0, v{WF+4*q+pr}, vcc")
    a.label("P3_wdone")
    a("v_lshrrev_b32 v1, 2, v0")
    a("v_and_b32 v1, 3, v1")
    a("v_lshl_add_u32 v5, v3, 3, v1")
    a("v_lshlrev_b32 v5, 7, v5")
    a("v_lshrrev_b32 v1, 1, v1")
    a("v_xor_b32 v1, s26, v1")
    a("v_lshl_add_u32 v5, v1, 6, v5")
    a("v_and_b32 v1, 1, v0")
    a("v_lshl_add_u32 v5, v1, 5, v5")
    a("s_lshl_b32 s36, s25, 4")
    a("v_and_b32 v1, 16, v0")
    a("v_xor_b32 v1, s36, v1")
    a("v_add_u32 v5, v1, v5")
    a("v_and_b32 v1, 2, v0")
    a("v_lshl_add_u32 v5, v1, 2, v5")
    a("s_lshl_b32 s36, s21, 14")
    a(f"s_add_u32 s36, s36, {WO_L:#x}")
    a("s_or_b32 s36, s36, s16")
    a("v_add_u32 v5, s36, v5")
    for k in range(8):
        for iw in range(2): a(f"v_xor_b32 v{RD+2*k+iw}, {2048*k + 64*iw}, v5")
    a("s_waitcnt lgkmcnt(0)")
    wr = []
    for k in range(8):
        for iw in range(2):
            for q in range(2):
                wr.append(f"ds_read_b64_tr_b16 {vr(WOF+8*k+4*iw+2*q,2)}, v{RD+2*k+iw} offset:{512*q}")
    n = 0
    for p in range(2):
        for i in range(2):
            for iw in range(2):
                a(mfma(AC + 16 * iw, HF + 16 * p + 8 * i + 4 * iw, WF + 8 * p + 4 * i, "0" if (p == 0 and i == 0) else None))
                for x in wr[4*n:4*n+4]: a(x)
                n += 1
                if n in (3, 6): a("s_waitcnt lgkmcnt(3)")
    a("v_lshlrev_b32 v4, 10, v4")
    a("v_lshl_add_u32 v4, v3, 5, v4")
    a("s_lshl_b32 s22, s18, 7")
    a("s_lshl_b32 s23, s26, 6")
    a("s_add_u32 s22, s22, s23")
    a("s_lshl_b32 s23, s25, 4")
    a("s_add_u32 s22, s22, s23")
    srd(a, 40, 60, 2 * MB)
    a("s_lshl_b32 s23, s20, 2")
    for i in range(4):
        a(f"s_xor_b32 s36, s21, {i}")
        a("s_add_u32 s36, s36, s23")
        a("s_mul_i32 s36, s36, 0x1800")
        a(f"v_add_u32 v{(1, 2, 3, 5)[i]}, s36, v7")
    a(f"v_add_f32 v{GTT}, 1.0, v{GTT}")
    a(f"v_rcp_f32 v{GTT}, v{GTT}")
    a("s_mov_b32 s36, 0")
    a("s_mov_b32 s48, 0")
    a("s_waitcnt lgkmcnt(0)")
    MS = [4, 6, 8, 10, 12, 24, 26, 38]
    a.label("P3_sweep")
    a("s_mov_b32 s37, s36")
    a("s_waitcnt vmcnt(0)")
    for k in range(8):
        o = OF + 4 * k
        a(f"s_bitcmp1_b32 s36, {k}")
        a(f"s_cbranch_scc1 P3_s{k}")
        a(f"v_max_u32 v6, v{o}, v{o+3}")
        a("v_cmp_eq_u32 vcc, -1, v6")
        a(f"s_mov_b64 {sr(MS[k],2)}, vcc")
        a(f"s_cbranch_vccnz P3_s{k}")
        a(mfma(AC, WOF + 8 * k, o))
        a(mfma(AC + 16, WOF + 8 * k + 4, o))
        a(f"s_bitset1_b32 s36, {k}")
        a.label(f"P3_s{k}")
    a("s_cmp_eq_u32 s36, 0xff")
    a("s_cbranch_scc1 P3_red")
    a("s_add_u32 s48, s48, 1")
    a(f"s_cmp_ge_u32 s48, {SPIN_MAX}")
    a("s_cbranch_scc1 P3_red")
    if PROBE:
        a("s_ff0_i32_b32 s49, s36")
        a("s_lshl_b32 s49, 1, s49")
        a("s_not_b32 s49, s49")
        a("s_cmp_lg_u32 s37, s36")
        a("s_cselect_b32 s37, s36, s49")
    else: a("s_mov_b32 s37, s36")
    if SLEEP3: a(f"s_sleep {SLEEP3}")
    for k in range(8):
        a(f"s_bitcmp1_b32 s37, {k}")
        a(f"s_cbranch_scc1 P3_r{k}")
        a(f"s_mov_b64 exec, {sr(MS[k],2)}")
        a(oload(k))
        a.label(f"P3_r{k}")
    a("s_mov_b64 exec, -1")
    a("s_branch P3_sweep")
    a.label("P3_red")
    stamp(a, 12)
    for i in (1, 2, 3):
        for hf in range(2):
            a(f"ds_write_b128 v{(1, 2, 3, 5)[i]}, {vr(AC+8*i+4*hf,4)} offset:{2048*(i-1)+1024*hf}")
    a("s_waitcnt lgkmcnt(0)")
    a("s_barrier")
    for i in range(6): a(f"ds_read_b128 {vr(RD+4*i,4)}, v1 offset:{1024*i}")
    for i in range(3):
        a(f"s_waitcnt lgkmcnt({4-2*i})")
        for r in range(8): a(f"v_add_f32 v{AC+r}, v{AC+r}, v{RD+8*i+r}")
    for r in range(8): a(f"v_mul_f32 v{AC+r}, v{GTT}, v{AC+r}")
    for u in range(4): a(f"v_cvt_pk_bf16_f32 v{RD+u}, v{AC+2*u}, v{AC+2*u+1}")
    a(f"buffer_store_dwordx4 {vr(RD,4)}, v4, s[40:43], s22 offen {OUTF}")
    stamp_out(a)

def gen():
    a = Asm(); ool = []
    a("s_cmp_ge_u32 s2, 256")
    a("s_cbranch_scc1 F_done")
    stamp(a, 0, True); stamp(a, 1)
    a("s_load_dwordx2 s[4:5], s[0:1], 0")
    a("s_load_dwordx4 s[8:11], s[0:1], 24")
    a("s_load_dwordx2 s[12:13], s[0:1], 48")
    a("s_load_dwordx2 s[58:59], s[0:1], 56")
    a("s_load_dwordx2 s[6:7], s[0:1], 64")
    a("s_load_dwordx4 s[60:63], s[0:1], 72")
    a("s_load_dwordx2 s[14:15], s[0:1], 88")
    a("v_lshrrev_b32 v1, 6, v0")
    a("v_and_b32 v0, 63, v0")
    a("v_readfirstlane_b32 s54, v1")
    phase1(a)
    phase2(a, ool)
    phase3(a)
    a.label("F_done")
    a("s_endpgm")
    i = 0
    while i < len(ool):
        ool[i](a); i += 1
    return a.lines

def build(path):
    head = open(f"cdna_kernels/{NAME}.s.ref").read().split("; Override launch")[0]
    out = head + "; @launch grid=(256,1,1) block=(512,1,1) lds=163840\n" + '.amdgcn_target "amdgcn-amd-amdhsa--gfx950"\n'
    lines = gen()
    lines = fix_hazards(lines, VERB)
    print("lines", len(lines))
    code, kd = kernel_text(NAME + "_kernel", lines, 256, 102)
    open(path, "w").write(out + code + '.section .rodata,"a"\n' + kd)

if __name__ == "__main__":
    for x in list(sys.argv):
        if x.startswith("-D"):
            exec(x[2:], globals()); sys.argv.remove(x)
    if "--stamp" in sys.argv: STAMP = True; sys.argv.remove("--stamp")
    build(sys.argv[1] if len(sys.argv) > 1 else f"cdna_kernels/{NAME}.s")
```

```python
import sys, math, struct
sys.path.insert(0, "work")
from asmlib import *

MB = 1 << 20
Q_OFF, K_OFF, V_OFF, H_OFF, O_OFF, GT_OFF, FL_OFF = 0, 2 * MB, 4 * MB, 6 * MB, 8 * MB, 10 * MB, 10 * MB + 262144
FB_OFF = FL_OFF + 32768
WS_SIZE = 11 * MB
NAME = "gated_mix__spectral_fnet__sliding_block__prompt"
def f2u(f): return struct.unpack("<I", struct.pack("<f", f))[0]

STAMP = False
VERB = False
K1NT = (0, 1)
OUTF = ""
SPIN_MAX = 1 << 16
GATE_AT = 3
MIDJ = 5
STANDIN = 1
FORCE_FB = 0
WO_IN_P1 = 0
CLR_AT = 4
SLEEP1 = 0
SLEEP3 = 2
WOROT = 1
OROT = 1
PROBE = 1
PRETOUCH = 0
TLBW = 1
WOPF = 1
EARLYJ = 1
H_L, WO_L, OTR_L = 0x10000, 0x18000, 0xc000
SLOT = [0x8000, 0x10000, 0x0]

ST_OFF = 16 * MB
SB0 = 72
TENC = None
def stamp(a, i, real=False):
    if TENC is not None:
        if i == 0:
            a(f"s_memrealtime {sr(SB0,2)}")
            a("s_waitcnt lgkmcnt(0)")
            a(f"s_mov_b32 s{SB0+2}, s{SB0}")
        elif i == TENC: a(f"s_memrealtime {sr(SB0+2,2)}")
        return
    if STAMP: a(f"{'s_memrealtime' if real else 's_memtime'} {sr(SB0+2*i,2)}")
def stamp_out(a):
    if TENC is not None:
        L = uid("Ltenc")
        a("s_waitcnt vmcnt(0) lgkmcnt(0)")
        stamp(a, 13)
        a("s_waitcnt lgkmcnt(0)")
        a(f"s_sub_u32 s70, s{SB0+2}, s{SB0}")
        a("s_lshl_b32 s70, s70, 1")
        a("s_add_u32 s70, s70, 4000")
        a("s_min_u32 s70, s70, 20000")
        a.label(L)
        a(f"s_memrealtime {sr(SB0+4,2)}")
        a("s_waitcnt lgkmcnt(0)")
        a(f"s_sub_u32 s71, s{SB0+4}, s{SB0}")
        a("s_cmp_lt_u32 s71, s70")
        a(f"s_cbranch_scc1 {L}")
        return
    if not STAMP: return
    a("s_waitcnt vmcnt(0) lgkmcnt(0)")
    stamp(a, 13); stamp(a, 14, True)
    a("s_waitcnt lgkmcnt(0)")
    for i in range(15): a(f"v_writelane_b32 v1, s{SB0+2*i}, {i}")
    a("v_lshlrev_b32 v2, 2, v0")
    a("s_lshl_b32 s70, s2, 9")
    a("s_lshl_b32 s71, s54, 6")
    a("s_add_u32 s70, s70, s71")
    a(f"s_add_u32 s70, s70, {ST_OFF:#x}")
    a("v_add_u32 v2, s70, v2")
    a("s_mov_b64 exec, 0xffff")
    a("global_store_dword v2, v1, s[14:15]")

def srd(a, d, base, size):
    a(f"s_mov_b32 s{d}, s{base}")
    a(f"s_mov_b32 s{d+1}, s{base+1}")
    a(f"s_mov_b32 s{d+2}, {size:#x}")
    a(f"s_mov_b32 s{d+3}, 0x20000")
def csel(a, d, x, y):
    a(f"s_mov_b32 s{d}, {y:#x}")
    a(f"s_cselect_b32 s{d}, {x:#x}, s{d}")
def perm23(a, dst, src, t1, t2):
    a(f"v_and_b32 v{t1}, 0x13, v{src}")
    a(f"v_and_b32 v{t2}, 4, v{src}")
    a(f"v_lshl_or_b32 v{t1}, v{t2}, 1, v{t1}")
    a(f"v_and_b32 v{t2}, 8, v{src}")
    a(f"v_lshrrev_b32 v{t2}, 1, v{t2}")
    a(f"v_or_b32 v{dst}, v{t1}, v{t2}")
def mfma(D, A, B, C=None):
    return f"v_mfma_f32_32x32x16_bf16 {vr(D,16)}, {vr(A,4)}, {vr(B,4)}, {vr(D,16) if C is None else C}"
_uid = [0]
def uid(p):
    _uid[0] += 1; return f"{p}{_uid[0]}"

def poll(a, load, vdata, first_loaded=False, sleep=0, pre=()):
    L = uid("Lpoll")
    a("s_mov_b32 s48, 0")
    if first_loaded: a(f"s_branch {L}c")
    if sleep and not first_loaded: a(f"s_branch {L}l")
    a.label(L)
    if sleep: a(f"s_sleep {sleep}")
    a.label(L + "l")
    a(load)
    a("s_waitcnt vmcnt(0)")
    a.label(L + "c")
    for x in pre: a(x)
    a(f"v_cmp_eq_u32 vcc, 0, v{vdata}")
    a("s_add_u32 s48, s48, 1")
    a(f"s_cmp_ge_u32 s48, {SPIN_MAX}")
    a(f"s_cbranch_scc1 {L}x")
    a("s_and_b64 exec, exec, vcc")
    a(f"s_cbranch_scc1 {L}")
    a.label(L + "x")
    a("s_mov_b64 exec, -1")

def p3_ids(a, t1, et, tau, tmp):
    a(f"s_and_b32 s{tau}, s2, 7")
    a(f"s_lshl_b32 s{tau}, s{tau}, 1")
    a(f"s_bfe_u32 s{tmp}, s2, 0x10003")
    a(f"s_or_b32 s{tau}, s{tau}, s{tmp}")
    a(f"s_sub_u32 s{tmp}, 32, s{tau}")
    a(f"s_cmp_eq_u32 s{tau}, 0")
    a(f"s_cselect_b32 s{tmp}, 16, s{tmp}")
    a("s_bitcmp1_b32 s2, 4")
    a(f"s_cselect_b32 s{t1}, s{tmp}, s{tau}")
    a(f"s_lshr_b32 s{et}, s2, 5")

def phase1(a):
    XO, BO, AX, AB, PV, ST = 10, 14, 18, 22, 24, 25
    F = [28, 48]
    ACC, T, PK, AC2 = 68, 132, 140, 172
    a("s_bfe_u32 s17, s2, 0x20001")
    a("s_and_b32 s18, s2, 1")
    a("s_lshl_b32 s18, s18, 3")
    a("s_bfe_u32 s39, s2, 0x30003")
    a("s_or_b32 s18, s18, s39")
    a("s_lshr_b32 s19, s2, 6")
    a("s_and_b32 s16, s54, 3")
    a("s_and_b32 s45, s16, 1")
    a("s_lshr_b32 s46, s16, 1")
    a("s_cmp_lt_u32 s54, 4")
    a("s_cbranch_scc1 P1_compute")
    a("s_lshl_b32 s40, s18, 7")
    a("s_lshl_b32 s41, s16, 5")
    a("s_add_u32 s40, s40, s41")
    a("s_lshl_b32 s41, s18, 2")
    a("s_add_u32 s41, s41, s16")
    a("s_cmp_eq_u32 s17, 3")
    a("s_cselect_b32 s40, s41, s40")
    a("s_cselect_b32 s41, 16, 10")
    csel(a, 42, 0x7fc00, 0x1c00)
    csel(a, 43, 0x400, 0xc00)
    a("s_lshl_b32 s40, s40, 10")
    a("v_lshrrev_b32 v2, 3, v0")
    a("v_and_b32 v3, 7, v0")
    a("v_lshlrev_b32 v4, s41, v2")
    a("v_add_u32 v4, s40, v4")
    a("v_lshrrev_b32 v5, 1, v2")
    a("v_xor_b32 v6, v3, v5")
    a("v_lshl_add_u32 v%d, v6, 4, v4" % XO)
    a("v_xor_b32 v6, 4, v6")
    a("v_lshl_add_u32 v%d, v6, 4, v4" % (XO + 1))
    a("v_add_u32 v%d, s42, v%d" % (XO + 1, XO + 1))
    a("s_lshl_b32 s44, s42, 1")
    a("v_add_u32 v%d, s44, v%d" % (XO + 2, XO))
    a("v_add_u32 v%d, s44, v%d" % (XO + 3, XO + 1))
    a("s_lshl_b32 s47, s17, 10")
    a("s_lshl_b32 s48, s19, 8")
    a("s_add_u32 s47, s47, s48")
    a("s_lshl_b32 s48, s46, 7")
    a("s_add_u32 s47, s47, s48")
    a("s_lshl_b32 s48, s19, 7")
    a("s_cmp_eq_u32 s17, 3")
    a("s_cselect_b32 s47, s48, s47")
    a("s_lshl_b32 s48, s45, 5")
    a("s_mul_i32 s48, s48, s43")
    a("s_add_u32 s47, s47, s48")
    a("v_mul_lo_u32 v4, v2, s43")
    a("v_add_u32 v4, s47, v4")
    a("v_and_b32 v5, 1, v5")
    a("v_lshlrev_b32 v5, 2, v5")
    a("v_xor_b32 v5, v3, v5")
    a("v_lshl_add_u32 v%d, v5, 4, v4" % BO)
    a("s_lshl_b32 s48, s43, 3")
    a("s_sub_u32 s48, s48, 0x400")
    for i in range(1, 4): a("v_add_u32 v%d, s48, v%d" % (BO + i, BO + i - 1))
    a("s_lshl_b32 s34, s43, 6")
    a("s_lshl_b32 s35, s16, 12")
    a("s_lshl_b32 s49, s17, 2")
    a("s_add_u32 s49, s49, s19")
    a("s_add_u32 s32, s49, s18")
    a("s_and_b32 s32, s32, 7")
    a("s_mul_i32 s33, s32, s34")
    a("s_lshl_b32 s32, s32, 7")
    a("s_waitcnt lgkmcnt(0)")
    if TENC is not None: stamp(a, 20)
    srd(a, 20, 4, 2 * MB)
    a("s_cmp_eq_u32 s46, 0")
    a("s_cselect_b32 s24, s8, s10")
    a("s_cselect_b32 s25, s9, s11")
    a("s_cmp_eq_u32 s17, 3")
    a("s_cselect_b32 s24, s24, s12")
    a("s_cselect_b32 s25, s25, s13")
    csel(a, 26, 0x80000, 0x180000)
    a("s_mov_b32 s27, 0x20000")
    ops = []
    def issue(c):
        if c < 8:
            sl = SLOT[c % 3]
            a(f"s_add_u32 m0, s35, {sl:#x}")
            for i in range(4): a(f"buffer_load_dwordx4 v{XO+i}, s[20:23], s32 offen offset:{1024*i} {'nt' if c < K1NT[0] else ''} lds")
            a(f"s_add_u32 m0, s35, {sl+0x4000:#x}")
            for i in range(4): a(f"buffer_load_dwordx4 v{BO+i}, s[24:27], s33 offen offset:{1024*i} {'nt' if c < K1NT[1] else ''} lds")
            if c < 7:
                a("s_add_u32 s33, s33, s34")
                a("s_add_u32 s32, s32, 128")
                a("s_and_b32 s32, s32, 0x3ff")
                a("s_cselect_b32 s33, s33, 0")
        ops.extend([('c', c)] * 8)
    def allowed(tag):
        last = max(i for i, o in enumerate(ops) if o == tag)
        return len(ops) - 1 - last
    a("s_lshl_b32 s44, s17, 3")
    a("s_or_b32 s44, s44, s54")
    a("s_cmp_eq_u32 s44, 7")
    a("s_cselect_b32 s44, 1, 0")
    a("v_lshlrev_b32 v6, 4, v0")
    a("s_cbranch_scc0 P1_ng0")
    srd(a, 40, 6, 1024)
    a(f"s_mov_b32 m0, {WO_L:#x}")
    a("v_lshrrev_b32 v7, 5, v0")
    a("buffer_load_dwordx4 v6, s[40:43], 0 offen lds")
    a("v_lshlrev_b32 v9, 6, v7")
    a("v_add_u32 v9, s32, v9")
    a.label("P1_ng0")
    issue(0); issue(1)
    a("v_lshlrev_b32 v8, 2, v0")
    srd(a, 28, 14, WS_SIZE)
    GA, GD = 44, 52
    a("v_and_b32 v1, 31, v0")
    a("v_lshrrev_b32 v2, 1, v1")
    a("v_and_b32 v2, 7, v2")
    a("v_lshrrev_b32 v3, 5, v0")
    a("v_lshlrev_b32 v3, 2, v3")
    a("v_xor_b32 v2, v2, v3")
    a("s_lshl_b32 s47, s19, 12")
    a("v_lshl_add_u32 v1, v1, 7, s47")
    for i in range(4):
        a(f"v_xor_b32 v3, {i}, v2")
        a(f"v_lshl_add_u32 v{GA+i}, v3, 4, v1")
        a(f"v_add_u32 v{GA+4+i}, 0x10000, v{GA+i}")
    a("v_mov_b32 v1, 0")
    dbgload = "global_load_dword v40, v8, s[62:63] sc1"
    for c in range(8):
        a("s_waitcnt vmcnt(%d)" % allowed(('c', c)))
        if c == 0: stamp(a, 3)
        if c == 7: stamp(a, 4)
        a("s_barrier")
        a("s_cmp_eq_u32 s44, 0")
        a(f"s_cbranch_scc1 P1_nr{c}")
        sl = SLOT[c % 3]
        a(f"v_add_u32 v2, {WO_L:#x}, v9")
        for i in range(4):
            a(f"ds_read_b128 {vr(GD+8*i,4)}, v{GA+i+(4 if sl >= 0x10000 else 0)} offset:{sl & 0xffff}")
            a(f"ds_read_b128 {vr(GD+8*i+4,4)}, v2 offset:{16*i}")
        a("v_add_u32 v9, 0x80, v9")
        a("v_and_b32 v9, 0x3ff, v9")
        a.label(f"P1_nr{c}")
        if c == 6:
            a(dbgload); ops += [('d', 0)]
        if c + 2 < 8: issue(c + 2)
        if c == CLR_AT:
            for i in range(4): a(f"v_mov_b32 v{PK+12+i}, -1")
            a("s_lshl_b32 s47, s2, 13")
            a("s_lshl_b32 s48, s16, 11")
            a("s_add_u32 s47, s47, s48")
            a(f"s_add_u32 s47, s47, {O_OFF:#x}")
            a(f"buffer_store_dwordx4 {vr(PK+12,4)}, v6, s[28:31], s47 offen sc1")
            a(f"buffer_store_dwordx4 {vr(PK+12,4)}, v6, s[28:31], s47 offen offset:1024 sc1")
            ops += [('z', 0)] * 2
        a("s_cmp_eq_u32 s44, 0")
        a(f"s_cbranch_scc1 P1_ng{c+1}")
        for i in range(4):
            a(f"s_waitcnt lgkmcnt({6-2*i})")
            for u in range(4): a(f"v_dot2c_f32_bf16 v1, v{GD+8*i+u}, v{GD+8*i+4+u}")
        if c == 7:
            a("v_mov_b32 v2, v1")
            a("v_permlane32_swap_b32 v2, v1")
            a("v_add_f32 v1, v1, v2")
            a("v_min_f32 v1, 0x41f00000, v1")
            a(f"v_mul_f32 v1, {f2u(math.log2(math.e)):#x}, v1")
            a("v_exp_f32 v1, v1")
            a("s_lshl_b32 s47, s18, 2")
            a("s_add_u32 s47, s47, s19")
            a("s_lshl_b32 s47, s47, 7")
            a(f"s_add_u32 s47, s47, {GT_OFF:#x}")
            a("s_mov_b32 exec_hi, 0")
            a("buffer_store_dword v1, v8, s[28:31], s47 offen sc1")
            a("s_mov_b64 exec, -1")
        a.label(f"P1_ng{c+1}")
    a("s_waitcnt vmcnt(0)")
    poll(a, dbgload, 40, True)
    if WOPF:
        a("s_cmp_ge_u32 s16, 2")
        a("s_cbranch_scc1 P2_start")
        a("s_lshr_b32 s47, s2, 3")
        a("s_lshl_b32 s47, s47, 1")
        a("s_add_u32 s47, s47, s16")
        a("s_lshl_b32 s47, s47, 13")
        a("v_lshl_add_u32 v1, v0, 7, s47")
        a("global_load_dword v41, v1, s[58:59]")
    a("s_branch P2_start")
    a.label("P1_compute")
    a("v_and_b32 v7, 31, v0")
    a("v_lshrrev_b32 v8, 5, v0")
    perm23(a, 9, 7, 4, 5)
    a("s_lshl_b32 s47, s46, 13")
    a("s_cmp_eq_u32 s17, 3")
    a("s_cselect_b32 s48, s47, 0")
    a("s_cselect_b32 s47, 0, s47")
    a(f"s_add_u32 s48, s48, {0x4000 + SLOT[0]:#x}")
    a(f"s_add_u32 s47, s47, {SLOT[0]:#x}")
    a("v_lshlrev_b32 v4, 7, v9")
    a("v_add_u32 v4, s47, v4")
    a("v_lshrrev_b32 v5, 1, v9")
    a("v_and_b32 v5, 7, v5")
    a("v_xor_b32 v5, v5, v8")
    for ks in range(4):
        a(f"v_xor_b32 v6, {2*ks}, v5")
        a(f"v_lshl_add_u32 v{AX+ks}, v6, 4, v4")
    a("v_lshrrev_b32 v4, 2, v0")
    a("v_and_b32 v4, 3, v4")
    a("v_lshl_add_u32 v5, v8, 3, v4")
    a("v_lshlrev_b32 v5, 7, v5")
    a("v_lshrrev_b32 v4, 1, v4")
    a("v_xor_b32 v4, s45, v4")
    a("v_lshl_add_u32 v5, v4, 6, v5")
    a("v_and_b32 v4, 16, v0")
    a("v_lshl_add_u32 v5, v4, 1, v5")
    a("v_and_b32 v4, 1, v0")
    a("v_lshl_add_u32 v5, v4, 4, v5")
    a("v_and_b32 v4, 2, v0")
    a("v_lshl_add_u32 v5, v4, 2, v5")
    a(f"v_add_u32 v{AB}, s48, v5")
    for i in range(64): a(f"v_mov_b32 v{ACC+i}, 0")
    a("v_lshlrev_b32 v4, 4, v0")
    a("s_waitcnt lgkmcnt(0)")
    srd(a, 28, 14, WS_SIZE)
    if TLBW:
        a("s_cmp_lg_u32 s54, 1")
        a("s_cbranch_scc1 P1_notlb")
        a("v_lshlrev_b32 v5, 20, v0")
        a("v_mov_b32 v6, 0")
        a("s_mov_b64 exec, 0x7ff")
        a(f"buffer_load_dword v{AC2}, v5, s[28:31], 0 offen")
        a("s_mov_b64 exec, 1")
        a(f"global_load_dword v{AC2+1}, v6, s[58:59]")
        a(f"global_load_dword v{AC2+2}, v6, s[60:61]")
        a("s_mov_b64 exec, -1")
        a("s_waitcnt vmcnt(0)")
        a.label("P1_notlb")
    a("s_lshl_b32 s48, s54, 8")
    a("s_or_b32 s48, s48, s2")
    a("s_cmp_ge_u32 s48, 64")
    a("s_cbranch_scc1 P1_noinit")
    a("s_lshl_b32 s48, s2, 9")
    a(f"s_add_u32 s48, s48, {FL_OFF:#x}")
    a("s_cmp_lg_u32 s2, 0")
    a("s_cbranch_scc1 P1_init1")
    a(f"s_mov_b32 s47, {FB_OFF:#x}")
    a(f"buffer_store_dwordx4 {vr(ACC,4)}, v4, s[28:31], s47 offen sc1")
    a(f"buffer_store_dwordx4 {vr(ACC,4)}, v4, s[28:31], s47 offen offset:1024 sc1")
    a.label("P1_init1")
    a("s_mov_b32 exec_hi, 0")
    a(f"buffer_store_dwordx4 {vr(ACC,4)}, v4, s[28:31], s48 offen sc1")
    a("v_mov_b32 v5, 1")
    a("s_lshl_b32 s48, s2, 2")
    a("v_mov_b32 v6, s48")
    a("s_waitcnt vmcnt(0)")
    a("s_mov_b64 exec, 1")
    a("global_store_dword v6, v5, s[62:63] sc1")
    a("s_mov_b64 exec, -1")
    a.label("P1_noinit")
    a("s_mov_b32 s36, 0")
    a("s_mov_b32 s38, 1")
    a("s_cmp_lg_u32 s17, 3")
    a("s_cbranch_scc1 P1_noT")
    a("s_lshl_b32 s47, s19, 2")
    a("s_or_b32 s47, s47, s16")
    a("s_cmp_eq_u32 s47, 2")
    a("s_cselect_b32 s56, 1, 0")
    a("s_mov_b32 s57, s56")
    a(f"v_mov_b32 v{PV}, 0xbf803f80")
    a("v_lshrrev_b32 v4, 1, v7")
    a("v_cmp_eq_u32 vcc, 1, v7")
    a("v_and_b32 v5, 1, v7")
    a("v_lshlrev_b32 v6, 3, v8")
    a("v_cndmask_b32 v4, v4, 16, vcc")
    a("v_cndmask_b32 v5, v5, 0, vcc")
    a("v_cvt_f32_u32 v4, v4")
    a(f"v_mul_f32 v4, {f2u(1/32):#x}, v4")
    a("v_cvt_f32_u32 v5, v5")
    a("v_mul_f32 v5, 0x3e800000, v5")
    a("v_cvt_f32_u32 v6, v6")
    a("v_fma_f32 v5, v6, v4, v5")
    a("v_mul_f32 v6, 0x41100000, v4")
    for kk in range(2):
        for u in range(4):
            a(f"v_cos_f32 v{F[0]}, v5")
            a("v_add_f32 v5, v5, v4")
            a(f"v_cos_f32 v{F[0]+1}, v5")
            a(f"v_add_f32 v5, v5, v{6 if u == 3 else 4}")
            a(f"v_cvt_pk_bf16_f32 v{T+4*kk+u}, v{F[0]}, v{F[0]+1}")
    a.label("P1_noT")

    def reads(var, f, ks):
        if var < 2:
            x = [f"ds_read_b128 {vr(f+4*b,4)}, v{AX+ks} offset:{4096*b}" for b in range(2)]
            t = [f"ds_read_b64_tr_b16 {vr(f+8+4*j+2*q,2)}, v{AB} offset:{8192*j+2048*ks+512*q}" for j in range(2) for q in range(2)]
            return [x[0], t[0], t[1], x[1], t[2], t[3]]
        x = [f"ds_read_b128 {vr(f+4*b,4)}, v{AX+ks} offset:{4096*b}" for b in range(4)]
        t = [f"ds_read_b64_tr_b16 {vr(f+16+2*q,2)}, v{AB} offset:{2048*ks+512*q}" for q in range(2)]
        return [t[0], t[1], x[0], x[1], x[2], x[3]]
    def mf(var, f, n):
        D = ACC + 16 * n
        if var == 2: return mfma(D, f + 4 * n, f + 16)
        b, j = n & 1, n >> 1
        X, B = f + 4 * b, f + 8 + 4 * j
        return mfma(D, B, X) if var == 0 else mfma(D, X, B)
    def fixb(var, f):
        if var == 2:
            for u in range(4): a(f"v_cndmask_b32 v{f+16+u}, v{f+16+u}, v{PV}, s[56:57]")
    W = {0: [3, 5, 6, None], 1: [3, 5, 6, None], 2: [3, 5, 7, 6]}
    if PRETOUCH:
        a("v_lshlrev_b32 v4, 7, v7")
        a("v_lshl_add_u32 v4, v8, 16, v4")
        a("s_lshl_b32 s47, s17, 21")
        a("s_lshl_b32 s48, s19, 19")
        a("s_add_u32 s47, s47, s48")
        a("s_lshl_b32 s48, s18, 12")
        a("s_add_u32 s47, s47, s48")
        a("s_lshl_b32 s48, s16, 17")
        a("s_add_u32 s47, s47, s48")
        a("v_and_b32 v5, 7, v0")
        a("v_lshlrev_b32 v5, 7, v5")
        a("v_and_b32 v6, 8, v0")
        a("v_lshl_add_u32 v5, v6, 9, v5")
        a("v_lshrrev_b32 v6, 4, v0")
        a("v_lshl_add_u32 v5, v6, 17, v5")
        a("s_lshl_b32 s48, s16, 19")
        a("s_lshl_b32 s49, s18, 13")
        a("s_add_u32 s48, s48, s49")
        a("s_lshl_b32 s49, s19, 10")
        a("s_add_u32 s48, s48, s49")
        a(f"s_add_u32 s48, s48, {H_OFF:#x}")
        a("s_cmp_eq_u32 s17, 3")
        a("s_cselect_b32 s47, s48, s47")
        a("s_cselect_b64 vcc, -1, 0")
        a("v_cndmask_b32 v4, v4, v5, vcc")
    a("s_barrier")
    if PRETOUCH: a(f"buffer_store_dword v4, v4, s[28:31], s47 offen {'sc1' if PRETOUCH == 1 else ''}")
    stamp(a, 3)
    if STAMP: a("s_waitcnt lgkmcnt(0)")
    a("s_cmp_eq_u32 s17, 3")
    a("s_cbranch_scc1 P1_pre2")
    for r in reads(0, F[0], 0): a(r)
    a("s_cmp_eq_u32 s17, 2")
    a("s_cbranch_scc1 P1_loop1")
    for var in (0, 1, 2):
        L = f"P1_loop{var}"
        if var == 2:
            a.label("P1_pre2")
            for r in reads(2, F[0], 0): a(r)
        a.label(L)
        for ks in range(3):
            cur, nxt = F[ks & 1], F[(ks + 1) & 1]
            rd = reads(var, nxt, ks + 1)
            if var == 2:
                a("s_waitcnt lgkmcnt(4)")
                fixb(var, cur)
            a(f"s_waitcnt lgkmcnt({W[var][0]})")
            a(mf(var, cur, 0))
            for r in rd[:3]: a(r)
            a(f"s_waitcnt lgkmcnt({W[var][1]})")
            a(mf(var, cur, 1))
            for r in rd[3:]: a(r)
            if ks == 0 and PRETOUCH:
                a("s_cmp_lg_u32 s36, 6")
                a(f"s_cbranch_scc1 {L}_pt")
                a("s_waitcnt vmcnt(0)")
                a.label(f"{L}_pt")
            if ks == 1:
                a("s_add_u32 s38, s38, 1")
                a("s_cmp_lg_u32 s38, 3")
                csel(a, 37, 0x8000, (-0x10000) & 0xffffffff)
                a("s_cselect_b32 s38, s38, 0")
            a(f"s_waitcnt lgkmcnt({W[var][2]})")
            a(mf(var, cur, 2))
            if ks == 2:
                a("s_add_u32 s36, s36, 1")
                for k2 in range(4): a(f"v_add_u32 v{AX+k2}, s37, v{AX+k2}")
                a(f"v_add_u32 v{AB}, s37, v{AB}")
                a("s_cmp_eq_u32 s36, 8")
            if W[var][3] is not None: a(f"s_waitcnt lgkmcnt({W[var][3]})")
            a(mf(var, cur, 3))
        cur, nxt = F[1], F[0]
        if var == 2:
            a("s_waitcnt lgkmcnt(4)")
            fixb(var, cur)
        a(f"s_cbranch_scc1 {L}_last")
        a("s_waitcnt lgkmcnt(3)")
        a(mf(var, cur, 0))
        a("s_waitcnt lgkmcnt(0)")
        a("s_barrier")
        rd = reads(var, nxt, 0)
        for r in rd[:3]: a(r)
        a(mf(var, cur, 1))
        for r in rd[3:]: a(r)
        a(mf(var, cur, 2))
        a(mf(var, cur, 3))
        a(f"s_branch {L}")
        a.label(f"{L}_last")
        a("s_waitcnt lgkmcnt(0)")
        stamp(a, 5)
        for n in range(4): a(mf(var, cur, n))
        if var < 2:
            a("s_lshl_b32 s47, s46, 11")
            a("s_lshl_b32 s48, s45, 17")
            a("s_add_u32 s47, s47, s48")
            if var == 0:
                a(f"v_lshl_add_u32 v{ST}, v0, 4, s47")
            else:
                a("v_and_b32 v4, 15, v0")
                a("v_lshlrev_b32 v4, 4, v4")
                a("v_lshl_add_u32 v4, v8, 8, v4")
                a("v_lshrrev_b32 v5, 4, v7")
                a("v_lshl_add_u32 v4, v5, 16, v4")
                a(f"v_add_u32 v{ST}, s47, v4")
            a("s_lshl_b32 s47, s17, 21")
            a("s_lshl_b32 s48, s19, 19")
            a("s_add_u32 s47, s47, s48")
            a("s_lshl_b32 s48, s18, 12")
            a("s_add_u32 s50, s47, s48")
            a("s_add_u32 s51, s50, 0x10000")
            a("s_add_u32 s52, s50, 0x40000")
            a("s_add_u32 s53, s50, 0x50000")
            for n in range(4):
                b, j = n & 1, n >> 1
                for hh in range(2):
                    d = PK + 4 * (2 * n + hh)
                    for u in range(4):
                        s = ACC + 16 * n + 8 * hh + 2 * u
                        a(f"v_cvt_pk_bf16_f32 v{d+u}, v{s}, v{s+1}")
                    if var == 0: a(f"buffer_store_dwordx4 {vr(d,4)}, v{ST}, s[28:31], s{50+2*j+hh} offen offset:{1024*b} sc1")
                    else: a(f"buffer_store_dwordx4 {vr(d,4)}, v{ST}, s[28:31], s{50+2*j} offen offset:{512*(2*b+hh)} sc1")
            stamp(a, 6)
            a("s_branch P2_start")
        else:
            a("s_lshl_b32 s47, s46, 12")
            a("s_lshl_b32 s48, s19, 10")
            a("s_add_u32 s47, s47, s48")
            a("s_lshl_b32 s48, s45, 9")
            a("s_add_u32 s47, s47, s48")
            a("v_lshlrev_b32 v4, 18, v8")
            a("v_lshl_add_u32 v4, v9, 4, v4")
            a(f"v_add_u32 v{ST}, s47, v4")
            a("s_lshl_b32 s50, s18, 13")
            a(f"s_add_u32 s50, s50, {H_OFF:#x}")
            for b in range(4):
                for u in range(8):
                    s = ACC + 16 * b + 2 * u
                    a(f"v_cvt_pk_bf16_f32 v{PK+8*b+u}, v{s}, v{s+1}")
                a(mfma(AC2 + 16 * b, T, PK + 8 * b, "0"))
                a(mfma(AC2 + 16 * b, T + 4, PK + 8 * b + 4))
            for i in range(8):
                d = ACC + 4 * i
                for pq in range(2):
                    for bp in range(2):
                        a(f"v_cvt_pk_bf16_f32 v{d+2*pq+bp}, v{AC2+32*bp+2*i+pq}, v{AC2+32*bp+16+2*i+pq}")
                a(f"buffer_store_dwordx4 {vr(d,4)}, v{ST}, s[28:31], s50 offen sc1")
                if i < 7: a(f"s_add_u32 s50, s50, {(3 if i & 1 else 1) * 0x20000:#x}")
            stamp(a, 6)

GTT = 247
def phase2(a, ool):
    KF, VF, QF, SD = 8, 44, 116, 120
    SB = [136, 152, 168]
    Z, PM = 184, 200
    P = [208, 216]
    O, GX, GQ, M, NINF = 224, 240, 246, 248, 249
    VH, VL, VQ, AK, AV, VGQ, VGT = 250, 251, 252, 253, 254, 244, 245
    VFL = 255
    if STAMP: MKL = [4, 6, 8, 10, 12, 20, 22, 24, 26, 40, 42, 44, 50, 52, 64, 66]
    else: MKL = [64 + 2 * r for r in range(16)]
    WSRD = 68 if STAMP else 96
    pf = []
    if not WO_IN_P1:
        for i in range(8):
            x = []
            if i == 0: x.append("s_mov_b32 m0, s1")
            if i == 4: x.append("s_add_u32 m0, s1, 0x1000")
            x.append(f"buffer_load_dwordx4 v7, {sr(WSRD,4)}, s0 offen offset:{1024*(i&3)} lds")
            if i < 7: x.append(f"s_add_u32 s0, s0, {(8192 + 3072) if i == 3 else 7168}")
            pf.append(x)
    def pfnext(n=1):
        for _ in range(n):
            if pf:
                for x in pf.pop(0): a(x)
    a.label("P2_start")
    a("s_and_b32 s17, s2, 7")
    a("s_lshl_b32 s17, s17, 2")
    a("s_bfe_u32 s18, s2, 0x20003")
    a("s_or_b32 s17, s17, s18")
    a("s_lshr_b32 s19, s2, 5")
    a("s_lshl_b32 s18, s19, 3")
    a("s_add_u32 s18, s18, s54")
    a(f"v_lshlrev_b32 v{VL}, 4, v0")
    a("s_lshl_b32 s32, s17, 16")
    a("s_lshl_b32 s33, s18, 10")
    a("s_add_u32 s33, s32, s33")
    a("s_cmp_eq_u32 s19, 0")
    a("s_cselect_b32 s34, 0, 0x2000")
    a("s_cselect_b32 s55, 0xff800000, 0")
    a("s_sub_u32 s34, s33, s34")
    a(f"s_add_u32 s35, s33, {K_OFF:#x}")
    a(f"s_add_u32 s36, s34, {K_OFF:#x}")
    a(f"s_add_u32 s37, s33, {V_OFF:#x}")
    a(f"s_add_u32 s38, s34, {V_OFF:#x}")
    a("s_lshl_b32 s39, s54, 10")
    a("s_mov_b32 s46, 0x3f803f80")
    for i in range(4): a(f"v_mov_b32 v{GX+i}, s46")
    a("s_lshl_b32 s46, s54, 11")
    a(f"v_add_u32 v6, s46, v{VL}")
    a(f"ds_write_b128 v6, {vr(GX,4)} offset:0x8000")
    a(f"ds_write_b128 v6, {vr(GX,4)} offset:0x8400")
    a("v_and_b32 v4, 31, v0")
    a("v_lshrrev_b32 v3, 5, v0")
    perm23(a, VQ, 4, 5, 6)
    a("v_lshlrev_b32 v5, 3, v3")
    a(f"v_sub_u32 v5, v{VQ}, v5")
    for r in range(16): a(f"v_cmp_le_i32 {sr(MKL[r],2)}, {16*(r>>3)+(r&7)}, v5")
    a("v_mov_b32 v1, 0xffff")
    a(f"v_mov_b32 v{M}, 0xffff0000")
    for u in range(8):
        a(f"v_cndmask_b32 v{PM+u}, 0, v1, {sr(MKL[2*u],2)}")
        a(f"v_cndmask_b32 v{P[0]}, 0, v{M}, {sr(MKL[2*u+1],2)}")
        a(f"v_or_b32 v{PM+u}, v{PM+u}, v{P[0]}")
    for i in range(16): a(f"v_mov_b32 v{Z+i}, {'s55' if STANDIN else '0'}")
    a(f"v_mov_b32 v{NINF}, 0xff800000")
    a(f"v_add_u32 v{AK}, s39, v{VL}")
    a("v_and_b32 v5, 15, v0")
    a("v_lshl_add_u32 v5, v3, 4, v5")
    a("v_lshl_add_u32 v5, v5, 4, s39")
    a("v_and_b32 v6, 16, v0")
    a(f"v_lshl_add_u32 v{AV}, v6, 10, v5")
    p3_ids(a, 46, 47, 48, 49)
    a("s_and_b32 s49, s54, 1")
    a("s_lshl_b32 s49, s49, 12")
    a("s_lshl_b32 s56, s46, 2")
    a("s_add_u32 s49, s49, s56")
    a(f"v_lshl_add_u32 v{VGT}, v4, 7, s49")
    a("v_and_b32 v5, 4, v0")
    a("v_lshlrev_b32 v5, 2, v5")
    a("v_bfe_u32 v6, v0, 3, 2")
    a("v_lshl_add_u32 v5, v6, 2, v5")
    a("v_and_b32 v6, 3, v0")
    a("v_add_u32 v5, v5, v6")
    a("s_lshl_b32 s56, s47, 6")
    a("s_bfe_u32 s57, s54, 0x10001")
    a("s_lshl_b32 s57, s57, 5")
    a("s_add_u32 s56, s56, s57")
    a("v_add_u32 v5, s56, v5")
    a("v_sub_u32 v6, 0x200, v5")
    a("v_min_u32 v6, v5, v6")
    a("v_and_b32 v5, 0xff, v5")
    a("s_lshr_b32 s57, s54, 2")
    a("s_sub_u32 s56, s57, 1")
    a("v_cmp_eq_u32 vcc, s56, v5")
    a("v_lshlrev_b32 v5, 16, v3")
    a(f"v_lshl_add_u32 v{VH}, v6, 4, v5")
    a("v_mov_b32 v5, 0x7f000000")
    a(f"v_cndmask_b32 v{VH}, v{VH}, v5, vcc")
    a("s_lshl_b32 s57, s57, 12")
    a("s_lshl_b32 s56, s48, 17")
    a("s_add_u32 s56, s56, s57")
    a("s_and_b32 s57, s54, 1")
    a("s_lshl_b32 s57, s57, 15")
    a("s_add_u32 s56, s56, s57")
    a(f"s_add_u32 s56, s56, {H_OFF:#x}")
    a("s_lshl_b32 s57, s54, 12")
    a(f"s_add_u32 s57, s57, {H_L:#x}")
    if not WO_IN_P1:
        a("v_lshrrev_b32 v5, 3, v0")
        a("v_bfe_u32 v6, v0, 4, 1")
        a("v_lshlrev_b32 v6, 2, v6")
        a("v_and_b32 v7, 7, v0")
        a("v_xor_b32 v7, v7, v6")
        a("v_lshlrev_b32 v7, 4, v7")
        a("v_lshl_add_u32 v7, v5, 10, v7")
        a("s_bfe_u32 s3, s2, 0x20003")
        a(f"s_mul_i32 s3, s3, {2 * WOROT}")
        a("s_add_u32 s3, s3, s54")
        a("s_and_b32 s3, s3, 7")
        a("s_lshl_b32 s0, s3, 16")
        a("s_lshl_b32 s1, s47, 7")
        a("s_add_u32 s0, s0, s1")
        a("s_lshl_b32 s1, s3, 13")
        a(f"s_add_u32 s1, s1, {WO_L:#x}")
        srd(a, WSRD, 58, 512 * 1024)
    a("s_lshr_b32 s47, s18, 2")
    a("s_cmp_eq_u32 s19, 0")
    a("s_cselect_b32 s48, 0, 2")
    a("s_sub_u32 s48, s47, s48")
    for r in (47, 48):
        a(f"s_lshr_b32 s49, s{r}, 3")
        a(f"s_and_b32 s{r}, s{r}, 7")
        a(f"s_lshl_b32 s{r}, s{r}, 3")
        a(f"s_or_b32 s{r}, s{r}, s49")
    a("s_sub_u32 s48, s48, 4")
    a("v_mov_b32 v4, s47")
    a("v_mov_b32 v5, s48")
    a("v_cmp_gt_u32 vcc, 3, v0")
    a("s_lshr_b32 s47, s17, 3")
    a("s_lshl_b32 s47, s47, 6")
    a("v_cndmask_b32 v4, v5, v4, vcc")
    a("v_lshl_add_u32 v4, v0, 1, v4")
    a("v_add_lshl_u32 v2, v4, s47, 7")
    a(f"s_mov_b32 s16, {FB_OFF:#x}")
    a(f"v_and_b32 v{VFL}, 7, v0")
    a(f"v_lshlrev_b32 v{VFL}, 7, v{VFL}")
    a(f"s_mov_b32 s46, {f2u(0.25*math.log2(math.e)):#x}")
    a("s_cmp_ge_u32 s54, 4")
    a("s_cbranch_scc1 P2_arr")
    a("s_waitcnt vmcnt(0)")
    a.label("P2_arr")
    a("s_barrier")
    stamp(a, 2)
    a("s_cmp_lg_u32 s54, 0")
    a("s_cbranch_scc1 P2_nf")
    a("v_mov_b32 v1, 1")
    a("s_lshl_b32 s47, s2, 7")
    a(f"s_add_u32 s47, s47, {FL_OFF:#x}")
    a("s_mov_b64 exec, 1")
    a(f"buffer_store_dword v1, v{VL}, s[28:31], s47 offen sc1")
    a("s_lshl_b32 s49, s19, 7")
    a("s_add_u32 s49, s49, s16")
    a("v_mov_b32 v3, 1")
    a(f"buffer_atomic_add v3, v{VL}, s[28:31], s49 offen offset:1024 sc0 sc1")
    a.label("P2_nf")
    a(f"s_mov_b32 s47, {FL_OFF:#x}")
    a("s_mov_b64 exec, 0x1f")
    poll(a, "buffer_load_dword v4, v2, s[28:31], s47 offen sc1", 4, sleep=SLEEP1)
    stamp(a, 7)
    a("s_cmp_lg_u32 s54, 0")
    a("s_cbranch_scc1 P2_nl")
    a("v_readfirstlane_b32 s47, v3")
    a("s_cmp_lg_u32 s47, 31")
    a("s_cbranch_scc1 P2_nl")
    a("s_mov_b64 exec, 1")
    a(f"buffer_store_dword v1, v{VL}, s[28:31], s49 offen sc1")
    a("s_mov_b64 exec, -1")
    a.label("P2_nl")
    a("s_add_u32 m0, s39, 0x2000")
    a(f"buffer_load_dwordx4 v{VL}, s[28:31], s35 offen sc1 lds")
    a(f"buffer_load_dwordx4 {vr(QF,4)}, v{VL}, s[28:31], s33 offen sc1")
    a("s_mov_b32 m0, s39")
    a(f"buffer_load_dwordx4 v{VL}, s[28:31], s36 offen sc1 lds")
    a("s_add_u32 m0, s39, 0x6000")
    a(f"buffer_load_dwordx4 v{VL}, s[28:31], s37 offen sc1 lds")
    a("s_add_u32 m0, s39, 0x4000")
    a(f"buffer_load_dwordx4 v{VL}, s[28:31], s38 offen sc1 lds")
    a("s_waitcnt vmcnt(3)")
    for i in range(4):
        a(f"v_lshlrev_b32 v{GX}, 16, v{QF+i}")
        a(f"v_and_b32 v{GX+1}, 0xffff0000, v{QF+i}")
        a(f"v_mul_f32 v{GX}, s46, v{GX}")
        a(f"v_mul_f32 v{GX+1}, s46, v{GX+1}")
        a(f"v_cvt_pk_bf16_f32 v{QF+i}, v{GX}, v{GX+1}")
    a("s_waitcnt vmcnt(2)")
    stamp(a, 8)
    a("s_waitcnt lgkmcnt(0)")
    a("s_barrier")
    korder = [0, 8, 1, 2, 3, 4, 5, 6, 7]
    for j in korder: a(f"ds_read_b128 {vr(KF+4*j,4)}, v{AK} offset:{(8-j)*1024}")
    def smf(D, j, C): return mfma(D, KF + 4 * j, QF, C)
    def zswitch(a, j, tag):
        a(f"s_cmp_eq_u32 s18, {j-1}")
        a(f"s_cbranch_scc1 P2_o{tag}{j}")
        a.label(f"P2_z{tag}{j}")
        def emit(a, t=f"{tag}{j}"):
            a.label(f"P2_o{t}")
            a("s_nop 6")
            for i in range(16): a(f"v_mov_b32 v{Z+i}, v{NINF}")
            a("s_nop 0")
            a(f"s_branch P2_z{t}")
        ool.append(emit)
    def maxtile(a, S, first):
        if first:
            a(f"v_max3_f32 v{M}, v{S}, v{S+1}, v{S+2}")
            rest = list(range(3, 16))
        else: rest = list(range(16))
        while len(rest) >= 2:
            a(f"v_max3_f32 v{M}, v{M}, v{S+rest[0]}, v{S+rest[1]}"); rest = rest[2:]
        if rest: a(f"v_max_f32 v{M}, v{M}, v{S+rest[0]}")
    def vread(j):
        for u in range(2): a(f"ds_read_b128 {vr(VF+8*j+4*u,4)}, v{AV} offset:{0x4000+(8-j)*1024+512*u}")
    def pv(j, Pb, u, first=False): return mfma(O, VF + 8 * j + 4 * u, Pb + 4 * u, "0" if first else None)
    def truemax(a, tag):
        for i in range(16): a(f"v_mov_b32 v{Z+i}, 0")
        for j in range(1, 8):
            zswitch(a, j, tag)
            a(smf(SB[j % 3], j, vr(Z, 16)))
            if j >= 2: maxtile(a, SB[(j - 1) % 3], j == 2)
        maxtile(a, SB[7 % 3], False)
        for i in range(16): a(f"v_mov_b32 v{Z+i}, s55")
    fbload = f"buffer_load_dword v{GX}, v{VFL}, s[28:31], s16 offen sc1"
    fbpre = []
    def hissue():
        a("s_mov_b32 m0, s57")
        a(f"s_mov_b32 s47, {GT_OFF:#x}")
        a(f"buffer_load_dword v{GTT}, v{VGT}, s[28:31], s47 offen sc1")
        for i in range(4):
            a(f"buffer_load_dwordx4 v{VH}, s[28:31], s56 offen offset:{1024*i} sc1 lds")
            if i < 3: a("s_add_u32 s56, s56, 7168")
    def core(a, main, havemax, tag):
        if main: a("s_waitcnt lgkmcnt(8)")
        a(smf(SD, 0, "0"))
        if main: a("s_waitcnt lgkmcnt(7)")
        a(smf(SB[0], 8, vr(Z, 16)))
        for r in range(16): a(f"v_cndmask_b32 v{SD+r}, v{SB[0]+r}, v{SD+r}, {sr(MKL[r],2)}")
        maxtile(a, SD, not havemax)
        a(f"v_mov_b32 v1, v{M}")
        a(f"v_permlane32_swap_b32 v1, v{M}")
        a(f"v_max_f32 v{M}, v1, v{M}")
        for i in range(16): a(f"v_sub_f32 v{Z+i}, 0, v{M}")
        if main: a("s_waitcnt lgkmcnt(0)")
        zswitch(a, 1, tag)
        a(smf(SB[1], 1, vr(Z, 16)))
        zswitch(a, 2, tag)
        a(smf(SB[2], 2, vr(Z, 16)))
        if main:
            a("s_waitcnt vmcnt(0)")
            a("s_barrier")
            stamp(a, 9)
            if STAMP: a("s_waitcnt lgkmcnt(0)")
            for j in korder[:7]: vread(j)
            if EARLYJ: a(fbload)
            pfnext(2)
        for r in range(16): a(f"v_sub_f32 v{SD+r}, v{SD+r}, v{M}")
        for r in range(16): a(f"v_exp_f32 v{SD+r}, v{SD+r}")
        Pd, Po = P[0], P[1]
        for u in range(8): a(f"v_cvt_pk_bf16_f32 v{Po+u}, v{SD+2*u}, v{SD+2*u+1}")
        for u in range(8): a(f"v_and_b32 v{Pd+u}, v{Po+u}, v{PM+u}")
        if main:
            a("s_waitcnt lgkmcnt(0)")
            for j in korder[7:]: vread(j)
            pfnext(2)
        a(pv(0, Pd, 0, True))
        for u in range(8): a(f"v_xor_b32 v{Po+u}, v{Po+u}, v{Pd+u}")
        a(pv(0, Pd, 1))
        pend = [pv(8, Po, 0), pv(8, Po, 1)]
        for n, j in enumerate(range(1, 8)):
            S = SB[j % 3]; Pb = P[n & 1]
            if main and j == MIDJ:
                if EARLYJ:
                    a("s_cmp_lg_u32 s49, 0")
                    a("s_cbranch_scc1 P2_m1")
                a(fbload)
                a.label("P2_m1")
            if main and j == 6: a("s_waitcnt lgkmcnt(0)")
            for r in range(4): a(f"v_exp_f32 v{S+r}, v{S+r}")
            a(pend.pop(0))
            for r in range(4, 8): a(f"v_exp_f32 v{S+r}, v{S+r}")
            if pend: a(pend.pop(0))
            for u in range(4): a(f"v_cvt_pk_bf16_f32 v{Pb+u}, v{S+2*u}, v{S+2*u+1}")
            if main: pfnext(2)
            for r in range(8, 16): a(f"v_exp_f32 v{S+r}, v{S+r}")
            a(pv(j, Pb, 0))
            for u in range(4, 8): a(f"v_cvt_pk_bf16_f32 v{Pb+u}, v{S+2*u}, v{S+2*u+1}")
            pend.append(pv(j, Pb, 1))
            if j + 2 <= 7:
                zswitch(a, j + 2, tag)
                a(smf(SB[(j + 2) % 3], j + 2, vr(Z, 16)))
            if main and EARLYJ and j == EARLYJ:
                a("s_waitcnt vmcnt(%d)" % (8 - len(pf)))
                for x in fbpre: a(x)
                a(f"v_cmp_eq_u32 vcc, 0, v{GX}")
                a("s_mov_b32 s49, 0")
                a("s_cbranch_vccnz P2_e1")
                a("s_mov_b32 s49, m0")
                hissue()
                a("s_mov_b32 m0, s49")
                a.label("P2_e1")
            if main and j == MIDJ:
                if EARLYJ:
                    a("s_cmp_lg_u32 s49, 0")
                    a("s_cbranch_scc1 P2_m2")
                a("s_waitcnt vmcnt(0)")
                poll(a, fbload, GX, True, sleep=4, pre=fbpre)
                hissue()
                a.label("P2_m2")
        a(pend.pop(0))
    if not STANDIN:
        a("s_waitcnt lgkmcnt(0)")
        truemax(a, "m")
    core(a, True, not STANDIN, "b")
    a("v_and_b32 v4, 7, v0")
    a("v_xor_b32 v5, s54, v4")
    a("v_lshlrev_b32 v5, 4, v5")
    a("v_lshl_add_u32 v5, v0, 7, v5")
    a("v_lshrrev_b32 v6, 3, v0")
    a("v_xor_b32 v4, v4, v6")
    a("s_and_b32 s32, s54, 3")
    a("s_lshl_b32 s32, s32, 3")
    a("v_add_u32 v6, s32, v6")
    perm23(a, 6, 6, 7, 2)
    a("v_lshlrev_b32 v4, 4, v4")
    a("v_lshl_add_u32 v4, v6, 16, v4")
    a("s_lshl_b32 s32, s17, 11")
    a("s_lshr_b32 s33, s19, 2")
    a("s_lshl_b32 s33, s33, 10")
    a("s_add_u32 s32, s32, s33")
    a("s_lshr_b32 s33, s54, 2")
    a("s_lshl_b32 s33, s33, 9")
    a("s_add_u32 s32, s32, s33")
    a("s_and_b32 s33, s19, 3")
    a("s_lshl_b32 s33, s33, 7")
    a("s_add_u32 s32, s32, s33")
    a(f"s_add_u32 s32, s32, {O_OFF:#x}")
    if STANDIN:
        a(f"v_add_f32 v1, |v{O}|, |v{O+1}|")
        a(f"v_add_f32 v2, |v{O+2}|, |v{O+3}|")
        for i in (4, 6):
            a(f"v_add_f32 v1, v1, |v{O+i}|")
            a(f"v_add_f32 v2, v2, |v{O+i+1}|")
        a(f"s_mov_b32 s33, {f2u(2.0**-60):#x}")
        a(f"v_add_f32 v1, v1, v2")
        a(f"v_fma_f32 v1, v1, s33, v{O+8}")
        a(f"v_cmp_ngt_f32 vcc, {f2u(2.0**40):#x}, v1")
        if FORCE_FB: a("s_mov_b64 vcc, -1")
        a("s_cbranch_vccnz P2_fb")
        a.label("P2_fbret")
        def emit(a):
            a.label("P2_fb")
            truemax(a, "f")
            core(a, False, True, "g")
            a("s_nop 11")
            a("s_branch P2_fbret")
        ool.insert(0, emit)
    a(f"v_rcp_f32 v1, v{O+8}")
    for i in range(8): a(f"v_mul_f32 v{O+i}, v{O+i}, v1")
    for u in range(4): a(f"v_cvt_pk_bf16_f32 v{P[0]+u}, v{O+2*u}, v{O+2*u+1}")
    a(f"v_min_u32 v{P[0]}, -2, v{P[0]}")
    a(f"v_min_u32 v{P[0]+3}, -2, v{P[0]+3}")
    a(f"ds_write_b128 v5, {vr(P[0],4)} offset:{OTR_L:#x}")
    stamp(a, 10)
    a("s_waitcnt vmcnt(0) lgkmcnt(0)")
    a("s_barrier")
    a(f"ds_read_b128 {vr(P[0],4)}, v{AK} offset:{OTR_L:#x}")
    a("s_waitcnt lgkmcnt(0)")
    a(f"buffer_store_dwordx4 {vr(P[0],4)}, v4, s[28:31], s32 offen sc1")

def phase3(a):
    OF, WOF, HF, WF, AC = 8, 40, 104, 136, 152
    RD = 184
    p3_ids(a, 17, 18, 19, 20)
    a("s_and_b32 s20, s54, 1")
    a("s_lshr_b32 s21, s54, 1")
    a("s_lshl_b32 s22, s17, 16")
    a("s_lshl_b32 s23, s21, 14")
    a("s_add_u32 s22, s22, s23")
    a("s_lshl_b32 s24, s20, 10")
    a("s_add_u32 s22, s22, s24")
    a(f"s_add_u32 s22, s22, {O_OFF:#x}")
    a(f"s_mul_i32 s16, s18, {2048 * OROT}")
    a("s_or_b32 s22, s22, s16")
    OS = [32, 33, 34, 35, 44, 45, 46, 47]
    a("v_lshlrev_b32 v7, 4, v0")
    def oload(k): return f"buffer_load_dwordx4 {vr(OF+4*k,4)}, v7, s[28:31], s{OS[k]} offen sc1"
    for k in range(8):
        a(f"s_xor_b32 s{OS[k]}, s22, {2048*k}")
        a(oload(k))
    stamp(a, 11)
    if STAMP: a("s_waitcnt lgkmcnt(0)")
    a("s_and_b32 s25, s21, 1")
    a("s_lshr_b32 s26, s21, 1")
    a("s_lshl_b32 s27, s25, 8")
    a("v_xor_b32 v1, s27, v7")
    a("s_lshl_b32 s27, s21, 11")
    a(f"s_add_u32 s27, s27, {H_L:#x}")
    a("s_lshl_b32 s36, s26, 13")
    a("s_add_u32 s37, s27, s36")
    a("s_xor_b32 s36, s36, 0x2000")
    a("s_add_u32 s36, s27, s36")
    a("v_add_u32 v2, s37, v1")
    a("v_add_u32 v1, s36, v1")
    for p in range(2):
        for i in range(2):
            for iw in range(2):
                a(f"ds_read_b128 {vr(HF+16*p+8*i+4*iw,4)}, v{2-iw} offset:{0x4000*p + 1024*i}")
    a("v_and_b32 v2, 31, v0")
    a("v_lshrrev_b32 v3, 5, v0")
    a("s_add_u32 s23, s24, s17")
    a("v_lshl_add_u32 v4, v2, 5, s23")
    a("v_cvt_f32_u32 v5, v4")
    a("s_cmp_gt_u32 s17, 16")
    csel(a, 36, f2u(-1/2048), f2u(1/2048))
    a("s_cselect_b32 s37, 1, 0")
    a("s_lshr_b32 s38, s18, 2")
    a("s_xor_b32 s37, s37, s38")
    a("s_cselect_b32 s38, 0x80008000, 0")
    a("s_xor_b32 s39, s38, 0x80008000")
    a("v_mul_f32 v5, s36, v5")
    a("s_lshl_b32 s36, s21, 3")
    a("v_lshl_add_u32 v6, v3, 5, s36")
    a("v_cvt_f32_u32 v6, v6")
    a("v_mul_f32 v6, v6, v5")
    a("v_fract_f32 v6, v6")
    WA, WB = WF, WF + 8
    for i in range(2):
        for pr in range(2):
            a(f"v_cos_f32 v{RD}, v6")
            a(f"v_sin_f32 v{RD+2}, v6")
            a("v_add_f32 v6, v6, v5")
            a(f"v_cos_f32 v{RD+1}, v6")
            a(f"v_sin_f32 v{RD+3}, v6")
            a("v_add_f32 v6, v6, v5")
            for q in range(4): a(f"v_mul_f32 v{RD+q}, v{GTT}, v{RD+q}")
            a(f"v_cvt_pk_bf16_f32 v{WA+4*i+pr}, v{RD}, v{RD+1}")
            a(f"v_cvt_pk_bf16_f32 v{WA+4*i+2+pr}, v{RD+2}, v{RD+3}")
            a(f"v_xor_b32 v{WB+4*i+2+pr}, s39, v{WA+4*i+pr}")
            a(f"v_xor_b32 v{WB+4*i+pr}, s38, v{WA+4*i+2+pr}")
    a("s_cmp_lg_u32 s19, 0")
    a("s_cbranch_scc1 P3_wdone")
    a("s_cmp_eq_u32 s17, 0")
    a("s_cselect_b64 vcc, -1, 0")
    for q in range(4):
        for pr in range(2):
            a(f"v_cndmask_b32 v{WF+4*q+2+pr}, v{WF+4*q+pr}, 0, vcc")
            a(f"v_cndmask_b32 v{WF+4*q+pr}, 0, v{WF+4*q+pr}, vcc")
    a.label("P3_wdone")
    a("v_lshrrev_b32 v1, 2, v0")
    a("v_and_b32 v1, 3, v1")
    a("v_lshl_add_u32 v5, v3, 3, v1")
    a("v_lshlrev_b32 v5, 7, v5")
    a("v_lshrrev_b32 v1, 1, v1")
    a("v_xor_b32 v1, s26, v1")
    a("v_lshl_add_u32 v5, v1, 6, v5")
    a("v_and_b32 v1, 1, v0")
    a("v_lshl_add_u32 v5, v1, 5, v5")
    a("s_lshl_b32 s36, s25, 4")
    a("v_and_b32 v1, 16, v0")
    a("v_xor_b32 v1, s36, v1")
    a("v_add_u32 v5, v1, v5")
    a("v_and_b32 v1, 2, v0")
    a("v_lshl_add_u32 v5, v1, 2, v5")
    a("s_lshl_b32 s36, s21, 14")
    a(f"s_add_u32 s36, s36, {WO_L:#x}")
    a("s_or_b32 s36, s36, s16")
    a("v_add_u32 v5, s36, v5")
    for k in range(8):
        for iw in range(2): a(f"v_xor_b32 v{RD+2*k+iw}, {2048*k + 64*iw}, v5")
    a("s_waitcnt lgkmcnt(0)")
    wr = []
    for k in range(8):
        for iw in range(2):
            for q in range(2):
                wr.append(f"ds_read_b64_tr_b16 {vr(WOF+8*k+4*iw+2*q,2)}, v{RD+2*k+iw} offset:{512*q}")
    n = 0
    for p in range(2):
        for i in range(2):
            for iw in range(2):
                a(mfma(AC + 16 * iw, HF + 16 * p + 8 * i + 4 * iw, WF + 8 * p + 4 * i, "0" if (p == 0 and i == 0) else None))
                for x in wr[4*n:4*n+4]: a(x)
                n += 1
                if n in (3, 6): a("s_waitcnt lgkmcnt(3)")
    a("v_lshlrev_b32 v4, 10, v4")
    a("v_lshl_add_u32 v4, v3, 5, v4")
    a("s_lshl_b32 s22, s18, 7")
    a("s_lshl_b32 s23, s26, 6")
    a("s_add_u32 s22, s22, s23")
    a("s_lshl_b32 s23, s25, 4")
    a("s_add_u32 s22, s22, s23")
    srd(a, 40, 60, 2 * MB)
    a("s_lshl_b32 s23, s20, 2")
    for i in range(4):
        a(f"s_xor_b32 s36, s21, {i}")
        a("s_add_u32 s36, s36, s23")
        a("s_mul_i32 s36, s36, 0x1800")
        a(f"v_add_u32 v{(1, 2, 3, 5)[i]}, s36, v7")
    a(f"v_add_f32 v{GTT}, 1.0, v{GTT}")
    a(f"v_rcp_f32 v{GTT}, v{GTT}")
    a("s_mov_b32 s36, 0")
    a("s_mov_b32 s48, 0")
    a("s_waitcnt lgkmcnt(0)")
    MS = [4, 6, 8, 10, 12, 24, 26, 38]
    a.label("P3_sweep")
    a("s_mov_b32 s37, s36")
    a("s_waitcnt vmcnt(0)")
    for k in range(8):
        o = OF + 4 * k
        a(f"s_bitcmp1_b32 s36, {k}")
        a(f"s_cbranch_scc1 P3_s{k}")
        a(f"v_max_u32 v6, v{o}, v{o+3}")
        a("v_cmp_eq_u32 vcc, -1, v6")
        a(f"s_mov_b64 {sr(MS[k],2)}, vcc")
        a(f"s_cbranch_vccnz P3_s{k}")
        a(mfma(AC, WOF + 8 * k, o))
        a(mfma(AC + 16, WOF + 8 * k + 4, o))
        a(f"s_bitset1_b32 s36, {k}")
        a.label(f"P3_s{k}")
    a("s_cmp_eq_u32 s36, 0xff")
    a("s_cbranch_scc1 P3_red")
    a("s_add_u32 s48, s48, 1")
    a(f"s_cmp_ge_u32 s48, {SPIN_MAX}")
    a("s_cbranch_scc1 P3_red")
    if PROBE:
        a("s_ff0_i32_b32 s49, s36")
        a("s_lshl_b32 s49, 1, s49")
        a("s_not_b32 s49, s49")
        a("s_cmp_lg_u32 s37, s36")
        a("s_cselect_b32 s37, s36, s49")
    else: a("s_mov_b32 s37, s36")
    if SLEEP3: a(f"s_sleep {SLEEP3}")
    for k in range(8):
        a(f"s_bitcmp1_b32 s37, {k}")
        a(f"s_cbranch_scc1 P3_r{k}")
        a(f"s_mov_b64 exec, {sr(MS[k],2)}")
        a(oload(k))
        a.label(f"P3_r{k}")
    a("s_mov_b64 exec, -1")
    a("s_branch P3_sweep")
    a.label("P3_red")
    stamp(a, 12)
    for i in (1, 2, 3):
        for hf in range(2):
            a(f"ds_write_b128 v{(1, 2, 3, 5)[i]}, {vr(AC+8*i+4*hf,4)} offset:{2048*(i-1)+1024*hf}")
    a("s_waitcnt lgkmcnt(0)")
    a("s_barrier")
    for i in range(6): a(f"ds_read_b128 {vr(RD+4*i,4)}, v1 offset:{1024*i}")
    for i in range(3):
        a(f"s_waitcnt lgkmcnt({4-2*i})")
        for r in range(8): a(f"v_add_f32 v{AC+r}, v{AC+r}, v{RD+8*i+r}")
    for r in range(8): a(f"v_mul_f32 v{AC+r}, v{GTT}, v{AC+r}")
    for u in range(4): a(f"v_cvt_pk_bf16_f32 v{RD+u}, v{AC+2*u}, v{AC+2*u+1}")
    a(f"buffer_store_dwordx4 {vr(RD,4)}, v4, s[40:43], s22 offen {OUTF}")
    stamp_out(a)

def gen():
    a = Asm(); ool = []
    a("s_cmp_ge_u32 s2, 256")
    a("s_cbranch_scc1 F_done")
    stamp(a, 0, True); stamp(a, 1)
    a("s_load_dwordx2 s[4:5], s[0:1], 0")
    a("s_load_dwordx4 s[8:11], s[0:1], 24")
    a("s_load_dwordx2 s[12:13], s[0:1], 48")
    a("s_load_dwordx2 s[58:59], s[0:1], 56")
    a("s_load_dwordx2 s[6:7], s[0:1], 64")
    a("s_load_dwordx4 s[60:63], s[0:1], 72")
    a("s_load_dwordx2 s[14:15], s[0:1], 88")
    a("v_lshrrev_b32 v1, 6, v0")
    a("v_and_b32 v0, 63, v0")
    a("v_readfirstlane_b32 s54, v1")
    phase1(a)
    phase2(a, ool)
    phase3(a)
    a.label("F_done")
    a("s_endpgm")
    i = 0
    while i < len(ool):
        ool[i](a); i += 1
    return a.lines

def build(path):
    head = open(f"cdna_kernels/{NAME}.s.ref").read().split("; Override launch")[0]
    out = head + "; @launch grid=(256,1,1) block=(512,1,1) lds=163840\n" + '.amdgcn_target "amdgcn-amd-amdhsa--gfx950"\n'
    lines = gen()
    lines = fix_hazards(lines, VERB)
    print("lines", len(lines))
    code, kd = kernel_text(NAME + "_kernel", lines, 256, 102)
    open(path, "w").write(out + code + '.section .rodata,"a"\n' + kd)

if __name__ == "__main__":
    for x in list(sys.argv):
        if x.startswith("-D"):
            exec(x[2:], globals()); sys.argv.remove(x)
    if "--stamp" in sys.argv: STAMP = True; sys.argv.remove("--stamp")
    build(sys.argv[1] if len(sys.argv) > 1 else f"cdna_kernels/{NAME}.s")
```

```python
import sys, math, struct
sys.path.insert(0, "work")
from asmlib import *

MB = 1 << 20
Q_OFF, K_OFF, V_OFF, H_OFF, O_OFF, GT_OFF, FL_OFF = 0, 2 * MB, 4 * MB, 6 * MB, 8 * MB, 10 * MB, 10 * MB + 262144
FB_OFF = FL_OFF + 32768
WS_SIZE = 11 * MB
NAME = "gated_mix__spectral_fnet__sliding_block__prompt"
def f2u(f): return struct.unpack("<I", struct.pack("<f", f))[0]

STAMP = False
VERB = False
K1NT = (0, 1)
OUTF = ""
SPIN_MAX = 1 << 16
GATE_AT = 3
MIDJ = 5
STANDIN = 1
FORCE_FB = 0
WO_IN_P1 = 0
CLR_AT = 4
SLEEP1 = 0
SLEEP3 = 2
WOROT = 1
OROT = 1
PROBE = 1
PRETOUCH = 0
TLBW = 1
WOPF = 1
EARLYJ = 0
HBAR = 1
H_L, WO_L, OTR_L = 0x10000, 0x18000, 0xc000
SLOT = [0x8000, 0x10000, 0x0]

ST_OFF = 16 * MB
SB0 = 72
TENC = None
def stamp(a, i, real=False):
    if TENC is not None:
        if i == 0:
            a(f"s_memrealtime {sr(SB0,2)}")
            a("s_waitcnt lgkmcnt(0)")
            a(f"s_mov_b32 s{SB0+2}, s{SB0}")
        elif i == TENC: a(f"s_memrealtime {sr(SB0+2,2)}")
        return
    if STAMP: a(f"{'s_memrealtime' if real else 's_memtime'} {sr(SB0+2*i,2)}")
def stamp_out(a):
    if TENC is not None:
        L = uid("Ltenc")
        a("s_waitcnt vmcnt(0) lgkmcnt(0)")
        stamp(a, 13)
        a("s_waitcnt lgkmcnt(0)")
        a(f"s_sub_u32 s70, s{SB0+2}, s{SB0}")
        a("s_lshl_b32 s70, s70, 1")
        a("s_add_u32 s70, s70, 4000")
        a("s_min_u32 s70, s70, 20000")
        a.label(L)
        a(f"s_memrealtime {sr(SB0+4,2)}")
        a("s_waitcnt lgkmcnt(0)")
        a(f"s_sub_u32 s71, s{SB0+4}, s{SB0}")
        a("s_cmp_lt_u32 s71, s70")
        a(f"s_cbranch_scc1 {L}")
        return
    if not STAMP: return
    a("s_waitcnt vmcnt(0) lgkmcnt(0)")
    stamp(a, 13); stamp(a, 14, True)
    a("s_waitcnt lgkmcnt(0)")
    for i in range(15): a(f"v_writelane_b32 v1, s{SB0+2*i}, {i}")
    a("v_lshlrev_b32 v2, 2, v0")
    a("s_lshl_b32 s70, s2, 9")
    a("s_lshl_b32 s71, s54, 6")
    a("s_add_u32 s70, s70, s71")
    a(f"s_add_u32 s70, s70, {ST_OFF:#x}")
    a("v_add_u32 v2, s70, v2")
    a("s_mov_b64 exec, 0xffff")
    a("global_store_dword v2, v1, s[14:15]")

def srd(a, d, base, size):
    a(f"s_mov_b32 s{d}, s{base}")
    a(f"s_mov_b32 s{d+1}, s{base+1}")
    a(f"s_mov_b32 s{d+2}, {size:#x}")
    a(f"s_mov_b32 s{d+3}, 0x20000")
def csel(a, d, x, y):
    a(f"s_mov_b32 s{d}, {y:#x}")
    a(f"s_cselect_b32 s{d}, {x:#x}, s{d}")
def perm23(a, dst, src, t1, t2):
    a(f"v_and_b32 v{t1}, 0x13, v{src}")
    a(f"v_and_b32 v{t2}, 4, v{src}")
    a(f"v_lshl_or_b32 v{t1}, v{t2}, 1, v{t1}")
    a(f"v_and_b32 v{t2}, 8, v{src}")
    a(f"v_lshrrev_b32 v{t2}, 1, v{t2}")
    a(f"v_or_b32 v{dst}, v{t1}, v{t2}")
def mfma(D, A, B, C=None):
    return f"v_mfma_f32_32x32x16_bf16 {vr(D,16)}, {vr(A,4)}, {vr(B,4)}, {vr(D,16) if C is None else C}"
_uid = [0]
def uid(p):
    _uid[0] += 1; return f"{p}{_uid[0]}"

def poll(a, load, vdata, first_loaded=False, sleep=0, pre=()):
    L = uid("Lpoll")
    a("s_mov_b32 s48, 0")
    if first_loaded: a(f"s_branch {L}c")
    if sleep and not first_loaded: a(f"s_branch {L}l")
    a.label(L)
    if sleep: a(f"s_sleep {sleep}")
    a.label(L + "l")
    a(load)
    a("s_waitcnt vmcnt(0)")
    a.label(L + "c")
    for x in pre: a(x)
    a(f"v_cmp_eq_u32 vcc, 0, v{vdata}")
    a("s_add_u32 s48, s48, 1")
    a(f"s_cmp_ge_u32 s48, {SPIN_MAX}")
    a(f"s_cbranch_scc1 {L}x")
    a("s_and_b64 exec, exec, vcc")
    a(f"s_cbranch_scc1 {L}")
    a.label(L + "x")
    a("s_mov_b64 exec, -1")

def p3_ids(a, t1, et, tau, tmp):
    a(f"s_and_b32 s{tau}, s2, 7")
    a(f"s_lshl_b32 s{tau}, s{tau}, 1")
    a(f"s_bfe_u32 s{tmp}, s2, 0x10003")
    a(f"s_or_b32 s{tau}, s{tau}, s{tmp}")
    a(f"s_sub_u32 s{tmp}, 32, s{tau}")
    a(f"s_cmp_eq_u32 s{tau}, 0")
    a(f"s_cselect_b32 s{tmp}, 16, s{tmp}")
    a("s_bitcmp1_b32 s2, 4")
    a(f"s_cselect_b32 s{t1}, s{tmp}, s{tau}")
    a(f"s_lshr_b32 s{et}, s2, 5")

def phase1(a):
    XO, BO, AX, AB, PV, ST = 10, 14, 18, 22, 24, 25
    F = [28, 48]
    ACC, T, PK, AC2 = 68, 132, 140, 172
    a("s_bfe_u32 s17, s2, 0x20001")
    a("s_and_b32 s18, s2, 1")
    a("s_lshl_b32 s18, s18, 3")
    a("s_bfe_u32 s39, s2, 0x30003")
    a("s_or_b32 s18, s18, s39")
    a("s_lshr_b32 s19, s2, 6")
    a("s_and_b32 s16, s54, 3")
    a("s_and_b32 s45, s16, 1")
    a("s_lshr_b32 s46, s16, 1")
    a("s_cmp_lt_u32 s54, 4")
    a("s_cbranch_scc1 P1_compute")
    a("s_lshl_b32 s40, s18, 7")
    a("s_lshl_b32 s41, s16, 5")
    a("s_add_u32 s40, s40, s41")
    a("s_lshl_b32 s41, s18, 2")
    a("s_add_u32 s41, s41, s16")
    a("s_cmp_eq_u32 s17, 3")
    a("s_cselect_b32 s40, s41, s40")
    a("s_cselect_b32 s41, 16, 10")
    csel(a, 42, 0x7fc00, 0x1c00)
    csel(a, 43, 0x400, 0xc00)
    a("s_lshl_b32 s40, s40, 10")
    a("v_lshrrev_b32 v2, 3, v0")
    a("v_and_b32 v3, 7, v0")
    a("v_lshlrev_b32 v4, s41, v2")
    a("v_add_u32 v4, s40, v4")
    a("v_lshrrev_b32 v5, 1, v2")
    a("v_xor_b32 v6, v3, v5")
    a("v_lshl_add_u32 v%d, v6, 4, v4" % XO)
    a("v_xor_b32 v6, 4, v6")
    a("v_lshl_add_u32 v%d, v6, 4, v4" % (XO + 1))
    a("v_add_u32 v%d, s42, v%d" % (XO + 1, XO + 1))
    a("s_lshl_b32 s44, s42, 1")
    a("v_add_u32 v%d, s44, v%d" % (XO + 2, XO))
    a("v_add_u32 v%d, s44, v%d" % (XO + 3, XO + 1))
    a("s_lshl_b32 s47, s17, 10")
    a("s_lshl_b32 s48, s19, 8")
    a("s_add_u32 s47, s47, s48")
    a("s_lshl_b32 s48, s46, 7")
    a("s_add_u32 s47, s47, s48")
    a("s_lshl_b32 s48, s19, 7")
    a("s_cmp_eq_u32 s17, 3")
    a("s_cselect_b32 s47, s48, s47")
    a("s_lshl_b32 s48, s45, 5")
    a("s_mul_i32 s48, s48, s43")
    a("s_add_u32 s47, s47, s48")
    a("v_mul_lo_u32 v4, v2, s43")
    a("v_add_u32 v4, s47, v4")
    a("v_and_b32 v5, 1, v5")
    a("v_lshlrev_b32 v5, 2, v5")
    a("v_xor_b32 v5, v3, v5")
    a("v_lshl_add_u32 v%d, v5, 4, v4" % BO)
    a("s_lshl_b32 s48, s43, 3")
    a("s_sub_u32 s48, s48, 0x400")
    for i in range(1, 4): a("v_add_u32 v%d, s48, v%d" % (BO + i, BO + i - 1))
    a("s_lshl_b32 s34, s43, 6")
    a("s_lshl_b32 s35, s16, 12")
    a("s_lshl_b32 s49, s17, 2")
    a("s_add_u32 s49, s49, s19")
    a("s_add_u32 s32, s49, s18")
    a("s_and_b32 s32, s32, 7")
    a("s_mul_i32 s33, s32, s34")
    a("s_lshl_b32 s32, s32, 7")
    a("s_waitcnt lgkmcnt(0)")
    if TENC is not None: stamp(a, 20)
    srd(a, 20, 4, 2 * MB)
    a("s_cmp_eq_u32 s46, 0")
    a("s_cselect_b32 s24, s8, s10")
    a("s_cselect_b32 s25, s9, s11")
    a("s_cmp_eq_u32 s17, 3")
    a("s_cselect_b32 s24, s24, s12")
    a("s_cselect_b32 s25, s25, s13")
    csel(a, 26, 0x80000, 0x180000)
    a("s_mov_b32 s27, 0x20000")
    ops = []
    def issue(c):
        if c < 8:
            sl = SLOT[c % 3]
            a(f"s_add_u32 m0, s35, {sl:#x}")
            for i in range(4): a(f"buffer_load_dwordx4 v{XO+i}, s[20:23], s32 offen offset:{1024*i} {'nt' if c < K1NT[0] else ''} lds")
            a(f"s_add_u32 m0, s35, {sl+0x4000:#x}")
            for i in range(4): a(f"buffer_load_dwordx4 v{BO+i}, s[24:27], s33 offen offset:{1024*i} {'nt' if c < K1NT[1] else ''} lds")
            if c < 7:
                a("s_add_u32 s33, s33, s34")
                a("s_add_u32 s32, s32, 128")
                a("s_and_b32 s32, s32, 0x3ff")
                a("s_cselect_b32 s33, s33, 0")
        ops.extend([('c', c)] * 8)
    def allowed(tag):
        last = max(i for i, o in enumerate(ops) if o == tag)
        return len(ops) - 1 - last
    a("s_lshl_b32 s44, s17, 3")
    a("s_or_b32 s44, s44, s54")
    a("s_cmp_eq_u32 s44, 7")
    a("s_cselect_b32 s44, 1, 0")
    a("v_lshlrev_b32 v6, 4, v0")
    a("s_cbranch_scc0 P1_ng0")
    srd(a, 40, 6, 1024)
    a(f"s_mov_b32 m0, {WO_L:#x}")
    a("v_lshrrev_b32 v7, 5, v0")
    a("buffer_load_dwordx4 v6, s[40:43], 0 offen lds")
    a("v_lshlrev_b32 v9, 6, v7")
    a("v_add_u32 v9, s32, v9")
    a.label("P1_ng0")
    issue(0); issue(1)
    a("v_lshlrev_b32 v8, 2, v0")
    srd(a, 28, 14, WS_SIZE)
    GA, GD = 44, 52
    a("v_and_b32 v1, 31, v0")
    a("v_lshrrev_b32 v2, 1, v1")
    a("v_and_b32 v2, 7, v2")
    a("v_lshrrev_b32 v3, 5, v0")
    a("v_lshlrev_b32 v3, 2, v3")
    a("v_xor_b32 v2, v2, v3")
    a("s_lshl_b32 s47, s19, 12")
    a("v_lshl_add_u32 v1, v1, 7, s47")
    for i in range(4):
        a(f"v_xor_b32 v3, {i}, v2")
        a(f"v_lshl_add_u32 v{GA+i}, v3, 4, v1")
        a(f"v_add_u32 v{GA+4+i}, 0x10000, v{GA+i}")
    a("v_mov_b32 v1, 0")
    dbgload = "global_load_dword v40, v8, s[62:63] sc1"
    for c in range(8):
        a("s_waitcnt vmcnt(%d)" % allowed(('c', c)))
        if c == 0: stamp(a, 3)
        if c == 7: stamp(a, 4)
        a("s_barrier")
        a("s_cmp_eq_u32 s44, 0")
        a(f"s_cbranch_scc1 P1_nr{c}")
        sl = SLOT[c % 3]
        a(f"v_add_u32 v2, {WO_L:#x}, v9")
        for i in range(4):
            a(f"ds_read_b128 {vr(GD+8*i,4)}, v{GA+i+(4 if sl >= 0x10000 else 0)} offset:{sl & 0xffff}")
            a(f"ds_read_b128 {vr(GD+8*i+4,4)}, v2 offset:{16*i}")
        a("v_add_u32 v9, 0x80, v9")
        a("v_and_b32 v9, 0x3ff, v9")
        a.label(f"P1_nr{c}")
        if c == 6:
            a(dbgload); ops += [('d', 0)]
        if c + 2 < 8: issue(c + 2)
        if c == CLR_AT:
            for i in range(4): a(f"v_mov_b32 v{PK+12+i}, -1")
            a("s_lshl_b32 s47, s2, 13")
            a("s_lshl_b32 s48, s16, 11")
            a("s_add_u32 s47, s47, s48")
            a(f"s_add_u32 s47, s47, {O_OFF:#x}")
            a(f"buffer_store_dwordx4 {vr(PK+12,4)}, v6, s[28:31], s47 offen sc1")
            a(f"buffer_store_dwordx4 {vr(PK+12,4)}, v6, s[28:31], s47 offen offset:1024 sc1")
            ops += [('z', 0)] * 2
        a("s_cmp_eq_u32 s44, 0")
        a(f"s_cbranch_scc1 P1_ng{c+1}")
        for i in range(4):
            a(f"s_waitcnt lgkmcnt({6-2*i})")
            for u in range(4): a(f"v_dot2c_f32_bf16 v1, v{GD+8*i+u}, v{GD+8*i+4+u}")
        if c == 7:
            a("v_mov_b32 v2, v1")
            a("v_permlane32_swap_b32 v2, v1")
            a("v_add_f32 v1, v1, v2")
            a("v_min_f32 v1, 0x41f00000, v1")
            a(f"v_mul_f32 v1, {f2u(math.log2(math.e)):#x}, v1")
            a("v_exp_f32 v1, v1")
            a("s_lshl_b32 s47, s18, 2")
            a("s_add_u32 s47, s47, s19")
            a("s_lshl_b32 s47, s47, 7")
            a(f"s_add_u32 s47, s47, {GT_OFF:#x}")
            a("s_mov_b32 exec_hi, 0")
            a("buffer_store_dword v1, v8, s[28:31], s47 offen sc1")
            a("s_mov_b64 exec, -1")
        a.label(f"P1_ng{c+1}")
    a("s_waitcnt vmcnt(0)")
    poll(a, dbgload, 40, True)
    if WOPF:
        a("s_cmp_ge_u32 s16, 2")
        a("s_cbranch_scc1 P2_start")
        a("s_lshr_b32 s47, s2, 3")
        a("s_lshl_b32 s47, s47, 1")
        a("s_add_u32 s47, s47, s16")
        a("s_lshl_b32 s47, s47, 13")
        a("v_lshl_add_u32 v1, v0, 7, s47")
        a("global_load_dword v41, v1, s[58:59]")
    a("s_branch P2_start")
    a.label("P1_compute")
    a("v_and_b32 v7, 31, v0")
    a("v_lshrrev_b32 v8, 5, v0")
    perm23(a, 9, 7, 4, 5)
    a("s_lshl_b32 s47, s46, 13")
    a("s_cmp_eq_u32 s17, 3")
    a("s_cselect_b32 s48, s47, 0")
    a("s_cselect_b32 s47, 0, s47")
    a(f"s_add_u32 s48, s48, {0x4000 + SLOT[0]:#x}")
    a(f"s_add_u32 s47, s47, {SLOT[0]:#x}")
    a("v_lshlrev_b32 v4, 7, v9")
    a("v_add_u32 v4, s47, v4")
    a("v_lshrrev_b32 v5, 1, v9")
    a("v_and_b32 v5, 7, v5")
    a("v_xor_b32 v5, v5, v8")
    for ks in range(4):
        a(f"v_xor_b32 v6, {2*ks}, v5")
        a(f"v_lshl_add_u32 v{AX+ks}, v6, 4, v4")
    a("v_lshrrev_b32 v4, 2, v0")
    a("v_and_b32 v4, 3, v4")
    a("v_lshl_add_u32 v5, v8, 3, v4")
    a("v_lshlrev_b32 v5, 7, v5")
    a("v_lshrrev_b32 v4, 1, v4")
    a("v_xor_b32 v4, s45, v4")
    a("v_lshl_add_u32 v5, v4, 6, v5")
    a("v_and_b32 v4, 16, v0")
    a("v_lshl_add_u32 v5, v4, 1, v5")
    a("v_and_b32 v4, 1, v0")
    a("v_lshl_add_u32 v5, v4, 4, v5")
    a("v_and_b32 v4, 2, v0")
    a("v_lshl_add_u32 v5, v4, 2, v5")
    a(f"v_add_u32 v{AB}, s48, v5")
    for i in range(64): a(f"v_mov_b32 v{ACC+i}, 0")
    a("v_lshlrev_b32 v4, 4, v0")
    a("s_waitcnt lgkmcnt(0)")
    srd(a, 28, 14, WS_SIZE)
    if TLBW:
        a("s_cmp_lg_u32 s54, 1")
        a("s_cbranch_scc1 P1_notlb")
        a("v_lshlrev_b32 v5, 20, v0")
        a("v_mov_b32 v6, 0")
        a("s_mov_b64 exec, 0x7ff")
        a(f"buffer_load_dword v{AC2}, v5, s[28:31], 0 offen")
        a("s_mov_b64 exec, 1")
        a(f"global_load_dword v{AC2+1}, v6, s[58:59]")
        a(f"global_load_dword v{AC2+2}, v6, s[60:61]")
        a("s_mov_b64 exec, -1")
        a("s_waitcnt vmcnt(0)")
        a.label("P1_notlb")
    a("s_lshl_b32 s48, s54, 8")
    a("s_or_b32 s48, s48, s2")
    a("s_cmp_ge_u32 s48, 64")
    a("s_cbranch_scc1 P1_noinit")
    a("s_lshl_b32 s48, s2, 9")
    a(f"s_add_u32 s48, s48, {FL_OFF:#x}")
    a("s_cmp_lg_u32 s2, 0")
    a("s_cbranch_scc1 P1_init1")
    a(f"s_mov_b32 s47, {FB_OFF:#x}")
    a(f"buffer_store_dwordx4 {vr(ACC,4)}, v4, s[28:31], s47 offen sc1")
    a(f"buffer_store_dwordx4 {vr(ACC,4)}, v4, s[28:31], s47 offen offset:1024 sc1")
    a.label("P1_init1")
    a("s_mov_b32 exec_hi, 0")
    a(f"buffer_store_dwordx4 {vr(ACC,4)}, v4, s[28:31], s48 offen sc1")
    a("v_mov_b32 v5, 1")
    a("s_lshl_b32 s48, s2, 2")
    a("v_mov_b32 v6, s48")
    a("s_waitcnt vmcnt(0)")
    a("s_mov_b64 exec, 1")
    a("global_store_dword v6, v5, s[62:63] sc1")
    a("s_mov_b64 exec, -1")
    a.label("P1_noinit")
    a("s_mov_b32 s36, 0")
    a("s_mov_b32 s38, 1")
    a("s_cmp_lg_u32 s17, 3")
    a("s_cbranch_scc1 P1_noT")
    a("s_lshl_b32 s47, s19, 2")
    a("s_or_b32 s47, s47, s16")
    a("s_cmp_eq_u32 s47, 2")
    a("s_cselect_b32 s56, 1, 0")
    a("s_mov_b32 s57, s56")
    a(f"v_mov_b32 v{PV}, 0xbf803f80")
    a("v_lshrrev_b32 v4, 1, v7")
    a("v_cmp_eq_u32 vcc, 1, v7")
    a("v_and_b32 v5, 1, v7")
    a("v_lshlrev_b32 v6, 3, v8")
    a("v_cndmask_b32 v4, v4, 16, vcc")
    a("v_cndmask_b32 v5, v5, 0, vcc")
    a("v_cvt_f32_u32 v4, v4")
    a(f"v_mul_f32 v4, {f2u(1/32):#x}, v4")
    a("v_cvt_f32_u32 v5, v5")
    a("v_mul_f32 v5, 0x3e800000, v5")
    a("v_cvt_f32_u32 v6, v6")
    a("v_fma_f32 v5, v6, v4, v5")
    a("v_mul_f32 v6, 0x41100000, v4")
    for kk in range(2):
        for u in range(4):
            a(f"v_cos_f32 v{F[0]}, v5")
            a("v_add_f32 v5, v5, v4")
            a(f"v_cos_f32 v{F[0]+1}, v5")
            a(f"v_add_f32 v5, v5, v{6 if u == 3 else 4}")
            a(f"v_cvt_pk_bf16_f32 v{T+4*kk+u}, v{F[0]}, v{F[0]+1}")
    a.label("P1_noT")

    def reads(var, f, ks):
        if var < 2:
            x = [f"ds_read_b128 {vr(f+4*b,4)}, v{AX+ks} offset:{4096*b}" for b in range(2)]
            t = [f"ds_read_b64_tr_b16 {vr(f+8+4*j+2*q,2)}, v{AB} offset:{8192*j+2048*ks+512*q}" for j in range(2) for q in range(2)]
            return [x[0], t[0], t[1], x[1], t[2], t[3]]
        x = [f"ds_read_b128 {vr(f+4*b,4)}, v{AX+ks} offset:{4096*b}" for b in range(4)]
        t = [f"ds_read_b64_tr_b16 {vr(f+16+2*q,2)}, v{AB} offset:{2048*ks+512*q}" for q in range(2)]
        return [t[0], t[1], x[0], x[1], x[2], x[3]]
    def mf(var, f, n):
        D = ACC + 16 * n
        if var == 2: return mfma(D, f + 4 * n, f + 16)
        b, j = n & 1, n >> 1
        X, B = f + 4 * b, f + 8 + 4 * j
        return mfma(D, B, X) if var == 0 else mfma(D, X, B)
    def fixb(var, f):
        if var == 2:
            for u in range(4): a(f"v_cndmask_b32 v{f+16+u}, v{f+16+u}, v{PV}, s[56:57]")
    W = {0: [3, 5, 6, None], 1: [3, 5, 6, None], 2: [3, 5, 7, 6]}
    if PRETOUCH:
        a("v_lshlrev_b32 v4, 7, v7")
        a("v_lshl_add_u32 v4, v8, 16, v4")
        a("s_lshl_b32 s47, s17, 21")
        a("s_lshl_b32 s48, s19, 19")
        a("s_add_u32 s47, s47, s48")
        a("s_lshl_b32 s48, s18, 12")
        a("s_add_u32 s47, s47, s48")
        a("s_lshl_b32 s48, s16, 17")
        a("s_add_u32 s47, s47, s48")
        a("v_and_b32 v5, 7, v0")
        a("v_lshlrev_b32 v5, 7, v5")
        a("v_and_b32 v6, 8, v0")
        a("v_lshl_add_u32 v5, v6, 9, v5")
        a("v_lshrrev_b32 v6, 4, v0")
        a("v_lshl_add_u32 v5, v6, 17, v5")
        a("s_lshl_b32 s48, s16, 19")
        a("s_lshl_b32 s49, s18, 13")
        a("s_add_u32 s48, s48, s49")
        a("s_lshl_b32 s49, s19, 10")
        a("s_add_u32 s48, s48, s49")
        a(f"s_add_u32 s48, s48, {H_OFF:#x}")
        a("s_cmp_eq_u32 s17, 3")
        a("s_cselect_b32 s47, s48, s47")
        a("s_cselect_b64 vcc, -1, 0")
        a("v_cndmask_b32 v4, v4, v5, vcc")
    a("s_barrier")
    if PRETOUCH: a(f"buffer_store_dword v4, v4, s[28:31], s47 offen {'sc1' if PRETOUCH == 1 else ''}")
    stamp(a, 3)
    if STAMP: a("s_waitcnt lgkmcnt(0)")
    a("s_cmp_eq_u32 s17, 3")
    a("s_cbranch_scc1 P1_pre2")
    for r in reads(0, F[0], 0): a(r)
    a("s_cmp_eq_u32 s17, 2")
    a("s_cbranch_scc1 P1_loop1")
    for var in (0, 1, 2):
        L = f"P1_loop{var}"
        if var == 2:
            a.label("P1_pre2")
            for r in reads(2, F[0], 0): a(r)
        a.label(L)
        for ks in range(3):
            cur, nxt = F[ks & 1], F[(ks + 1) & 1]
            rd = reads(var, nxt, ks + 1)
            if var == 2:
                a("s_waitcnt lgkmcnt(4)")
                fixb(var, cur)
            a(f"s_waitcnt lgkmcnt({W[var][0]})")
            a(mf(var, cur, 0))
            for r in rd[:3]: a(r)
            a(f"s_waitcnt lgkmcnt({W[var][1]})")
            a(mf(var, cur, 1))
            for r in rd[3:]: a(r)
            if ks == 0 and PRETOUCH:
                a("s_cmp_lg_u32 s36, 6")
                a(f"s_cbranch_scc1 {L}_pt")
                a("s_waitcnt vmcnt(0)")
                a.label(f"{L}_pt")
            if ks == 1:
                a("s_add_u32 s38, s38, 1")
                a("s_cmp_lg_u32 s38, 3")
                csel(a, 37, 0x8000, (-0x10000) & 0xffffffff)
                a("s_cselect_b32 s38, s38, 0")
            a(f"s_waitcnt lgkmcnt({W[var][2]})")
            a(mf(var, cur, 2))
            if ks == 2:
                a("s_add_u32 s36, s36, 1")
                for k2 in range(4): a(f"v_add_u32 v{AX+k2}, s37, v{AX+k2}")
                a(f"v_add_u32 v{AB}, s37, v{AB}")
                a("s_cmp_eq_u32 s36, 8")
            if W[var][3] is not None: a(f"s_waitcnt lgkmcnt({W[var][3]})")
            a(mf(var, cur, 3))
        cur, nxt = F[1], F[0]
        if var == 2:
            a("s_waitcnt lgkmcnt(4)")
            fixb(var, cur)
        a(f"s_cbranch_scc1 {L}_last")
        a("s_waitcnt lgkmcnt(3)")
        a(mf(var, cur, 0))
        a("s_waitcnt lgkmcnt(0)")
        a("s_barrier")
        rd = reads(var, nxt, 0)
        for r in rd[:3]: a(r)
        a(mf(var, cur, 1))
        for r in rd[3:]: a(r)
        a(mf(var, cur, 2))
        a(mf(var, cur, 3))
        a(f"s_branch {L}")
        a.label(f"{L}_last")
        a("s_waitcnt lgkmcnt(0)")
        stamp(a, 5)
        for n in range(4): a(mf(var, cur, n))
        if var < 2:
            a("s_lshl_b32 s47, s46, 11")
            a("s_lshl_b32 s48, s45, 17")
            a("s_add_u32 s47, s47, s48")
            if var == 0:
                a(f"v_lshl_add_u32 v{ST}, v0, 4, s47")
            else:
                a("v_and_b32 v4, 15, v0")
                a("v_lshlrev_b32 v4, 4, v4")
                a("v_lshl_add_u32 v4, v8, 8, v4")
                a("v_lshrrev_b32 v5, 4, v7")
                a("v_lshl_add_u32 v4, v5, 16, v4")
                a(f"v_add_u32 v{ST}, s47, v4")
            a("s_lshl_b32 s47, s17, 21")
            a("s_lshl_b32 s48, s19, 19")
            a("s_add_u32 s47, s47, s48")
            a("s_lshl_b32 s48, s18, 12")
            a("s_add_u32 s50, s47, s48")
            a("s_add_u32 s51, s50, 0x10000")
            a("s_add_u32 s52, s50, 0x40000")
            a("s_add_u32 s53, s50, 0x50000")
            for n in range(4):
                b, j = n & 1, n >> 1
                for hh in range(2):
                    d = PK + 4 * (2 * n + hh)
                    for u in range(4):
                        s = ACC + 16 * n + 8 * hh + 2 * u
                        a(f"v_cvt_pk_bf16_f32 v{d+u}, v{s}, v{s+1}")
                    if var == 0: a(f"buffer_store_dwordx4 {vr(d,4)}, v{ST}, s[28:31], s{50+2*j+hh} offen offset:{1024*b} sc1")
                    else: a(f"buffer_store_dwordx4 {vr(d,4)}, v{ST}, s[28:31], s{50+2*j} offen offset:{512*(2*b+hh)} sc1")
            stamp(a, 6)
            a("s_branch P2_start")
        else:
            a("s_lshl_b32 s47, s46, 12")
            a("s_lshl_b32 s48, s19, 10")
            a("s_add_u32 s47, s47, s48")
            a("s_lshl_b32 s48, s45, 9")
            a("s_add_u32 s47, s47, s48")
            a("v_lshlrev_b32 v4, 18, v8")
            a("v_lshl_add_u32 v4, v9, 4, v4")
            a(f"v_add_u32 v{ST}, s47, v4")
            a("s_lshl_b32 s50, s18, 13")
            a(f"s_add_u32 s50, s50, {H_OFF:#x}")
            for b in range(4):
                for u in range(8):
                    s = ACC + 16 * b + 2 * u
                    a(f"v_cvt_pk_bf16_f32 v{PK+8*b+u}, v{s}, v{s+1}")
                a(mfma(AC2 + 16 * b, T, PK + 8 * b, "0"))
                a(mfma(AC2 + 16 * b, T + 4, PK + 8 * b + 4))
            for i in range(8):
                d = ACC + 4 * i
                for pq in range(2):
                    for bp in range(2):
                        a(f"v_cvt_pk_bf16_f32 v{d+2*pq+bp}, v{AC2+32*bp+2*i+pq}, v{AC2+32*bp+16+2*i+pq}")
                a(f"buffer_store_dwordx4 {vr(d,4)}, v{ST}, s[28:31], s50 offen sc1")
                if i < 7: a(f"s_add_u32 s50, s50, {(3 if i & 1 else 1) * 0x20000:#x}")
            stamp(a, 6)

GTT = 247
def phase2(a, ool):
    KF, VF, QF, SD = 8, 44, 116, 120
    SB = [136, 152, 168]
    Z, PM = 184, 200
    P = [208, 216]
    O, GX, GQ, M, NINF = 224, 240, 246, 248, 249
    VH, VL, VQ, AK, AV, VGQ, VGT = 250, 251, 252, 253, 254, 244, 245
    VFL = 255
    if STAMP: MKL = [4, 6, 8, 10, 12, 20, 22, 24, 26, 40, 42, 44, 50, 52, 64, 66]
    else: MKL = [64 + 2 * r for r in range(16)]
    WSRD = 68 if STAMP else 96
    pf = []
    if not WO_IN_P1:
        for i in range(8):
            x = []
            if i == 0: x.append("s_mov_b32 m0, s1")
            if i == 4: x.append("s_add_u32 m0, s1, 0x1000")
            x.append(f"buffer_load_dwordx4 v7, {sr(WSRD,4)}, s0 offen offset:{1024*(i&3)} lds")
            if i < 7: x.append(f"s_add_u32 s0, s0, {(8192 + 3072) if i == 3 else 7168}")
            pf.append(x)
    def pfnext(n=1):
        for _ in range(n):
            if pf:
                for x in pf.pop(0): a(x)
    a.label("P2_start")
    a("s_and_b32 s17, s2, 7")
    a("s_lshl_b32 s17, s17, 2")
    a("s_bfe_u32 s18, s2, 0x20003")
    a("s_or_b32 s17, s17, s18")
    a("s_lshr_b32 s19, s2, 5")
    a("s_lshl_b32 s18, s19, 3")
    a("s_add_u32 s18, s18, s54")
    a(f"v_lshlrev_b32 v{VL}, 4, v0")
    a("s_lshl_b32 s32, s17, 16")
    a("s_lshl_b32 s33, s18, 10")
    a("s_add_u32 s33, s32, s33")
    a("s_cmp_eq_u32 s19, 0")
    a("s_cselect_b32 s34, 0, 0x2000")
    a("s_cselect_b32 s55, 0xff800000, 0")
    a("s_sub_u32 s34, s33, s34")
    a(f"s_add_u32 s35, s33, {K_OFF:#x}")
    a(f"s_add_u32 s36, s34, {K_OFF:#x}")
    a(f"s_add_u32 s37, s33, {V_OFF:#x}")
    a(f"s_add_u32 s38, s34, {V_OFF:#x}")
    a("s_lshl_b32 s39, s54, 10")
    a("s_mov_b32 s46, 0x3f803f80")
    for i in range(4): a(f"v_mov_b32 v{GX+i}, s46")
    a("s_lshl_b32 s46, s54, 11")
    a(f"v_add_u32 v6, s46, v{VL}")
    a(f"ds_write_b128 v6, {vr(GX,4)} offset:0x8000")
    a(f"ds_write_b128 v6, {vr(GX,4)} offset:0x8400")
    a("v_and_b32 v4, 31, v0")
    a("v_lshrrev_b32 v3, 5, v0")
    perm23(a, VQ, 4, 5, 6)
    a("v_lshlrev_b32 v5, 3, v3")
    a(f"v_sub_u32 v5, v{VQ}, v5")
    for r in range(16): a(f"v_cmp_le_i32 {sr(MKL[r],2)}, {16*(r>>3)+(r&7)}, v5")
    a("v_mov_b32 v1, 0xffff")
    a(f"v_mov_b32 v{M}, 0xffff0000")
    for u in range(8):
        a(f"v_cndmask_b32 v{PM+u}, 0, v1, {sr(MKL[2*u],2)}")
        a(f"v_cndmask_b32 v{P[0]}, 0, v{M}, {sr(MKL[2*u+1],2)}")
        a(f"v_or_b32 v{PM+u}, v{PM+u}, v{P[0]}")
    for i in range(16): a(f"v_mov_b32 v{Z+i}, {'s55' if STANDIN else '0'}")
    a(f"v_mov_b32 v{NINF}, 0xff800000")
    a(f"v_add_u32 v{AK}, s39, v{VL}")
    a("v_and_b32 v5, 15, v0")
    a("v_lshl_add_u32 v5, v3, 4, v5")
    a("v_lshl_add_u32 v5, v5, 4, s39")
    a("v_and_b32 v6, 16, v0")
    a(f"v_lshl_add_u32 v{AV}, v6, 10, v5")
    p3_ids(a, 46, 47, 48, 49)
    a("s_and_b32 s49, s54, 1")
    a("s_lshl_b32 s49, s49, 12")
    a("s_lshl_b32 s56, s46, 2")
    a("s_add_u32 s49, s49, s56")
    a(f"v_lshl_add_u32 v{VGT}, v4, 7, s49")
    a("v_and_b32 v5, 4, v0")
    a("v_lshlrev_b32 v5, 2, v5")
    a("v_bfe_u32 v6, v0, 3, 2")
    a("v_lshl_add_u32 v5, v6, 2, v5")
    a("v_and_b32 v6, 3, v0")
    a("v_add_u32 v5, v5, v6")
    a("s_lshl_b32 s56, s47, 6")
    a("s_bfe_u32 s57, s54, 0x10001")
    a("s_lshl_b32 s57, s57, 5")
    a("s_add_u32 s56, s56, s57")
    a("v_add_u32 v5, s56, v5")
    a("v_sub_u32 v6, 0x200, v5")
    a("v_min_u32 v6, v5, v6")
    a("v_and_b32 v5, 0xff, v5")
    a("s_lshr_b32 s57, s54, 2")
    a("s_sub_u32 s56, s57, 1")
    a("v_cmp_eq_u32 vcc, s56, v5")
    a("v_lshlrev_b32 v5, 16, v3")
    a(f"v_lshl_add_u32 v{VH}, v6, 4, v5")
    a("v_mov_b32 v5, 0x7f000000")
    a(f"v_cndmask_b32 v{VH}, v{VH}, v5, vcc")
    a("s_lshl_b32 s57, s57, 12")
    a("s_lshl_b32 s56, s48, 17")
    a("s_add_u32 s56, s56, s57")
    a("s_and_b32 s57, s54, 1")
    a("s_lshl_b32 s57, s57, 15")
    a("s_add_u32 s56, s56, s57")
    a(f"s_add_u32 s56, s56, {H_OFF:#x}")
    a("s_lshl_b32 s57, s54, 12")
    a(f"s_add_u32 s57, s57, {H_L:#x}")
    if not WO_IN_P1:
        a("v_lshrrev_b32 v5, 3, v0")
        a("v_bfe_u32 v6, v0, 4, 1")
        a("v_lshlrev_b32 v6, 2, v6")
        a("v_and_b32 v7, 7, v0")
        a("v_xor_b32 v7, v7, v6")
        a("v_lshlrev_b32 v7, 4, v7")
        a("v_lshl_add_u32 v7, v5, 10, v7")
        a("s_bfe_u32 s3, s2, 0x20003")
        a(f"s_mul_i32 s3, s3, {2 * WOROT}")
        a("s_add_u32 s3, s3, s54")
        a("s_and_b32 s3, s3, 7")
        a("s_lshl_b32 s0, s3, 16")
        a("s_lshl_b32 s1, s47, 7")
        a("s_add_u32 s0, s0, s1")
        a("s_lshl_b32 s1, s3, 13")
        a(f"s_add_u32 s1, s1, {WO_L:#x}")
        srd(a, WSRD, 58, 512 * 1024)
    a("s_lshr_b32 s47, s18, 2")
    a("s_cmp_eq_u32 s19, 0")
    a("s_cselect_b32 s48, 0, 2")
    a("s_sub_u32 s48, s47, s48")
    for r in (47, 48):
        a(f"s_lshr_b32 s49, s{r}, 3")
        a(f"s_and_b32 s{r}, s{r}, 7")
        a(f"s_lshl_b32 s{r}, s{r}, 3")
        a(f"s_or_b32 s{r}, s{r}, s49")
    a("s_sub_u32 s48, s48, 4")
    a("v_mov_b32 v4, s47")
    a("v_mov_b32 v5, s48")
    a("v_cmp_gt_u32 vcc, 3, v0")
    a("s_lshr_b32 s47, s17, 3")
    a("s_lshl_b32 s47, s47, 6")
    a("v_cndmask_b32 v4, v5, v4, vcc")
    a("v_lshl_add_u32 v4, v0, 1, v4")
    a("v_add_lshl_u32 v2, v4, s47, 7")
    a(f"s_mov_b32 s16, {FB_OFF:#x}")
    a(f"v_and_b32 v{VFL}, 7, v0")
    a(f"v_lshlrev_b32 v{VFL}, 7, v{VFL}")
    a(f"s_mov_b32 s46, {f2u(0.25*math.log2(math.e)):#x}")
    a("s_cmp_ge_u32 s54, 4")
    a("s_cbranch_scc1 P2_arr")
    a("s_waitcnt vmcnt(0)")
    a.label("P2_arr")
    a("s_barrier")
    stamp(a, 2)
    a("s_cmp_lg_u32 s54, 0")
    a("s_cbranch_scc1 P2_nf")
    a("v_mov_b32 v1, 1")
    a("s_lshl_b32 s47, s2, 7")
    a(f"s_add_u32 s47, s47, {FL_OFF:#x}")
    a("s_mov_b64 exec, 1")
    a(f"buffer_store_dword v1, v{VL}, s[28:31], s47 offen sc1")
    a("s_lshl_b32 s49, s19, 7")
    a("s_add_u32 s49, s49, s16")
    a("v_mov_b32 v3, 1")
    a(f"buffer_atomic_add v3, v{VL}, s[28:31], s49 offen offset:1024 sc0 sc1")
    a.label("P2_nf")
    a(f"s_mov_b32 s47, {FL_OFF:#x}")
    a("s_mov_b64 exec, 0x1f")
    poll(a, "buffer_load_dword v4, v2, s[28:31], s47 offen sc1", 4, sleep=SLEEP1)
    stamp(a, 7)
    a("s_cmp_lg_u32 s54, 0")
    a("s_cbranch_scc1 P2_nl")
    a("v_readfirstlane_b32 s47, v3")
    a("s_cmp_lg_u32 s47, 31")
    a("s_cbranch_scc1 P2_nl")
    a("s_mov_b64 exec, 1")
    a(f"buffer_store_dword v1, v{VL}, s[28:31], s49 offen sc1")
    a("s_mov_b64 exec, -1")
    a.label("P2_nl")
    a("s_add_u32 m0, s39, 0x2000")
    a(f"buffer_load_dwordx4 v{VL}, s[28:31], s35 offen sc1 lds")
    a(f"buffer_load_dwordx4 {vr(QF,4)}, v{VL}, s[28:31], s33 offen sc1")
    a("s_mov_b32 m0, s39")
    a(f"buffer_load_dwordx4 v{VL}, s[28:31], s36 offen sc1 lds")
    a("s_add_u32 m0, s39, 0x6000")
    a(f"buffer_load_dwordx4 v{VL}, s[28:31], s37 offen sc1 lds")
    a("s_add_u32 m0, s39, 0x4000")
    a(f"buffer_load_dwordx4 v{VL}, s[28:31], s38 offen sc1 lds")
    a("s_waitcnt vmcnt(3)")
    for i in range(4):
        a(f"v_lshlrev_b32 v{GX}, 16, v{QF+i}")
        a(f"v_and_b32 v{GX+1}, 0xffff0000, v{QF+i}")
        a(f"v_mul_f32 v{GX}, s46, v{GX}")
        a(f"v_mul_f32 v{GX+1}, s46, v{GX+1}")
        a(f"v_cvt_pk_bf16_f32 v{QF+i}, v{GX}, v{GX+1}")
    a("s_waitcnt vmcnt(2)")
    stamp(a, 8)
    a("s_waitcnt lgkmcnt(0)")
    a("s_barrier")
    korder = [0, 8, 1, 2, 3, 4, 5, 6, 7]
    for j in korder: a(f"ds_read_b128 {vr(KF+4*j,4)}, v{AK} offset:{(8-j)*1024}")
    def smf(D, j, C): return mfma(D, KF + 4 * j, QF, C)
    def zswitch(a, j, tag):
        a(f"s_cmp_eq_u32 s18, {j-1}")
        a(f"s_cbranch_scc1 P2_o{tag}{j}")
        a.label(f"P2_z{tag}{j}")
        def emit(a, t=f"{tag}{j}"):
            a.label(f"P2_o{t}")
            a("s_nop 6")
            for i in range(16): a(f"v_mov_b32 v{Z+i}, v{NINF}")
            a("s_nop 0")
            a(f"s_branch P2_z{t}")
        ool.append(emit)
    def maxtile(a, S, first):
        if first:
            a(f"v_max3_f32 v{M}, v{S}, v{S+1}, v{S+2}")
            rest = list(range(3, 16))
        else: rest = list(range(16))
        while len(rest) >= 2:
            a(f"v_max3_f32 v{M}, v{M}, v{S+rest[0]}, v{S+rest[1]}"); rest = rest[2:]
        if rest: a(f"v_max_f32 v{M}, v{M}, v{S+rest[0]}")
    def vread(j):
        for u in range(2): a(f"ds_read_b128 {vr(VF+8*j+4*u,4)}, v{AV} offset:{0x4000+(8-j)*1024+512*u}")
    def pv(j, Pb, u, first=False): return mfma(O, VF + 8 * j + 4 * u, Pb + 4 * u, "0" if first else None)
    def truemax(a, tag):
        for i in range(16): a(f"v_mov_b32 v{Z+i}, 0")
        for j in range(1, 8):
            zswitch(a, j, tag)
            a(smf(SB[j % 3], j, vr(Z, 16)))
            if j >= 2: maxtile(a, SB[(j - 1) % 3], j == 2)
        maxtile(a, SB[7 % 3], False)
        for i in range(16): a(f"v_mov_b32 v{Z+i}, s55")
    fbload = f"buffer_load_dword v{GX}, v{VFL}, s[28:31], s16 offen sc1"
    fbpre = []
    def hissue():
        a("s_mov_b32 m0, s57")
        a(f"s_mov_b32 s47, {GT_OFF:#x}")
        a(f"buffer_load_dword v{GTT}, v{VGT}, s[28:31], s47 offen sc1")
        for i in range(4):
            a(f"buffer_load_dwordx4 v{VH}, s[28:31], s56 offen offset:{1024*i} sc1 lds")
            if i < 3: a("s_add_u32 s56, s56, 7168")
    def core(a, main, havemax, tag):
        if main: a("s_waitcnt lgkmcnt(8)")
        a(smf(SD, 0, "0"))
        if main: a("s_waitcnt lgkmcnt(7)")
        a(smf(SB[0], 8, vr(Z, 16)))
        for r in range(16): a(f"v_cndmask_b32 v{SD+r}, v{SB[0]+r}, v{SD+r}, {sr(MKL[r],2)}")
        maxtile(a, SD, not havemax)
        a(f"v_mov_b32 v1, v{M}")
        a(f"v_permlane32_swap_b32 v1, v{M}")
        a(f"v_max_f32 v{M}, v1, v{M}")
        for i in range(16): a(f"v_sub_f32 v{Z+i}, 0, v{M}")
        if main: a("s_waitcnt lgkmcnt(0)")
        zswitch(a, 1, tag)
        a(smf(SB[1], 1, vr(Z, 16)))
        zswitch(a, 2, tag)
        a(smf(SB[2], 2, vr(Z, 16)))
        if main:
            a("s_waitcnt vmcnt(0)")
            a("s_barrier")
            stamp(a, 9)
            if STAMP: a("s_waitcnt lgkmcnt(0)")
            for j in korder[:7]: vread(j)
            if EARLYJ: a(fbload)
            pfnext(2)
        for r in range(16): a(f"v_sub_f32 v{SD+r}, v{SD+r}, v{M}")
        for r in range(16): a(f"v_exp_f32 v{SD+r}, v{SD+r}")
        Pd, Po = P[0], P[1]
        for u in range(8): a(f"v_cvt_pk_bf16_f32 v{Po+u}, v{SD+2*u}, v{SD+2*u+1}")
        for u in range(8): a(f"v_and_b32 v{Pd+u}, v{Po+u}, v{PM+u}")
        if main:
            a("s_waitcnt lgkmcnt(0)")
            for j in korder[7:]: vread(j)
            pfnext(2)
        a(pv(0, Pd, 0, True))
        for u in range(8): a(f"v_xor_b32 v{Po+u}, v{Po+u}, v{Pd+u}")
        a(pv(0, Pd, 1))
        pend = [pv(8, Po, 0), pv(8, Po, 1)]
        for n, j in enumerate(range(1, 8)):
            S = SB[j % 3]; Pb = P[n & 1]
            if main and j == MIDJ:
                if EARLYJ:
                    a("s_cmp_lg_u32 s49, 0")
                    a("s_cbranch_scc1 P2_m1")
                a(fbload)
                a.label("P2_m1")
            if main and j == 6: a("s_waitcnt lgkmcnt(0)")
            for r in range(4): a(f"v_exp_f32 v{S+r}, v{S+r}")
            a(pend.pop(0))
            for r in range(4, 8): a(f"v_exp_f32 v{S+r}, v{S+r}")
            if pend: a(pend.pop(0))
            for u in range(4): a(f"v_cvt_pk_bf16_f32 v{Pb+u}, v{S+2*u}, v{S+2*u+1}")
            if main: pfnext(2)
            for r in range(8, 16): a(f"v_exp_f32 v{S+r}, v{S+r}")
            a(pv(j, Pb, 0))
            for u in range(4, 8): a(f"v_cvt_pk_bf16_f32 v{Pb+u}, v{S+2*u}, v{S+2*u+1}")
            pend.append(pv(j, Pb, 1))
            if j + 2 <= 7:
                zswitch(a, j + 2, tag)
                a(smf(SB[(j + 2) % 3], j + 2, vr(Z, 16)))
            if main and EARLYJ and j == EARLYJ:
                a("s_waitcnt vmcnt(%d)" % (8 - len(pf)))
                for x in fbpre: a(x)
                a(f"v_cmp_eq_u32 vcc, 0, v{GX}")
                a("s_mov_b32 s49, 0")
                a("s_cbranch_vccnz P2_e1")
                a("s_mov_b32 s49, m0")
                hissue()
                a("s_mov_b32 m0, s49")
                a.label("P2_e1")
            if main and j == MIDJ:
                if EARLYJ:
                    a("s_cmp_lg_u32 s49, 0")
                    a("s_cbranch_scc1 P2_m2")
                a("s_waitcnt vmcnt(0)")
                poll(a, fbload, GX, True, sleep=4, pre=fbpre)
                hissue()
                a.label("P2_m2")
        a(pend.pop(0))
    if not STANDIN:
        a("s_waitcnt lgkmcnt(0)")
        truemax(a, "m")
    core(a, True, not STANDIN, "b")
    a("v_and_b32 v4, 7, v0")
    a("v_xor_b32 v5, s54, v4")
    a("v_lshlrev_b32 v5, 4, v5")
    a("v_lshl_add_u32 v5, v0, 7, v5")
    a("v_lshrrev_b32 v6, 3, v0")
    a("v_xor_b32 v4, v4, v6")
    a("s_and_b32 s32, s54, 3")
    a("s_lshl_b32 s32, s32, 3")
    a("v_add_u32 v6, s32, v6")
    perm23(a, 6, 6, 7, 2)
    a("v_lshlrev_b32 v4, 4, v4")
    a("v_lshl_add_u32 v4, v6, 16, v4")
    a("s_lshl_b32 s32, s17, 11")
    a("s_lshr_b32 s33, s19, 2")
    a("s_lshl_b32 s33, s33, 10")
    a("s_add_u32 s32, s32, s33")
    a("s_lshr_b32 s33, s54, 2")
    a("s_lshl_b32 s33, s33, 9")
    a("s_add_u32 s32, s32, s33")
    a("s_and_b32 s33, s19, 3")
    a("s_lshl_b32 s33, s33, 7")
    a("s_add_u32 s32, s32, s33")
    a(f"s_add_u32 s32, s32, {O_OFF:#x}")
    if STANDIN:
        a(f"v_add_f32 v1, |v{O}|, |v{O+1}|")
        a(f"v_add_f32 v2, |v{O+2}|, |v{O+3}|")
        for i in (4, 6):
            a(f"v_add_f32 v1, v1, |v{O+i}|")
            a(f"v_add_f32 v2, v2, |v{O+i+1}|")
        a(f"s_mov_b32 s33, {f2u(2.0**-60):#x}")
        a(f"v_add_f32 v1, v1, v2")
        a(f"v_fma_f32 v1, v1, s33, v{O+8}")
        a(f"v_cmp_ngt_f32 vcc, {f2u(2.0**40):#x}, v1")
        if FORCE_FB: a("s_mov_b64 vcc, -1")
        a("s_cbranch_vccnz P2_fb")
        a.label("P2_fbret")
        def emit(a):
            a.label("P2_fb")
            truemax(a, "f")
            core(a, False, True, "g")
            a("s_nop 11")
            a("s_branch P2_fbret")
        ool.insert(0, emit)
    a(f"v_rcp_f32 v1, v{O+8}")
    for i in range(8): a(f"v_mul_f32 v{O+i}, v{O+i}, v1")
    for u in range(4): a(f"v_cvt_pk_bf16_f32 v{P[0]+u}, v{O+2*u}, v{O+2*u+1}")
    a(f"v_min_u32 v{P[0]}, -2, v{P[0]}")
    a(f"v_min_u32 v{P[0]+3}, -2, v{P[0]+3}")
    a(f"ds_write_b128 v5, {vr(P[0],4)} offset:{OTR_L:#x}")
    stamp(a, 10)
    a("s_waitcnt lgkmcnt(0)" if HBAR else "s_waitcnt vmcnt(0) lgkmcnt(0)")
    a("s_barrier")
    a(f"ds_read_b128 {vr(P[0],4)}, v{AK} offset:{OTR_L:#x}")
    a("s_waitcnt lgkmcnt(0)")
    a(f"buffer_store_dwordx4 {vr(P[0],4)}, v4, s[28:31], s32 offen sc1")

def phase3(a):
    OF, WOF, HF, WF, AC = 8, 40, 104, 136, 152
    RD = 184
    p3_ids(a, 17, 18, 19, 20)
    a("s_and_b32 s20, s54, 1")
    a("s_lshr_b32 s21, s54, 1")
    a("s_lshl_b32 s22, s17, 16")
    a("s_lshl_b32 s23, s21, 14")
    a("s_add_u32 s22, s22, s23")
    a("s_lshl_b32 s24, s20, 10")
    a("s_add_u32 s22, s22, s24")
    a(f"s_add_u32 s22, s22, {O_OFF:#x}")
    a(f"s_mul_i32 s16, s18, {2048 * OROT}")
    a("s_or_b32 s22, s22, s16")
    OS = [32, 33, 34, 35, 44, 45, 46, 47]
    a("v_lshlrev_b32 v7, 4, v0")
    def oload(k): return f"buffer_load_dwordx4 {vr(OF+4*k,4)}, v7, s[28:31], s{OS[k]} offen sc1"
    for k in range(8):
        a(f"s_xor_b32 s{OS[k]}, s22, {2048*k}")
        a(oload(k))
    stamp(a, 11)
    if STAMP: a("s_waitcnt lgkmcnt(0)")
    a("s_and_b32 s25, s21, 1")
    a("s_lshr_b32 s26, s21, 1")
    a("s_lshl_b32 s27, s25, 8")
    a("v_xor_b32 v1, s27, v7")
    a("s_lshl_b32 s27, s21, 11")
    a(f"s_add_u32 s27, s27, {H_L:#x}")
    a("s_lshl_b32 s36, s26, 13")
    a("s_add_u32 s37, s27, s36")
    a("s_xor_b32 s36, s36, 0x2000")
    a("s_add_u32 s36, s27, s36")
    a("v_add_u32 v2, s37, v1")
    a("v_add_u32 v1, s36, v1")
    if HBAR:
        a("s_waitcnt vmcnt(9)")
        a("s_barrier")
    for p in range(2):
        for i in range(2):
            for iw in range(2):
                a(f"ds_read_b128 {vr(HF+16*p+8*i+4*iw,4)}, v{2-iw} offset:{0x4000*p + 1024*i}")
    a("v_and_b32 v2, 31, v0")
    a("v_lshrrev_b32 v3, 5, v0")
    a("s_add_u32 s23, s24, s17")
    a("v_lshl_add_u32 v4, v2, 5, s23")
    a("v_cvt_f32_u32 v5, v4")
    a("s_cmp_gt_u32 s17, 16")
    csel(a, 36, f2u(-1/2048), f2u(1/2048))
    a("s_cselect_b32 s37, 1, 0")
    a("s_lshr_b32 s38, s18, 2")
    a("s_xor_b32 s37, s37, s38")
    a("s_cselect_b32 s38, 0x80008000, 0")
    a("s_xor_b32 s39, s38, 0x80008000")
    a("v_mul_f32 v5, s36, v5")
    a("s_lshl_b32 s36, s21, 3")
    a("v_lshl_add_u32 v6, v3, 5, s36")
    a("v_cvt_f32_u32 v6, v6")
    a("v_mul_f32 v6, v6, v5")
    a("v_fract_f32 v6, v6")
    WA, WB = WF, WF + 8
    for i in range(2):
        for pr in range(2):
            a(f"v_cos_f32 v{RD}, v6")
            a(f"v_sin_f32 v{RD+2}, v6")
            a("v_add_f32 v6, v6, v5")
            a(f"v_cos_f32 v{RD+1}, v6")
            a(f"v_sin_f32 v{RD+3}, v6")
            a("v_add_f32 v6, v6, v5")
            for q in range(4): a(f"v_mul_f32 v{RD+q}, v{GTT}, v{RD+q}")
            a(f"v_cvt_pk_bf16_f32 v{WA+4*i+pr}, v{RD}, v{RD+1}")
            a(f"v_cvt_pk_bf16_f32 v{WA+4*i+2+pr}, v{RD+2}, v{RD+3}")
            a(f"v_xor_b32 v{WB+4*i+2+pr}, s39, v{WA+4*i+pr}")
            a(f"v_xor_b32 v{WB+4*i+pr}, s38, v{WA+4*i+2+pr}")
    a("s_cmp_lg_u32 s19, 0")
    a("s_cbranch_scc1 P3_wdone")
    a("s_cmp_eq_u32 s17, 0")
    a("s_cselect_b64 vcc, -1, 0")
    for q in range(4):
        for pr in range(2):
            a(f"v_cndmask_b32 v{WF+4*q+2+pr}, v{WF+4*q+pr}, 0, vcc")
            a(f"v_cndmask_b32 v{WF+4*q+pr}, 0, v{WF+4*q+pr}, vcc")
    a.label("P3_wdone")
    a("v_lshrrev_b32 v1, 2, v0")
    a("v_and_b32 v1, 3, v1")
    a("v_lshl_add_u32 v5, v3, 3, v1")
    a("v_lshlrev_b32 v5, 7, v5")
    a("v_lshrrev_b32 v1, 1, v1")
    a("v_xor_b32 v1, s26, v1")
    a("v_lshl_add_u32 v5, v1, 6, v5")
    a("v_and_b32 v1, 1, v0")
    a("v_lshl_add_u32 v5, v1, 5, v5")
    a("s_lshl_b32 s36, s25, 4")
    a("v_and_b32 v1, 16, v0")
    a("v_xor_b32 v1, s36, v1")
    a("v_add_u32 v5, v1, v5")
    a("v_and_b32 v1, 2, v0")
    a("v_lshl_add_u32 v5, v1, 2, v5")
    a("s_lshl_b32 s36, s21, 14")
    a(f"s_add_u32 s36, s36, {WO_L:#x}")
    a("s_or_b32 s36, s36, s16")
    a("v_add_u32 v5, s36, v5")
    for k in range(8):
        for iw in range(2): a(f"v_xor_b32 v{RD+2*k+iw}, {2048*k + 64*iw}, v5")
    a("s_waitcnt lgkmcnt(0)")
    wr = []
    for k in range(8):
        for iw in range(2):
            for q in range(2):
                wr.append(f"ds_read_b64_tr_b16 {vr(WOF+8*k+4*iw+2*q,2)}, v{RD+2*k+iw} offset:{512*q}")
    n = 0
    for p in range(2):
        for i in range(2):
            for iw in range(2):
                a(mfma(AC + 16 * iw, HF + 16 * p + 8 * i + 4 * iw, WF + 8 * p + 4 * i, "0" if (p == 0 and i == 0) else None))
                for x in wr[4*n:4*n+4]: a(x)
                n += 1
                if n in (3, 6): a("s_waitcnt lgkmcnt(3)")
    a("v_lshlrev_b32 v4, 10, v4")
    a("v_lshl_add_u32 v4, v3, 5, v4")
    a("s_lshl_b32 s22, s18, 7")
    a("s_lshl_b32 s23, s26, 6")
    a("s_add_u32 s22, s22, s23")
    a("s_lshl_b32 s23, s25, 4")
    a("s_add_u32 s22, s22, s23")
    srd(a, 40, 60, 2 * MB)
    a("s_lshl_b32 s23, s20, 2")
    for i in range(4):
        a(f"s_xor_b32 s36, s21, {i}")
        a("s_add_u32 s36, s36, s23")
        a("s_mul_i32 s36, s36, 0x1800")
        a(f"v_add_u32 v{(1, 2, 3, 5)[i]}, s36, v7")
    a(f"v_add_f32 v{GTT}, 1.0, v{GTT}")
    a(f"v_rcp_f32 v{GTT}, v{GTT}")
    a("s_mov_b32 s36, 0")
    a("s_mov_b32 s48, 0")
    a("s_waitcnt lgkmcnt(0)")
    MS = [4, 6, 8, 10, 12, 24, 26, 38]
    a.label("P3_sweep")
    a("s_mov_b32 s37, s36")
    a("s_waitcnt vmcnt(0)")
    for k in range(8):
        o = OF + 4 * k
        a(f"s_bitcmp1_b32 s36, {k}")
        a(f"s_cbranch_scc1 P3_s{k}")
        a(f"v_max_u32 v6, v{o}, v{o+3}")
        a("v_cmp_eq_u32 vcc, -1, v6")
        a(f"s_mov_b64 {sr(MS[k],2)}, vcc")
        a(f"s_cbranch_vccnz P3_s{k}")
        a(mfma(AC, WOF + 8 * k, o))
        a(mfma(AC + 16, WOF + 8 * k + 4, o))
        a(f"s_bitset1_b32 s36, {k}")
        a.label(f"P3_s{k}")
    a("s_cmp_eq_u32 s36, 0xff")
    a("s_cbranch_scc1 P3_red")
    a("s_add_u32 s48, s48, 1")
    a(f"s_cmp_ge_u32 s48, {SPIN_MAX}")
    a("s_cbranch_scc1 P3_red")
    if PROBE:
        a("s_ff0_i32_b32 s49, s36")
        a("s_lshl_b32 s49, 1, s49")
        a("s_not_b32 s49, s49")
        a("s_cmp_lg_u32 s37, s36")
        a("s_cselect_b32 s37, s36, s49")
    else: a("s_mov_b32 s37, s36")
    if SLEEP3: a(f"s_sleep {SLEEP3}")
    for k in range(8):
        a(f"s_bitcmp1_b32 s37, {k}")
        a(f"s_cbranch_scc1 P3_r{k}")
        a(f"s_mov_b64 exec, {sr(MS[k],2)}")
        a(oload(k))
        a.label(f"P3_r{k}")
    a("s_mov_b64 exec, -1")
    a("s_branch P3_sweep")
    a.label("P3_red")
    stamp(a, 12)
    for i in (1, 2, 3):
        for hf in range(2):
            a(f"ds_write_b128 v{(1, 2, 3, 5)[i]}, {vr(AC+8*i+4*hf,4)} offset:{2048*(i-1)+1024*hf}")
    a("s_waitcnt lgkmcnt(0)")
    a("s_barrier")
    for i in range(6): a(f"ds_read_b128 {vr(RD+4*i,4)}, v1 offset:{1024*i}")
    for i in range(3):
        a(f"s_waitcnt lgkmcnt({4-2*i})")
        for r in range(8): a(f"v_add_f32 v{AC+r}, v{AC+r}, v{RD+8*i+r}")
    for r in range(8): a(f"v_mul_f32 v{AC+r}, v{GTT}, v{AC+r}")
    for u in range(4): a(f"v_cvt_pk_bf16_f32 v{RD+u}, v{AC+2*u}, v{AC+2*u+1}")
    a(f"buffer_store_dwordx4 {vr(RD,4)}, v4, s[40:43], s22 offen {OUTF}")
    stamp_out(a)

def gen():
    a = Asm(); ool = []
    a("s_cmp_ge_u32 s2, 256")
    a("s_cbranch_scc1 F_done")
    stamp(a, 0, True); stamp(a, 1)
    a("s_load_dwordx2 s[4:5], s[0:1], 0")
    a("s_load_dwordx4 s[8:11], s[0:1], 24")
    a("s_load_dwordx2 s[12:13], s[0:1], 48")
    a("s_load_dwordx2 s[58:59], s[0:1], 56")
    a("s_load_dwordx2 s[6:7], s[0:1], 64")
    a("s_load_dwordx4 s[60:63], s[0:1], 72")
    a("s_load_dwordx2 s[14:15], s[0:1], 88")
    a("v_lshrrev_b32 v1, 6, v0")
    a("v_and_b32 v0, 63, v0")
    a("v_readfirstlane_b32 s54, v1")
    phase1(a)
    phase2(a, ool)
    phase3(a)
    a.label("F_done")
    a("s_endpgm")
    i = 0
    while i < len(ool):
        ool[i](a); i += 1
    return a.lines

def build(path):
    head = open(f"cdna_kernels/{NAME}.s.ref").read().split("; Override launch")[0]
    out = head + "; @launch grid=(256,1,1) block=(512,1,1) lds=163840\n" + '.amdgcn_target "amdgcn-amd-amdhsa--gfx950"\n'
    lines = gen()
    lines = fix_hazards(lines, VERB)
    print("lines", len(lines))
    code, kd = kernel_text(NAME + "_kernel", lines, 256, 102)
    open(path, "w").write(out + code + '.section .rodata,"a"\n' + kd)

if __name__ == "__main__":
    for x in list(sys.argv):
        if x.startswith("-D"):
            exec(x[2:], globals()); sys.argv.remove(x)
    if "--stamp" in sys.argv: STAMP = True; sys.argv.remove("--stamp")
    build(sys.argv[1] if len(sys.argv) > 1 else f"cdna_kernels/{NAME}.s")
```

```python
import sys, math, struct
sys.path.insert(0, "work")
from asmlib import *

MB = 1 << 20
Q_OFF, K_OFF, V_OFF, H_OFF, O_OFF, GT_OFF, FL_OFF = 0, 2 * MB, 4 * MB, 6 * MB, 8 * MB, 10 * MB, 10 * MB + 262144
FB_OFF = FL_OFF + 32768
WS_SIZE = 11 * MB
NAME = "gated_mix__spectral_fnet__sliding_block__prompt"
def f2u(f): return struct.unpack("<I", struct.pack("<f", f))[0]

STAMP = False
VERB = False
K1NT = (0, 1)
OUTF = ""
SPIN_MAX = 1 << 16
GATE_AT = 3
MIDJ = 5
STANDIN = 1
FORCE_FB = 0
WO_IN_P1 = 0
CLR_AT = 4
SLEEP1 = 0
SLEEP3 = 2
WOROT = 1
OROT = 1
PROBE = 1
PRETOUCH = 0
TLBW = 1
WOPF = 1
EARLYJ = 0
HBAR = 0
CODEPF = 1
H_L, WO_L, OTR_L = 0x10000, 0x18000, 0xc000
SLOT = [0x8000, 0x10000, 0x0]

ST_OFF = 16 * MB
SB0 = 72
TENC = None
def stamp(a, i, real=False):
    if TENC is not None:
        if i == 0:
            a(f"s_memrealtime {sr(SB0,2)}")
            a("s_waitcnt lgkmcnt(0)")
            a(f"s_mov_b32 s{SB0+2}, s{SB0}")
        elif i == TENC: a(f"s_memrealtime {sr(SB0+2,2)}")
        return
    if STAMP: a(f"{'s_memrealtime' if real else 's_memtime'} {sr(SB0+2*i,2)}")
def stamp_out(a):
    if TENC is not None:
        L = uid("Ltenc")
        a("s_waitcnt vmcnt(0) lgkmcnt(0)")
        stamp(a, 13)
        a("s_waitcnt lgkmcnt(0)")
        a(f"s_sub_u32 s70, s{SB0+2}, s{SB0}")
        a("s_lshl_b32 s70, s70, 2")
        a("s_add_u32 s70, s70, 3000")
        a("s_min_u32 s70, s70, 20000")
        a.label(L)
        a("s_sleep 4")
        a(f"s_memrealtime {sr(SB0+4,2)}")
        a("s_waitcnt lgkmcnt(0)")
        a(f"s_sub_u32 s71, s{SB0+4}, s{SB0}")
        a("s_cmp_lt_u32 s71, s70")
        a(f"s_cbranch_scc1 {L}")
        return
    if not STAMP: return
    a("s_waitcnt vmcnt(0) lgkmcnt(0)")
    stamp(a, 13); stamp(a, 14, True)
    a("s_waitcnt lgkmcnt(0)")
    for i in range(15): a(f"v_writelane_b32 v1, s{SB0+2*i}, {i}")
    a("v_lshlrev_b32 v2, 2, v0")
    a("s_lshl_b32 s70, s2, 9")
    a("s_lshl_b32 s71, s54, 6")
    a("s_add_u32 s70, s70, s71")
    a(f"s_add_u32 s70, s70, {ST_OFF:#x}")
    a("v_add_u32 v2, s70, v2")
    a("s_mov_b64 exec, 0xffff")
    a("global_store_dword v2, v1, s[14:15]")

def srd(a, d, base, size):
    a(f"s_mov_b32 s{d}, s{base}")
    a(f"s_mov_b32 s{d+1}, s{base+1}")
    a(f"s_mov_b32 s{d+2}, {size:#x}")
    a(f"s_mov_b32 s{d+3}, 0x20000")
def csel(a, d, x, y):
    a(f"s_mov_b32 s{d}, {y:#x}")
    a(f"s_cselect_b32 s{d}, {x:#x}, s{d}")
def perm23(a, dst, src, t1, t2):
    a(f"v_and_b32 v{t1}, 0x13, v{src}")
    a(f"v_and_b32 v{t2}, 4, v{src}")
    a(f"v_lshl_or_b32 v{t1}, v{t2}, 1, v{t1}")
    a(f"v_and_b32 v{t2}, 8, v{src}")
    a(f"v_lshrrev_b32 v{t2}, 1, v{t2}")
    a(f"v_or_b32 v{dst}, v{t1}, v{t2}")
def mfma(D, A, B, C=None):
    return f"v_mfma_f32_32x32x16_bf16 {vr(D,16)}, {vr(A,4)}, {vr(B,4)}, {vr(D,16) if C is None else C}"
_uid = [0]
def uid(p):
    _uid[0] += 1; return f"{p}{_uid[0]}"

def poll(a, load, vdata, first_loaded=False, sleep=0, pre=()):
    L = uid("Lpoll")
    a("s_mov_b32 s48, 0")
    if first_loaded: a(f"s_branch {L}c")
    if sleep and not first_loaded: a(f"s_branch {L}l")
    a.label(L)
    if sleep: a(f"s_sleep {sleep}")
    a.label(L + "l")
    a(load)
    a("s_waitcnt vmcnt(0)")
    a.label(L + "c")
    for x in pre: a(x)
    a(f"v_cmp_eq_u32 vcc, 0, v{vdata}")
    a("s_add_u32 s48, s48, 1")
    a(f"s_cmp_ge_u32 s48, {SPIN_MAX}")
    a(f"s_cbranch_scc1 {L}x")
    a("s_and_b64 exec, exec, vcc")
    a(f"s_cbranch_scc1 {L}")
    a.label(L + "x")
    a("s_mov_b64 exec, -1")

def p3_ids(a, t1, et, tau, tmp):
    a(f"s_and_b32 s{tau}, s2, 7")
    a(f"s_lshl_b32 s{tau}, s{tau}, 1")
    a(f"s_bfe_u32 s{tmp}, s2, 0x10003")
    a(f"s_or_b32 s{tau}, s{tau}, s{tmp}")
    a(f"s_sub_u32 s{tmp}, 32, s{tau}")
    a(f"s_cmp_eq_u32 s{tau}, 0")
    a(f"s_cselect_b32 s{tmp}, 16, s{tmp}")
    a("s_bitcmp1_b32 s2, 4")
    a(f"s_cselect_b32 s{t1}, s{tmp}, s{tau}")
    a(f"s_lshr_b32 s{et}, s2, 5")

def phase1(a):
    XO, BO, AX, AB, PV, ST = 10, 14, 18, 22, 24, 25
    F = [28, 48]
    ACC, T, PK, AC2 = 68, 132, 140, 172
    a("s_bfe_u32 s17, s2, 0x20001")
    a("s_and_b32 s18, s2, 1")
    a("s_lshl_b32 s18, s18, 3")
    a("s_bfe_u32 s39, s2, 0x30003")
    a("s_or_b32 s18, s18, s39")
    a("s_lshr_b32 s19, s2, 6")
    a("s_and_b32 s16, s54, 3")
    a("s_and_b32 s45, s16, 1")
    a("s_lshr_b32 s46, s16, 1")
    a("s_cmp_lt_u32 s54, 4")
    a("s_cbranch_scc1 P1_compute")
    a("s_lshl_b32 s40, s18, 7")
    a("s_lshl_b32 s41, s16, 5")
    a("s_add_u32 s40, s40, s41")
    a("s_lshl_b32 s41, s18, 2")
    a("s_add_u32 s41, s41, s16")
    a("s_cmp_eq_u32 s17, 3")
    a("s_cselect_b32 s40, s41, s40")
    a("s_cselect_b32 s41, 16, 10")
    csel(a, 42, 0x7fc00, 0x1c00)
    csel(a, 43, 0x400, 0xc00)
    a("s_lshl_b32 s40, s40, 10")
    a("v_lshrrev_b32 v2, 3, v0")
    a("v_and_b32 v3, 7, v0")
    a("v_lshlrev_b32 v4, s41, v2")
    a("v_add_u32 v4, s40, v4")
    a("v_lshrrev_b32 v5, 1, v2")
    a("v_xor_b32 v6, v3, v5")
    a("v_lshl_add_u32 v%d, v6, 4, v4" % XO)
    a("v_xor_b32 v6, 4, v6")
    a("v_lshl_add_u32 v%d, v6, 4, v4" % (XO + 1))
    a("v_add_u32 v%d, s42, v%d" % (XO + 1, XO + 1))
    a("s_lshl_b32 s44, s42, 1")
    a("v_add_u32 v%d, s44, v%d" % (XO + 2, XO))
    a("v_add_u32 v%d, s44, v%d" % (XO + 3, XO + 1))
    a("s_lshl_b32 s47, s17, 10")
    a("s_lshl_b32 s48, s19, 8")
    a("s_add_u32 s47, s47, s48")
    a("s_lshl_b32 s48, s46, 7")
    a("s_add_u32 s47, s47, s48")
    a("s_lshl_b32 s48, s19, 7")
    a("s_cmp_eq_u32 s17, 3")
    a("s_cselect_b32 s47, s48, s47")
    a("s_lshl_b32 s48, s45, 5")
    a("s_mul_i32 s48, s48, s43")
    a("s_add_u32 s47, s47, s48")
    a("v_mul_lo_u32 v4, v2, s43")
    a("v_add_u32 v4, s47, v4")
    a("v_and_b32 v5, 1, v5")
    a("v_lshlrev_b32 v5, 2, v5")
    a("v_xor_b32 v5, v3, v5")
    a("v_lshl_add_u32 v%d, v5, 4, v4" % BO)
    a("s_lshl_b32 s48, s43, 3")
    a("s_sub_u32 s48, s48, 0x400")
    for i in range(1, 4): a("v_add_u32 v%d, s48, v%d" % (BO + i, BO + i - 1))
    a("s_lshl_b32 s34, s43, 6")
    a("s_lshl_b32 s35, s16, 12")
    a("s_lshl_b32 s49, s17, 2")
    a("s_add_u32 s49, s49, s19")
    a("s_add_u32 s32, s49, s18")
    a("s_and_b32 s32, s32, 7")
    a("s_mul_i32 s33, s32, s34")
    a("s_lshl_b32 s32, s32, 7")
    a("s_waitcnt lgkmcnt(0)")
    if TENC is not None: stamp(a, 20)
    srd(a, 20, 4, 2 * MB)
    a("s_cmp_eq_u32 s46, 0")
    a("s_cselect_b32 s24, s8, s10")
    a("s_cselect_b32 s25, s9, s11")
    a("s_cmp_eq_u32 s17, 3")
    a("s_cselect_b32 s24, s24, s12")
    a("s_cselect_b32 s25, s25, s13")
    csel(a, 26, 0x80000, 0x180000)
    a("s_mov_b32 s27, 0x20000")
    ops = []
    def issue(c):
        if c < 8:
            sl = SLOT[c % 3]
            a(f"s_add_u32 m0, s35, {sl:#x}")
            for i in range(4): a(f"buffer_load_dwordx4 v{XO+i}, s[20:23], s32 offen offset:{1024*i} {'nt' if c < K1NT[0] else ''} lds")
            a(f"s_add_u32 m0, s35, {sl+0x4000:#x}")
            for i in range(4): a(f"buffer_load_dwordx4 v{BO+i}, s[24:27], s33 offen offset:{1024*i} {'nt' if c < K1NT[1] else ''} lds")
            if c < 7:
                a("s_add_u32 s33, s33, s34")
                a("s_add_u32 s32, s32, 128")
                a("s_and_b32 s32, s32, 0x3ff")
                a("s_cselect_b32 s33, s33, 0")
        ops.extend([('c', c)] * 8)
    def allowed(tag):
        last = max(i for i, o in enumerate(ops) if o == tag)
        return len(ops) - 1 - last
    a("s_lshl_b32 s44, s17, 3")
    a("s_or_b32 s44, s44, s54")
    a("s_cmp_eq_u32 s44, 7")
    a("s_cselect_b32 s44, 1, 0")
    a("v_lshlrev_b32 v6, 4, v0")
    a("s_cbranch_scc0 P1_ng0")
    srd(a, 40, 6, 1024)
    a(f"s_mov_b32 m0, {WO_L:#x}")
    a("v_lshrrev_b32 v7, 5, v0")
    a("buffer_load_dwordx4 v6, s[40:43], 0 offen lds")
    a("v_lshlrev_b32 v9, 6, v7")
    a("v_add_u32 v9, s32, v9")
    a.label("P1_ng0")
    issue(0); issue(1)
    a("v_lshlrev_b32 v8, 2, v0")
    srd(a, 28, 14, WS_SIZE)
    GA, GD = 44, 52
    a("v_and_b32 v1, 31, v0")
    a("v_lshrrev_b32 v2, 1, v1")
    a("v_and_b32 v2, 7, v2")
    a("v_lshrrev_b32 v3, 5, v0")
    a("v_lshlrev_b32 v3, 2, v3")
    a("v_xor_b32 v2, v2, v3")
    a("s_lshl_b32 s47, s19, 12")
    a("v_lshl_add_u32 v1, v1, 7, s47")
    for i in range(4):
        a(f"v_xor_b32 v3, {i}, v2")
        a(f"v_lshl_add_u32 v{GA+i}, v3, 4, v1")
        a(f"v_add_u32 v{GA+4+i}, 0x10000, v{GA+i}")
    a("v_mov_b32 v1, 0")
    dbgload = "global_load_dword v40, v8, s[62:63] sc1"
    for c in range(8):
        a("s_waitcnt vmcnt(%d)" % allowed(('c', c)))
        if c == 0: stamp(a, 3)
        if c == 7: stamp(a, 4)
        a("s_barrier")
        a("s_cmp_eq_u32 s44, 0")
        a(f"s_cbranch_scc1 P1_nr{c}")
        sl = SLOT[c % 3]
        a(f"v_add_u32 v2, {WO_L:#x}, v9")
        for i in range(4):
            a(f"ds_read_b128 {vr(GD+8*i,4)}, v{GA+i+(4 if sl >= 0x10000 else 0)} offset:{sl & 0xffff}")
            a(f"ds_read_b128 {vr(GD+8*i+4,4)}, v2 offset:{16*i}")
        a("v_add_u32 v9, 0x80, v9")
        a("v_and_b32 v9, 0x3ff, v9")
        a.label(f"P1_nr{c}")
        if c == 6:
            a(dbgload); ops += [('d', 0)]
        if c + 2 < 8: issue(c + 2)
        if c == CLR_AT:
            for i in range(4): a(f"v_mov_b32 v{PK+12+i}, -1")
            a("s_lshl_b32 s47, s2, 13")
            a("s_lshl_b32 s48, s16, 11")
            a("s_add_u32 s47, s47, s48")
            a(f"s_add_u32 s47, s47, {O_OFF:#x}")
            a(f"buffer_store_dwordx4 {vr(PK+12,4)}, v6, s[28:31], s47 offen sc1")
            a(f"buffer_store_dwordx4 {vr(PK+12,4)}, v6, s[28:31], s47 offen offset:1024 sc1")
            ops += [('z', 0)] * 2
        a("s_cmp_eq_u32 s44, 0")
        a(f"s_cbranch_scc1 P1_ng{c+1}")
        for i in range(4):
            a(f"s_waitcnt lgkmcnt({6-2*i})")
            for u in range(4): a(f"v_dot2c_f32_bf16 v1, v{GD+8*i+u}, v{GD+8*i+4+u}")
        if c == 7:
            a("v_mov_b32 v2, v1")
            a("v_permlane32_swap_b32 v2, v1")
            a("v_add_f32 v1, v1, v2")
            a("v_min_f32 v1, 0x41f00000, v1")
            a(f"v_mul_f32 v1, {f2u(math.log2(math.e)):#x}, v1")
            a("v_exp_f32 v1, v1")
            a("s_lshl_b32 s47, s18, 2")
            a("s_add_u32 s47, s47, s19")
            a("s_lshl_b32 s47, s47, 7")
            a(f"s_add_u32 s47, s47, {GT_OFF:#x}")
            a("s_mov_b32 exec_hi, 0")
            a("buffer_store_dword v1, v8, s[28:31], s47 offen sc1")
            a("s_mov_b64 exec, -1")
        a.label(f"P1_ng{c+1}")
    a("s_waitcnt vmcnt(0)")
    poll(a, dbgload, 40, True)
    if WOPF:
        a("s_cmp_ge_u32 s16, 2")
        a("s_cbranch_scc1 P2_start")
        a("s_lshr_b32 s47, s2, 3")
        a("s_lshl_b32 s47, s47, 1")
        a("s_add_u32 s47, s47, s16")
        a("s_lshl_b32 s47, s47, 13")
        a("v_lshl_add_u32 v1, v0, 7, s47")
        a("global_load_dword v41, v1, s[58:59]")
    a("s_branch P2_start")
    a.label("P1_compute")
    a("v_and_b32 v7, 31, v0")
    a("v_lshrrev_b32 v8, 5, v0")
    perm23(a, 9, 7, 4, 5)
    a("s_lshl_b32 s47, s46, 13")
    a("s_cmp_eq_u32 s17, 3")
    a("s_cselect_b32 s48, s47, 0")
    a("s_cselect_b32 s47, 0, s47")
    a(f"s_add_u32 s48, s48, {0x4000 + SLOT[0]:#x}")
    a(f"s_add_u32 s47, s47, {SLOT[0]:#x}")
    a("v_lshlrev_b32 v4, 7, v9")
    a("v_add_u32 v4, s47, v4")
    a("v_lshrrev_b32 v5, 1, v9")
    a("v_and_b32 v5, 7, v5")
    a("v_xor_b32 v5, v5, v8")
    for ks in range(4):
        a(f"v_xor_b32 v6, {2*ks}, v5")
        a(f"v_lshl_add_u32 v{AX+ks}, v6, 4, v4")
    a("v_lshrrev_b32 v4, 2, v0")
    a("v_and_b32 v4, 3, v4")
    a("v_lshl_add_u32 v5, v8, 3, v4")
    a("v_lshlrev_b32 v5, 7, v5")
    a("v_lshrrev_b32 v4, 1, v4")
    a("v_xor_b32 v4, s45, v4")
    a("v_lshl_add_u32 v5, v4, 6, v5")
    a("v_and_b32 v4, 16, v0")
    a("v_lshl_add_u32 v5, v4, 1, v5")
    a("v_and_b32 v4, 1, v0")
    a("v_lshl_add_u32 v5, v4, 4, v5")
    a("v_and_b32 v4, 2, v0")
    a("v_lshl_add_u32 v5, v4, 2, v5")
    a(f"v_add_u32 v{AB}, s48, v5")
    for i in range(64): a(f"v_mov_b32 v{ACC+i}, 0")
    a("v_lshlrev_b32 v4, 4, v0")
    a("s_waitcnt lgkmcnt(0)")
    srd(a, 28, 14, WS_SIZE)
    if TLBW:
        a("s_cmp_lg_u32 s54, 1")
        a("s_cbranch_scc1 P1_notlb")
        a("v_lshlrev_b32 v5, 20, v0")
        a("v_mov_b32 v6, 0")
        a("s_mov_b64 exec, 0x7ff")
        a(f"buffer_load_dword v{AC2}, v5, s[28:31], 0 offen")
        a("s_mov_b64 exec, 1")
        a(f"global_load_dword v{AC2+1}, v6, s[58:59]")
        a(f"global_load_dword v{AC2+2}, v6, s[60:61]")
        a("s_mov_b64 exec, -1")
        a("s_waitcnt vmcnt(0)")
        a.label("P1_notlb")
    a("s_lshl_b32 s48, s54, 8")
    a("s_or_b32 s48, s48, s2")
    a("s_cmp_ge_u32 s48, 64")
    a("s_cbranch_scc1 P1_noinit")
    a("s_lshl_b32 s48, s2, 9")
    a(f"s_add_u32 s48, s48, {FL_OFF:#x}")
    a("s_cmp_lg_u32 s2, 0")
    a("s_cbranch_scc1 P1_init1")
    a(f"s_mov_b32 s47, {FB_OFF:#x}")
    a(f"buffer_store_dwordx4 {vr(ACC,4)}, v4, s[28:31], s47 offen sc1")
    a(f"buffer_store_dwordx4 {vr(ACC,4)}, v4, s[28:31], s47 offen offset:1024 sc1")
    a.label("P1_init1")
    a("s_mov_b32 exec_hi, 0")
    a(f"buffer_store_dwordx4 {vr(ACC,4)}, v4, s[28:31], s48 offen sc1")
    a("v_mov_b32 v5, 1")
    a("s_lshl_b32 s48, s2, 2")
    a("v_mov_b32 v6, s48")
    a("s_waitcnt vmcnt(0)")
    a("s_mov_b64 exec, 1")
    a("global_store_dword v6, v5, s[62:63] sc1")
    a("s_mov_b64 exec, -1")
    a.label("P1_noinit")
    a("s_mov_b32 s36, 0")
    a("s_mov_b32 s38, 1")
    a("s_cmp_lg_u32 s17, 3")
    a("s_cbranch_scc1 P1_noT")
    a("s_lshl_b32 s47, s19, 2")
    a("s_or_b32 s47, s47, s16")
    a("s_cmp_eq_u32 s47, 2")
    a("s_cselect_b32 s56, 1, 0")
    a("s_mov_b32 s57, s56")
    a(f"v_mov_b32 v{PV}, 0xbf803f80")
    a("v_lshrrev_b32 v4, 1, v7")
    a("v_cmp_eq_u32 vcc, 1, v7")
    a("v_and_b32 v5, 1, v7")
    a("v_lshlrev_b32 v6, 3, v8")
    a("v_cndmask_b32 v4, v4, 16, vcc")
    a("v_cndmask_b32 v5, v5, 0, vcc")
    a("v_cvt_f32_u32 v4, v4")
    a(f"v_mul_f32 v4, {f2u(1/32):#x}, v4")
    a("v_cvt_f32_u32 v5, v5")
    a("v_mul_f32 v5, 0x3e800000, v5")
    a("v_cvt_f32_u32 v6, v6")
    a("v_fma_f32 v5, v6, v4, v5")
    a("v_mul_f32 v6, 0x41100000, v4")
    for kk in range(2):
        for u in range(4):
            a(f"v_cos_f32 v{F[0]}, v5")
            a("v_add_f32 v5, v5, v4")
            a(f"v_cos_f32 v{F[0]+1}, v5")
            a(f"v_add_f32 v5, v5, v{6 if u == 3 else 4}")
            a(f"v_cvt_pk_bf16_f32 v{T+4*kk+u}, v{F[0]}, v{F[0]+1}")
    a.label("P1_noT")

    def reads(var, f, ks):
        if var < 2:
            x = [f"ds_read_b128 {vr(f+4*b,4)}, v{AX+ks} offset:{4096*b}" for b in range(2)]
            t = [f"ds_read_b64_tr_b16 {vr(f+8+4*j+2*q,2)}, v{AB} offset:{8192*j+2048*ks+512*q}" for j in range(2) for q in range(2)]
            return [x[0], t[0], t[1], x[1], t[2], t[3]]
        x = [f"ds_read_b128 {vr(f+4*b,4)}, v{AX+ks} offset:{4096*b}" for b in range(4)]
        t = [f"ds_read_b64_tr_b16 {vr(f+16+2*q,2)}, v{AB} offset:{2048*ks+512*q}" for q in range(2)]
        return [t[0], t[1], x[0], x[1], x[2], x[3]]
    def mf(var, f, n):
        D = ACC + 16 * n
        if var == 2: return mfma(D, f + 4 * n, f + 16)
        b, j = n & 1, n >> 1
        X, B = f + 4 * b, f + 8 + 4 * j
        return mfma(D, B, X) if var == 0 else mfma(D, X, B)
    def fixb(var, f):
        if var == 2:
            for u in range(4): a(f"v_cndmask_b32 v{f+16+u}, v{f+16+u}, v{PV}, s[56:57]")
    W = {0: [3, 5, 6, None], 1: [3, 5, 6, None], 2: [3, 5, 7, 6]}
    if PRETOUCH:
        a("v_lshlrev_b32 v4, 7, v7")
        a("v_lshl_add_u32 v4, v8, 16, v4")
        a("s_lshl_b32 s47, s17, 21")
        a("s_lshl_b32 s48, s19, 19")
        a("s_add_u32 s47, s47, s48")
        a("s_lshl_b32 s48, s18, 12")
        a("s_add_u32 s47, s47, s48")
        a("s_lshl_b32 s48, s16, 17")
        a("s_add_u32 s47, s47, s48")
        a("v_and_b32 v5, 7, v0")
        a("v_lshlrev_b32 v5, 7, v5")
        a("v_and_b32 v6, 8, v0")
        a("v_lshl_add_u32 v5, v6, 9, v5")
        a("v_lshrrev_b32 v6, 4, v0")
        a("v_lshl_add_u32 v5, v6, 17, v5")
        a("s_lshl_b32 s48, s16, 19")
        a("s_lshl_b32 s49, s18, 13")
        a("s_add_u32 s48, s48, s49")
        a("s_lshl_b32 s49, s19, 10")
        a("s_add_u32 s48, s48, s49")
        a(f"s_add_u32 s48, s48, {H_OFF:#x}")
        a("s_cmp_eq_u32 s17, 3")
        a("s_cselect_b32 s47, s48, s47")
        a("s_cselect_b64 vcc, -1, 0")
        a("v_cndmask_b32 v4, v4, v5, vcc")
    a("s_waitcnt vmcnt(0)")
    a("s_barrier")
    if PRETOUCH: a(f"buffer_store_dword v4, v4, s[28:31], s47 offen {'sc1' if PRETOUCH == 1 else ''}")
    stamp(a, 3)
    if STAMP: a("s_waitcnt lgkmcnt(0)")
    a("s_cmp_eq_u32 s17, 3")
    a("s_cbranch_scc1 P1_pre2")
    for r in reads(0, F[0], 0): a(r)
    a("s_cmp_eq_u32 s17, 2")
    a("s_cbranch_scc1 P1_loop1")
    for var in (0, 1, 2):
        L = f"P1_loop{var}"
        if var == 2:
            a.label("P1_pre2")
            for r in reads(2, F[0], 0): a(r)
        a.label(L)
        for ks in range(3):
            cur, nxt = F[ks & 1], F[(ks + 1) & 1]
            rd = reads(var, nxt, ks + 1)
            if var == 2:
                a("s_waitcnt lgkmcnt(4)")
                fixb(var, cur)
            a(f"s_waitcnt lgkmcnt({W[var][0]})")
            a(mf(var, cur, 0))
            for r in rd[:3]: a(r)
            a(f"s_waitcnt lgkmcnt({W[var][1]})")
            a(mf(var, cur, 1))
            for r in rd[3:]: a(r)
            if ks == 0 and PRETOUCH:
                a("s_cmp_lg_u32 s36, 6")
                a(f"s_cbranch_scc1 {L}_pt")
                a("s_waitcnt vmcnt(0)")
                a.label(f"{L}_pt")
            if ks == 1:
                a("s_add_u32 s38, s38, 1")
                a("s_cmp_lg_u32 s38, 3")
                csel(a, 37, 0x8000, (-0x10000) & 0xffffffff)
                a("s_cselect_b32 s38, s38, 0")
            a(f"s_waitcnt lgkmcnt({W[var][2]})")
            a(mf(var, cur, 2))
            if ks == 2:
                a("s_add_u32 s36, s36, 1")
                for k2 in range(4): a(f"v_add_u32 v{AX+k2}, s37, v{AX+k2}")
                a(f"v_add_u32 v{AB}, s37, v{AB}")
                a("s_cmp_eq_u32 s36, 8")
            if W[var][3] is not None: a(f"s_waitcnt lgkmcnt({W[var][3]})")
            a(mf(var, cur, 3))
        cur, nxt = F[1], F[0]
        if var == 2:
            a("s_waitcnt lgkmcnt(4)")
            fixb(var, cur)
        a(f"s_cbranch_scc1 {L}_last")
        a("s_waitcnt lgkmcnt(3)")
        a(mf(var, cur, 0))
        a("s_waitcnt lgkmcnt(0)")
        a("s_barrier")
        rd = reads(var, nxt, 0)
        for r in rd[:3]: a(r)
        a(mf(var, cur, 1))
        for r in rd[3:]: a(r)
        a(mf(var, cur, 2))
        a(mf(var, cur, 3))
        a(f"s_branch {L}")
        a.label(f"{L}_last")
        a("s_waitcnt lgkmcnt(0)")
        stamp(a, 5)
        for n in range(4): a(mf(var, cur, n))
        if var < 2:
            a("s_lshl_b32 s47, s46, 11")
            a("s_lshl_b32 s48, s45, 17")
            a("s_add_u32 s47, s47, s48")
            if var == 0:
                a(f"v_lshl_add_u32 v{ST}, v0, 4, s47")
            else:
                a("v_and_b32 v4, 15, v0")
                a("v_lshlrev_b32 v4, 4, v4")
                a("v_lshl_add_u32 v4, v8, 8, v4")
                a("v_lshrrev_b32 v5, 4, v7")
                a("v_lshl_add_u32 v4, v5, 16, v4")
                a(f"v_add_u32 v{ST}, s47, v4")
            a("s_lshl_b32 s47, s17, 21")
            a("s_lshl_b32 s48, s19, 19")
            a("s_add_u32 s47, s47, s48")
            a("s_lshl_b32 s48, s18, 12")
            a("s_add_u32 s50, s47, s48")
            a("s_add_u32 s51, s50, 0x10000")
            a("s_add_u32 s52, s50, 0x40000")
            a("s_add_u32 s53, s50, 0x50000")
            for n in range(4):
                b, j = n & 1, n >> 1
                for hh in range(2):
                    d = PK + 4 * (2 * n + hh)
                    for u in range(4):
                        s = ACC + 16 * n + 8 * hh + 2 * u
                        a(f"v_cvt_pk_bf16_f32 v{d+u}, v{s}, v{s+1}")
                    if var == 0: a(f"buffer_store_dwordx4 {vr(d,4)}, v{ST}, s[28:31], s{50+2*j+hh} offen offset:{1024*b} sc1")
                    else: a(f"buffer_store_dwordx4 {vr(d,4)}, v{ST}, s[28:31], s{50+2*j} offen offset:{512*(2*b+hh)} sc1")
            stamp(a, 6)
            a("s_branch P2_start")
        else:
            a("s_lshl_b32 s47, s46, 12")
            a("s_lshl_b32 s48, s19, 10")
            a("s_add_u32 s47, s47, s48")
            a("s_lshl_b32 s48, s45, 9")
            a("s_add_u32 s47, s47, s48")
            a("v_lshlrev_b32 v4, 18, v8")
            a("v_lshl_add_u32 v4, v9, 4, v4")
            a(f"v_add_u32 v{ST}, s47, v4")
            a("s_lshl_b32 s50, s18, 13")
            a(f"s_add_u32 s50, s50, {H_OFF:#x}")
            for b in range(4):
                for u in range(8):
                    s = ACC + 16 * b + 2 * u
                    a(f"v_cvt_pk_bf16_f32 v{PK+8*b+u}, v{s}, v{s+1}")
                a(mfma(AC2 + 16 * b, T, PK + 8 * b, "0"))
                a(mfma(AC2 + 16 * b, T + 4, PK + 8 * b + 4))
            for i in range(8):
                d = ACC + 4 * i
                for pq in range(2):
                    for bp in range(2):
                        a(f"v_cvt_pk_bf16_f32 v{d+2*pq+bp}, v{AC2+32*bp+2*i+pq}, v{AC2+32*bp+16+2*i+pq}")
                a(f"buffer_store_dwordx4 {vr(d,4)}, v{ST}, s[28:31], s50 offen sc1")
                if i < 7: a(f"s_add_u32 s50, s50, {(3 if i & 1 else 1) * 0x20000:#x}")
            stamp(a, 6)

GTT = 247
def phase2(a, ool):
    KF, VF, QF, SD = 8, 44, 116, 120
    SB = [136, 152, 168]
    Z, PM = 184, 200
    P = [208, 216]
    O, GX, GQ, M, NINF = 224, 240, 246, 248, 249
    VH, VL, VQ, AK, AV, VGQ, VGT = 250, 251, 252, 253, 254, 244, 245
    VFL = 255
    if STAMP: MKL = [4, 6, 8, 10, 12, 20, 22, 24, 26, 40, 42, 44, 50, 52, 64, 66]
    else: MKL = [64 + 2 * r for r in range(16)]
    WSRD = 68 if STAMP else 96
    pf = []
    if not WO_IN_P1:
        for i in range(8):
            x = []
            if i == 0: x.append("s_mov_b32 m0, s1")
            if i == 4: x.append("s_add_u32 m0, s1, 0x1000")
            x.append(f"buffer_load_dwordx4 v7, {sr(WSRD,4)}, s0 offen offset:{1024*(i&3)} lds")
            if i < 7: x.append(f"s_add_u32 s0, s0, {(8192 + 3072) if i == 3 else 7168}")
            pf.append(x)
    def pfnext(n=1):
        for _ in range(n):
            if pf:
                for x in pf.pop(0): a(x)
    a.label("P2_start")
    a("s_and_b32 s17, s2, 7")
    a("s_lshl_b32 s17, s17, 2")
    a("s_bfe_u32 s18, s2, 0x20003")
    a("s_or_b32 s17, s17, s18")
    a("s_lshr_b32 s19, s2, 5")
    a("s_lshl_b32 s18, s19, 3")
    a("s_add_u32 s18, s18, s54")
    a(f"v_lshlrev_b32 v{VL}, 4, v0")
    a("s_lshl_b32 s32, s17, 16")
    a("s_lshl_b32 s33, s18, 10")
    a("s_add_u32 s33, s32, s33")
    a("s_cmp_eq_u32 s19, 0")
    a("s_cselect_b32 s34, 0, 0x2000")
    a("s_cselect_b32 s55, 0xff800000, 0")
    a("s_sub_u32 s34, s33, s34")
    a(f"s_add_u32 s35, s33, {K_OFF:#x}")
    a(f"s_add_u32 s36, s34, {K_OFF:#x}")
    a(f"s_add_u32 s37, s33, {V_OFF:#x}")
    a(f"s_add_u32 s38, s34, {V_OFF:#x}")
    a("s_lshl_b32 s39, s54, 10")
    a("s_mov_b32 s46, 0x3f803f80")
    for i in range(4): a(f"v_mov_b32 v{GX+i}, s46")
    a("s_lshl_b32 s46, s54, 11")
    a(f"v_add_u32 v6, s46, v{VL}")
    a(f"ds_write_b128 v6, {vr(GX,4)} offset:0x8000")
    a(f"ds_write_b128 v6, {vr(GX,4)} offset:0x8400")
    a("v_and_b32 v4, 31, v0")
    a("v_lshrrev_b32 v3, 5, v0")
    perm23(a, VQ, 4, 5, 6)
    a("v_lshlrev_b32 v5, 3, v3")
    a(f"v_sub_u32 v5, v{VQ}, v5")
    for r in range(16): a(f"v_cmp_le_i32 {sr(MKL[r],2)}, {16*(r>>3)+(r&7)}, v5")
    a("v_mov_b32 v1, 0xffff")
    a(f"v_mov_b32 v{M}, 0xffff0000")
    for u in range(8):
        a(f"v_cndmask_b32 v{PM+u}, 0, v1, {sr(MKL[2*u],2)}")
        a(f"v_cndmask_b32 v{P[0]}, 0, v{M}, {sr(MKL[2*u+1],2)}")
        a(f"v_or_b32 v{PM+u}, v{PM+u}, v{P[0]}")
    for i in range(16): a(f"v_mov_b32 v{Z+i}, {'s55' if STANDIN else '0'}")
    a(f"v_mov_b32 v{NINF}, 0xff800000")
    a(f"v_add_u32 v{AK}, s39, v{VL}")
    a("v_and_b32 v5, 15, v0")
    a("v_lshl_add_u32 v5, v3, 4, v5")
    a("v_lshl_add_u32 v5, v5, 4, s39")
    a("v_and_b32 v6, 16, v0")
    a(f"v_lshl_add_u32 v{AV}, v6, 10, v5")
    p3_ids(a, 46, 47, 48, 49)
    a("s_and_b32 s49, s54, 1")
    a("s_lshl_b32 s49, s49, 12")
    a("s_lshl_b32 s56, s46, 2")
    a("s_add_u32 s49, s49, s56")
    a(f"v_lshl_add_u32 v{VGT}, v4, 7, s49")
    a("v_and_b32 v5, 4, v0")
    a("v_lshlrev_b32 v5, 2, v5")
    a("v_bfe_u32 v6, v0, 3, 2")
    a("v_lshl_add_u32 v5, v6, 2, v5")
    a("v_and_b32 v6, 3, v0")
    a("v_add_u32 v5, v5, v6")
    a("s_lshl_b32 s56, s47, 6")
    a("s_bfe_u32 s57, s54, 0x10001")
    a("s_lshl_b32 s57, s57, 5")
    a("s_add_u32 s56, s56, s57")
    a("v_add_u32 v5, s56, v5")
    a("v_sub_u32 v6, 0x200, v5")
    a("v_min_u32 v6, v5, v6")
    a("v_and_b32 v5, 0xff, v5")
    a("s_lshr_b32 s57, s54, 2")
    a("s_sub_u32 s56, s57, 1")
    a("v_cmp_eq_u32 vcc, s56, v5")
    a("v_lshlrev_b32 v5, 16, v3")
    a(f"v_lshl_add_u32 v{VH}, v6, 4, v5")
    a("v_mov_b32 v5, 0x7f000000")
    a(f"v_cndmask_b32 v{VH}, v{VH}, v5, vcc")
    a("s_lshl_b32 s57, s57, 12")
    a("s_lshl_b32 s56, s48, 17")
    a("s_add_u32 s56, s56, s57")
    a("s_and_b32 s57, s54, 1")
    a("s_lshl_b32 s57, s57, 15")
    a("s_add_u32 s56, s56, s57")
    a(f"s_add_u32 s56, s56, {H_OFF:#x}")
    a("s_lshl_b32 s57, s54, 12")
    a(f"s_add_u32 s57, s57, {H_L:#x}")
    if not WO_IN_P1:
        a("v_lshrrev_b32 v5, 3, v0")
        a("v_bfe_u32 v6, v0, 4, 1")
        a("v_lshlrev_b32 v6, 2, v6")
        a("v_and_b32 v7, 7, v0")
        a("v_xor_b32 v7, v7, v6")
        a("v_lshlrev_b32 v7, 4, v7")
        a("v_lshl_add_u32 v7, v5, 10, v7")
        a("s_bfe_u32 s3, s2, 0x20003")
        a(f"s_mul_i32 s3, s3, {2 * WOROT}")
        a("s_add_u32 s3, s3, s54")
        a("s_and_b32 s3, s3, 7")
        a("s_lshl_b32 s0, s3, 16")
        a("s_lshl_b32 s1, s47, 7")
        a("s_add_u32 s0, s0, s1")
        a("s_lshl_b32 s1, s3, 13")
        a(f"s_add_u32 s1, s1, {WO_L:#x}")
        srd(a, WSRD, 58, 512 * 1024)
    a("s_lshr_b32 s47, s18, 2")
    a("s_cmp_eq_u32 s19, 0")
    a("s_cselect_b32 s48, 0, 2")
    a("s_sub_u32 s48, s47, s48")
    for r in (47, 48):
        a(f"s_lshr_b32 s49, s{r}, 3")
        a(f"s_and_b32 s{r}, s{r}, 7")
        a(f"s_lshl_b32 s{r}, s{r}, 3")
        a(f"s_or_b32 s{r}, s{r}, s49")
    a("s_sub_u32 s48, s48, 4")
    a("v_mov_b32 v4, s47")
    a("v_mov_b32 v5, s48")
    a("v_cmp_gt_u32 vcc, 3, v0")
    a("s_lshr_b32 s47, s17, 3")
    a("s_lshl_b32 s47, s47, 6")
    a("v_cndmask_b32 v4, v5, v4, vcc")
    a("v_lshl_add_u32 v4, v0, 1, v4")
    a("v_add_lshl_u32 v2, v4, s47, 7")
    a(f"s_mov_b32 s16, {FB_OFF:#x}")
    a(f"v_and_b32 v{VFL}, 7, v0")
    a(f"v_lshlrev_b32 v{VFL}, 7, v{VFL}")
    a(f"s_mov_b32 s46, {f2u(0.25*math.log2(math.e)):#x}")
    a("s_cmp_ge_u32 s54, 4")
    a("s_cbranch_scc1 P2_arr")
    a("s_waitcnt vmcnt(0)")
    a.label("P2_arr")
    a("s_barrier")
    stamp(a, 2)
    a("s_cmp_lg_u32 s54, 0")
    a("s_cbranch_scc1 P2_nf")
    a("v_mov_b32 v1, 1")
    a("s_lshl_b32 s47, s2, 7")
    a(f"s_add_u32 s47, s47, {FL_OFF:#x}")
    a("s_mov_b64 exec, 1")
    a(f"buffer_store_dword v1, v{VL}, s[28:31], s47 offen sc1")
    a("s_lshl_b32 s49, s19, 7")
    a("s_add_u32 s49, s49, s16")
    a("v_mov_b32 v3, 1")
    a(f"buffer_atomic_add v3, v{VL}, s[28:31], s49 offen offset:1024 sc0 sc1")
    a.label("P2_nf")
    a(f"s_mov_b32 s47, {FL_OFF:#x}")
    a("s_mov_b64 exec, 0x1f")
    poll(a, "buffer_load_dword v4, v2, s[28:31], s47 offen sc1", 4, sleep=SLEEP1)
    stamp(a, 7)
    a("s_cmp_lg_u32 s54, 0")
    a("s_cbranch_scc1 P2_nl")
    a("v_readfirstlane_b32 s47, v3")
    a("s_cmp_lg_u32 s47, 31")
    a("s_cbranch_scc1 P2_nl")
    a("s_mov_b64 exec, 1")
    a(f"buffer_store_dword v1, v{VL}, s[28:31], s49 offen sc1")
    a("s_mov_b64 exec, -1")
    a.label("P2_nl")
    a("s_add_u32 m0, s39, 0x2000")
    a(f"buffer_load_dwordx4 v{VL}, s[28:31], s35 offen sc1 lds")
    a(f"buffer_load_dwordx4 {vr(QF,4)}, v{VL}, s[28:31], s33 offen sc1")
    a("s_mov_b32 m0, s39")
    a(f"buffer_load_dwordx4 v{VL}, s[28:31], s36 offen sc1 lds")
    a("s_add_u32 m0, s39, 0x6000")
    a(f"buffer_load_dwordx4 v{VL}, s[28:31], s37 offen sc1 lds")
    a("s_add_u32 m0, s39, 0x4000")
    a(f"buffer_load_dwordx4 v{VL}, s[28:31], s38 offen sc1 lds")
    a("s_waitcnt vmcnt(3)")
    for i in range(4):
        a(f"v_lshlrev_b32 v{GX}, 16, v{QF+i}")
        a(f"v_and_b32 v{GX+1}, 0xffff0000, v{QF+i}")
        a(f"v_mul_f32 v{GX}, s46, v{GX}")
        a(f"v_mul_f32 v{GX+1}, s46, v{GX+1}")
        a(f"v_cvt_pk_bf16_f32 v{QF+i}, v{GX}, v{GX+1}")
    a("s_waitcnt vmcnt(2)")
    stamp(a, 8)
    a("s_waitcnt lgkmcnt(0)")
    a("s_barrier")
    korder = [0, 8, 1, 2, 3, 4, 5, 6, 7]
    for j in korder: a(f"ds_read_b128 {vr(KF+4*j,4)}, v{AK} offset:{(8-j)*1024}")
    def smf(D, j, C): return mfma(D, KF + 4 * j, QF, C)
    def zswitch(a, j, tag):
        a(f"s_cmp_eq_u32 s18, {j-1}")
        a(f"s_cbranch_scc1 P2_o{tag}{j}")
        a.label(f"P2_z{tag}{j}")
        def emit(a, t=f"{tag}{j}"):
            a.label(f"P2_o{t}")
            a("s_nop 6")
            for i in range(16): a(f"v_mov_b32 v{Z+i}, v{NINF}")
            a("s_nop 0")
            a(f"s_branch P2_z{t}")
        ool.append(emit)
    def maxtile(a, S, first):
        if first:
            a(f"v_max3_f32 v{M}, v{S}, v{S+1}, v{S+2}")
            rest = list(range(3, 16))
        else: rest = list(range(16))
        while len(rest) >= 2:
            a(f"v_max3_f32 v{M}, v{M}, v{S+rest[0]}, v{S+rest[1]}"); rest = rest[2:]
        if rest: a(f"v_max_f32 v{M}, v{M}, v{S+rest[0]}")
    def vread(j):
        for u in range(2): a(f"ds_read_b128 {vr(VF+8*j+4*u,4)}, v{AV} offset:{0x4000+(8-j)*1024+512*u}")
    def pv(j, Pb, u, first=False): return mfma(O, VF + 8 * j + 4 * u, Pb + 4 * u, "0" if first else None)
    def truemax(a, tag):
        for i in range(16): a(f"v_mov_b32 v{Z+i}, 0")
        for j in range(1, 8):
            zswitch(a, j, tag)
            a(smf(SB[j % 3], j, vr(Z, 16)))
            if j >= 2: maxtile(a, SB[(j - 1) % 3], j == 2)
        maxtile(a, SB[7 % 3], False)
        for i in range(16): a(f"v_mov_b32 v{Z+i}, s55")
    fbload = f"buffer_load_dword v{GX}, v{VFL}, s[28:31], s16 offen sc1"
    fbpre = []
    def hissue():
        a("s_mov_b32 m0, s57")
        a(f"s_mov_b32 s47, {GT_OFF:#x}")
        a(f"buffer_load_dword v{GTT}, v{VGT}, s[28:31], s47 offen sc1")
        for i in range(4):
            a(f"buffer_load_dwordx4 v{VH}, s[28:31], s56 offen offset:{1024*i} sc1 lds")
            if i < 3: a("s_add_u32 s56, s56, 7168")
    def core(a, main, havemax, tag):
        if main: a("s_waitcnt lgkmcnt(8)")
        a(smf(SD, 0, "0"))
        if main: a("s_waitcnt lgkmcnt(7)")
        a(smf(SB[0], 8, vr(Z, 16)))
        for r in range(16): a(f"v_cndmask_b32 v{SD+r}, v{SB[0]+r}, v{SD+r}, {sr(MKL[r],2)}")
        maxtile(a, SD, not havemax)
        a(f"v_mov_b32 v1, v{M}")
        a(f"v_permlane32_swap_b32 v1, v{M}")
        a(f"v_max_f32 v{M}, v1, v{M}")
        for i in range(16): a(f"v_sub_f32 v{Z+i}, 0, v{M}")
        if main: a("s_waitcnt lgkmcnt(0)")
        zswitch(a, 1, tag)
        a(smf(SB[1], 1, vr(Z, 16)))
        zswitch(a, 2, tag)
        a(smf(SB[2], 2, vr(Z, 16)))
        if main:
            a("s_waitcnt vmcnt(0)")
            a("s_barrier")
            stamp(a, 9)
            if STAMP: a("s_waitcnt lgkmcnt(0)")
            for j in korder[:7]: vread(j)
            if EARLYJ: a(fbload)
            pfnext(2)
        for r in range(16): a(f"v_sub_f32 v{SD+r}, v{SD+r}, v{M}")
        for r in range(16): a(f"v_exp_f32 v{SD+r}, v{SD+r}")
        Pd, Po = P[0], P[1]
        for u in range(8): a(f"v_cvt_pk_bf16_f32 v{Po+u}, v{SD+2*u}, v{SD+2*u+1}")
        for u in range(8): a(f"v_and_b32 v{Pd+u}, v{Po+u}, v{PM+u}")
        if main:
            a("s_waitcnt lgkmcnt(0)")
            for j in korder[7:]: vread(j)
            pfnext(2)
        a(pv(0, Pd, 0, True))
        for u in range(8): a(f"v_xor_b32 v{Po+u}, v{Po+u}, v{Pd+u}")
        a(pv(0, Pd, 1))
        pend = [pv(8, Po, 0), pv(8, Po, 1)]
        for n, j in enumerate(range(1, 8)):
            S = SB[j % 3]; Pb = P[n & 1]
            if main and j == MIDJ:
                if EARLYJ:
                    a("s_cmp_lg_u32 s49, 0")
                    a("s_cbranch_scc1 P2_m1")
                a(fbload)
                a.label("P2_m1")
            if main and j == 6: a("s_waitcnt lgkmcnt(0)")
            for r in range(4): a(f"v_exp_f32 v{S+r}, v{S+r}")
            a(pend.pop(0))
            for r in range(4, 8): a(f"v_exp_f32 v{S+r}, v{S+r}")
            if pend: a(pend.pop(0))
            for u in range(4): a(f"v_cvt_pk_bf16_f32 v{Pb+u}, v{S+2*u}, v{S+2*u+1}")
            if main: pfnext(2)
            for r in range(8, 16): a(f"v_exp_f32 v{S+r}, v{S+r}")
            a(pv(j, Pb, 0))
            for u in range(4, 8): a(f"v_cvt_pk_bf16_f32 v{Pb+u}, v{S+2*u}, v{S+2*u+1}")
            pend.append(pv(j, Pb, 1))
            if j + 2 <= 7:
                zswitch(a, j + 2, tag)
                a(smf(SB[(j + 2) % 3], j + 2, vr(Z, 16)))
            if main and EARLYJ and j == EARLYJ:
                a("s_waitcnt vmcnt(%d)" % (8 - len(pf)))
                for x in fbpre: a(x)
                a(f"v_cmp_eq_u32 vcc, 0, v{GX}")
                a("s_mov_b32 s49, 0")
                a("s_cbranch_vccnz P2_e1")
                a("s_mov_b32 s49, m0")
                hissue()
                a("s_mov_b32 m0, s49")
                a.label("P2_e1")
            if main and j == MIDJ:
                if EARLYJ:
                    a("s_cmp_lg_u32 s49, 0")
                    a("s_cbranch_scc1 P2_m2")
                a("s_waitcnt vmcnt(0)")
                poll(a, fbload, GX, True, sleep=4, pre=fbpre)
                hissue()
                a.label("P2_m2")
        a(pend.pop(0))
    if not STANDIN:
        a("s_waitcnt lgkmcnt(0)")
        truemax(a, "m")
    core(a, True, not STANDIN, "b")
    a("v_and_b32 v4, 7, v0")
    a("v_xor_b32 v5, s54, v4")
    a("v_lshlrev_b32 v5, 4, v5")
    a("v_lshl_add_u32 v5, v0, 7, v5")
    a("v_lshrrev_b32 v6, 3, v0")
    a("v_xor_b32 v4, v4, v6")
    a("s_and_b32 s32, s54, 3")
    a("s_lshl_b32 s32, s32, 3")
    a("v_add_u32 v6, s32, v6")
    perm23(a, 6, 6, 7, 2)
    a("v_lshlrev_b32 v4, 4, v4")
    a("v_lshl_add_u32 v4, v6, 16, v4")
    a("s_lshl_b32 s32, s17, 11")
    a("s_lshr_b32 s33, s19, 2")
    a("s_lshl_b32 s33, s33, 10")
    a("s_add_u32 s32, s32, s33")
    a("s_lshr_b32 s33, s54, 2")
    a("s_lshl_b32 s33, s33, 9")
    a("s_add_u32 s32, s32, s33")
    a("s_and_b32 s33, s19, 3")
    a("s_lshl_b32 s33, s33, 7")
    a("s_add_u32 s32, s32, s33")
    a(f"s_add_u32 s32, s32, {O_OFF:#x}")
    if STANDIN:
        a(f"v_add_f32 v1, |v{O}|, |v{O+1}|")
        a(f"v_add_f32 v2, |v{O+2}|, |v{O+3}|")
        for i in (4, 6):
            a(f"v_add_f32 v1, v1, |v{O+i}|")
            a(f"v_add_f32 v2, v2, |v{O+i+1}|")
        a(f"s_mov_b32 s33, {f2u(2.0**-60):#x}")
        a(f"v_add_f32 v1, v1, v2")
        a(f"v_fma_f32 v1, v1, s33, v{O+8}")
        a(f"v_cmp_ngt_f32 vcc, {f2u(2.0**40):#x}, v1")
        if FORCE_FB: a("s_mov_b64 vcc, -1")
        a("s_cbranch_vccnz P2_fb")
        a.label("P2_fbret")
        def emit(a):
            a.label("P2_fb")
            truemax(a, "f")
            core(a, False, True, "g")
            a("s_nop 11")
            a("s_branch P2_fbret")
        ool.insert(0, emit)
    a(f"v_rcp_f32 v1, v{O+8}")
    for i in range(8): a(f"v_mul_f32 v{O+i}, v{O+i}, v1")
    for u in range(4): a(f"v_cvt_pk_bf16_f32 v{P[0]+u}, v{O+2*u}, v{O+2*u+1}")
    a(f"v_min_u32 v{P[0]}, -2, v{P[0]}")
    a(f"v_min_u32 v{P[0]+3}, -2, v{P[0]+3}")
    a(f"ds_write_b128 v5, {vr(P[0],4)} offset:{OTR_L:#x}")
    stamp(a, 10)
    a("s_waitcnt lgkmcnt(0)" if HBAR else "s_waitcnt vmcnt(0) lgkmcnt(0)")
    a("s_barrier")
    a(f"ds_read_b128 {vr(P[0],4)}, v{AK} offset:{OTR_L:#x}")
    a("s_waitcnt lgkmcnt(0)")
    a(f"buffer_store_dwordx4 {vr(P[0],4)}, v4, s[28:31], s32 offen sc1")

def phase3(a):
    OF, WOF, HF, WF, AC = 8, 40, 104, 136, 152
    RD = 184
    p3_ids(a, 17, 18, 19, 20)
    a("s_and_b32 s20, s54, 1")
    a("s_lshr_b32 s21, s54, 1")
    a("s_lshl_b32 s22, s17, 16")
    a("s_lshl_b32 s23, s21, 14")
    a("s_add_u32 s22, s22, s23")
    a("s_lshl_b32 s24, s20, 10")
    a("s_add_u32 s22, s22, s24")
    a(f"s_add_u32 s22, s22, {O_OFF:#x}")
    a(f"s_mul_i32 s16, s18, {2048 * OROT}")
    a("s_or_b32 s22, s22, s16")
    OS = [32, 33, 34, 35, 44, 45, 46, 47]
    a("v_lshlrev_b32 v7, 4, v0")
    def oload(k): return f"buffer_load_dwordx4 {vr(OF+4*k,4)}, v7, s[28:31], s{OS[k]} offen sc1"
    for k in range(8):
        a(f"s_xor_b32 s{OS[k]}, s22, {2048*k}")
        a(oload(k))
    stamp(a, 11)
    if STAMP: a("s_waitcnt lgkmcnt(0)")
    a("s_and_b32 s25, s21, 1")
    a("s_lshr_b32 s26, s21, 1")
    a("s_lshl_b32 s27, s25, 8")
    a("v_xor_b32 v1, s27, v7")
    a("s_lshl_b32 s27, s21, 11")
    a(f"s_add_u32 s27, s27, {H_L:#x}")
    a("s_lshl_b32 s36, s26, 13")
    a("s_add_u32 s37, s27, s36")
    a("s_xor_b32 s36, s36, 0x2000")
    a("s_add_u32 s36, s27, s36")
    a("v_add_u32 v2, s37, v1")
    a("v_add_u32 v1, s36, v1")
    if HBAR:
        a("s_waitcnt vmcnt(9)")
        a("s_barrier")
    for p in range(2):
        for i in range(2):
            for iw in range(2):
                a(f"ds_read_b128 {vr(HF+16*p+8*i+4*iw,4)}, v{2-iw} offset:{0x4000*p + 1024*i}")
    a("v_and_b32 v2, 31, v0")
    a("v_lshrrev_b32 v3, 5, v0")
    a("s_add_u32 s23, s24, s17")
    a("v_lshl_add_u32 v4, v2, 5, s23")
    a("v_cvt_f32_u32 v5, v4")
    a("s_cmp_gt_u32 s17, 16")
    csel(a, 36, f2u(-1/2048), f2u(1/2048))
    a("s_cselect_b32 s37, 1, 0")
    a("s_lshr_b32 s38, s18, 2")
    a("s_xor_b32 s37, s37, s38")
    a("s_cselect_b32 s38, 0x80008000, 0")
    a("s_xor_b32 s39, s38, 0x80008000")
    a("v_mul_f32 v5, s36, v5")
    a("s_lshl_b32 s36, s21, 3")
    a("v_lshl_add_u32 v6, v3, 5, s36")
    a("v_cvt_f32_u32 v6, v6")
    a("v_mul_f32 v6, v6, v5")
    a("v_fract_f32 v6, v6")
    WA, WB = WF, WF + 8
    for i in range(2):
        for pr in range(2):
            a(f"v_cos_f32 v{RD}, v6")
            a(f"v_sin_f32 v{RD+2}, v6")
            a("v_add_f32 v6, v6, v5")
            a(f"v_cos_f32 v{RD+1}, v6")
            a(f"v_sin_f32 v{RD+3}, v6")
            a("v_add_f32 v6, v6, v5")
            for q in range(4): a(f"v_mul_f32 v{RD+q}, v{GTT}, v{RD+q}")
            a(f"v_cvt_pk_bf16_f32 v{WA+4*i+pr}, v{RD}, v{RD+1}")
            a(f"v_cvt_pk_bf16_f32 v{WA+4*i+2+pr}, v{RD+2}, v{RD+3}")
            a(f"v_xor_b32 v{WB+4*i+2+pr}, s39, v{WA+4*i+pr}")
            a(f"v_xor_b32 v{WB+4*i+pr}, s38, v{WA+4*i+2+pr}")
    a("s_cmp_lg_u32 s19, 0")
    a("s_cbranch_scc1 P3_wdone")
    a("s_cmp_eq_u32 s17, 0")
    a("s_cselect_b64 vcc, -1, 0")
    for q in range(4):
        for pr in range(2):
            a(f"v_cndmask_b32 v{WF+4*q+2+pr}, v{WF+4*q+pr}, 0, vcc")
            a(f"v_cndmask_b32 v{WF+4*q+pr}, 0, v{WF+4*q+pr}, vcc")
    a.label("P3_wdone")
    a("v_lshrrev_b32 v1, 2, v0")
    a("v_and_b32 v1, 3, v1")
    a("v_lshl_add_u32 v5, v3, 3, v1")
    a("v_lshlrev_b32 v5, 7, v5")
    a("v_lshrrev_b32 v1, 1, v1")
    a("v_xor_b32 v1, s26, v1")
    a("v_lshl_add_u32 v5, v1, 6, v5")
    a("v_and_b32 v1, 1, v0")
    a("v_lshl_add_u32 v5, v1, 5, v5")
    a("s_lshl_b32 s36, s25, 4")
    a("v_and_b32 v1, 16, v0")
    a("v_xor_b32 v1, s36, v1")
    a("v_add_u32 v5, v1, v5")
    a("v_and_b32 v1, 2, v0")
    a("v_lshl_add_u32 v5, v1, 2, v5")
    a("s_lshl_b32 s36, s21, 14")
    a(f"s_add_u32 s36, s36, {WO_L:#x}")
    a("s_or_b32 s36, s36, s16")
    a("v_add_u32 v5, s36, v5")
    for k in range(8):
        for iw in range(2): a(f"v_xor_b32 v{RD+2*k+iw}, {2048*k + 64*iw}, v5")
    a("s_waitcnt lgkmcnt(0)")
    wr = []
    for k in range(8):
        for iw in range(2):
            for q in range(2):
                wr.append(f"ds_read_b64_tr_b16 {vr(WOF+8*k+4*iw+2*q,2)}, v{RD+2*k+iw} offset:{512*q}")
    n = 0
    for p in range(2):
        for i in range(2):
            for iw in range(2):
                a(mfma(AC + 16 * iw, HF + 16 * p + 8 * i + 4 * iw, WF + 8 * p + 4 * i, "0" if (p == 0 and i == 0) else None))
                for x in wr[4*n:4*n+4]: a(x)
                n += 1
                if n in (3, 6): a("s_waitcnt lgkmcnt(3)")
    a("v_lshlrev_b32 v4, 10, v4")
    a("v_lshl_add_u32 v4, v3, 5, v4")
    a("s_lshl_b32 s22, s18, 7")
    a("s_lshl_b32 s23, s26, 6")
    a("s_add_u32 s22, s22, s23")
    a("s_lshl_b32 s23, s25, 4")
    a("s_add_u32 s22, s22, s23")
    srd(a, 40, 60, 2 * MB)
    a("s_lshl_b32 s23, s20, 2")
    for i in range(4):
        a(f"s_xor_b32 s36, s21, {i}")
        a("s_add_u32 s36, s36, s23")
        a("s_mul_i32 s36, s36, 0x1800")
        a(f"v_add_u32 v{(1, 2, 3, 5)[i]}, s36, v7")
    a(f"v_add_f32 v{GTT}, 1.0, v{GTT}")
    a(f"v_rcp_f32 v{GTT}, v{GTT}")
    a("s_mov_b32 s36, 0")
    a("s_mov_b32 s48, 0")
    a("s_waitcnt lgkmcnt(0)")
    MS = [4, 6, 8, 10, 12, 24, 26, 38]
    a.label("P3_sweep")
    a("s_mov_b32 s37, s36")
    a("s_waitcnt vmcnt(0)")
    for k in range(8):
        o = OF + 4 * k
        a(f"s_bitcmp1_b32 s36, {k}")
        a(f"s_cbranch_scc1 P3_s{k}")
        a(f"v_max_u32 v6, v{o}, v{o+3}")
        a("v_cmp_eq_u32 vcc, -1, v6")
        a(f"s_mov_b64 {sr(MS[k],2)}, vcc")
        a(f"s_cbranch_vccnz P3_s{k}")
        a(mfma(AC, WOF + 8 * k, o))
        a(mfma(AC + 16, WOF + 8 * k + 4, o))
        a(f"s_bitset1_b32 s36, {k}")
        a.label(f"P3_s{k}")
    a("s_cmp_eq_u32 s36, 0xff")
    a("s_cbranch_scc1 P3_red")
    a("s_add_u32 s48, s48, 1")
    a(f"s_cmp_ge_u32 s48, {SPIN_MAX}")
    a("s_cbranch_scc1 P3_red")
    if PROBE:
        a("s_ff0_i32_b32 s49, s36")
        a("s_lshl_b32 s49, 1, s49")
        a("s_not_b32 s49, s49")
        a("s_cmp_lg_u32 s37, s36")
        a("s_cselect_b32 s37, s36, s49")
    else: a("s_mov_b32 s37, s36")
    if SLEEP3: a(f"s_sleep {SLEEP3}")
    for k in range(8):
        a(f"s_bitcmp1_b32 s37, {k}")
        a(f"s_cbranch_scc1 P3_r{k}")
        a(f"s_mov_b64 exec, {sr(MS[k],2)}")
        a(oload(k))
        a.label(f"P3_r{k}")
    a("s_mov_b64 exec, -1")
    a("s_branch P3_sweep")
    a.label("P3_red")
    stamp(a, 12)
    for i in (1, 2, 3):
        for hf in range(2):
            a(f"ds_write_b128 v{(1, 2, 3, 5)[i]}, {vr(AC+8*i+4*hf,4)} offset:{2048*(i-1)+1024*hf}")
    a("s_waitcnt lgkmcnt(0)")
    a("s_barrier")
    for i in range(6): a(f"ds_read_b128 {vr(RD+4*i,4)}, v1 offset:{1024*i}")
    for i in range(3):
        a(f"s_waitcnt lgkmcnt({4-2*i})")
        for r in range(8): a(f"v_add_f32 v{AC+r}, v{AC+r}, v{RD+8*i+r}")
    for r in range(8): a(f"v_mul_f32 v{AC+r}, v{GTT}, v{AC+r}")
    for u in range(4): a(f"v_cvt_pk_bf16_f32 v{RD+u}, v{AC+2*u}, v{AC+2*u+1}")
    a(f"buffer_store_dwordx4 {vr(RD,4)}, v4, s[40:43], s22 offen {OUTF}")
    stamp_out(a)

def gen():
    a = Asm(); ool = []
    a("s_cmp_ge_u32 s2, 256")
    a("s_cbranch_scc1 F_done")
    stamp(a, 0, True); stamp(a, 1)
    a("s_load_dwordx2 s[4:5], s[0:1], 0")
    a("s_load_dwordx4 s[8:11], s[0:1], 24")
    a("s_load_dwordx2 s[12:13], s[0:1], 48")
    a("s_load_dwordx2 s[58:59], s[0:1], 56")
    a("s_load_dwordx2 s[6:7], s[0:1], 64")
    a("s_load_dwordx4 s[60:63], s[0:1], 72")
    a("s_load_dwordx2 s[14:15], s[0:1], 88")
    if CODEPF:
        a("s_getpc_b64 s[64:65]")
        a.label("F_pc")
        a("v_cmp_gt_u32 vcc, 32, v0")
        a("s_bfe_u32 s66, s2, 0x20003")
        a("s_lshl_b32 s66, s66, 12")
        a("v_lshl_add_u32 v2, v0, 7, s66")
        a("v_min_u32 v2, F_done-F_pc, v2")
        a("s_and_saveexec_b64 s[66:67], vcc")
        a("s_cbranch_execz F_nopf")
        a("global_load_dword v255, v2, s[64:65]")
        a.label("F_nopf")
        a("s_mov_b64 exec, s[66:67]")
    a("v_lshrrev_b32 v1, 6, v0")
    a("v_and_b32 v0, 63, v0")
    a("v_readfirstlane_b32 s54, v1")
    phase1(a)
    phase2(a, ool)
    phase3(a)
    a.label("F_done")
    a("s_endpgm")
    i = 0
    while i < len(ool):
        ool[i](a); i += 1
    return a.lines

def build(path):
    head = open(f"cdna_kernels/{NAME}.s.ref").read().split("; Override launch")[0]
    out = head + "; @launch grid=(256,1,1) block=(512,1,1) lds=163840\n" + '.amdgcn_target "amdgcn-amd-amdhsa--gfx950"\n'
    lines = gen()
    lines = fix_hazards(lines, VERB)
    print("lines", len(lines))
    code, kd = kernel_text(NAME + "_kernel", lines, 256, 102)
    open(path, "w").write(out + code + '.section .rodata,"a"\n' + kd)

if __name__ == "__main__":
    for x in list(sys.argv):
        if x.startswith("-D"):
            exec(x[2:], globals()); sys.argv.remove(x)
    if "--stamp" in sys.argv: STAMP = True; sys.argv.remove("--stamp")
    build(sys.argv[1] if len(sys.argv) > 1 else f"cdna_kernels/{NAME}.s")
```

```python
import sys, math, struct
sys.path.insert(0, "work")
from asmlib import *

MB = 1 << 20
Q_OFF, K_OFF, V_OFF, H_OFF, O_OFF, GT_OFF, FL_OFF = 0, 2 * MB, 4 * MB, 6 * MB, 8 * MB, 10 * MB, 10 * MB + 262144
FB_OFF = FL_OFF + 32768
WS_SIZE = 11 * MB
NAME = "gated_mix__spectral_fnet__sliding_block__prompt"
def f2u(f): return struct.unpack("<I", struct.pack("<f", f))[0]

STAMP = False
VERB = False
K1NT = (0, 1)
OUTF = ""
SPIN_MAX = 1 << 16
GATE_AT = 3
MIDJ = 5
STANDIN = 1
FORCE_FB = 0
WO_IN_P1 = 0
CLR_AT = 4
SLEEP1 = 0
SLEEP3 = 2
WOROT = 1
OROT = 1
PROBE = 1
PRETOUCH = 0
TLBW = 1
WOPF = 1
EARLYJ = 0
HBAR = 0
CODEPF = 1
H_L, WO_L, OTR_L = 0x10000, 0x18000, 0xc000
SLOT = [0x8000, 0x10000, 0x0]

ST_OFF = 16 * MB
SB0 = 72
TENC = None
def stamp(a, i, real=False):
    if isinstance(TENC, tuple):
        op = "s_memtime" if TENC[2] else "s_memrealtime"
        if i == 0:
            a(f"s_memrealtime {sr(SB0,2)}")
            a("s_waitcnt lgkmcnt(0)")
            a(f"s_mov_b32 s{SB0+2}, 0")
            a(f"s_mov_b32 s{SB0+6}, 0")
        if i == TENC[0]: a(f"{op} {sr(SB0+6,2)}")
        if i == TENC[1]: a(f"{op} {sr(SB0+2,2)}")
        return
    if TENC is not None:
        if i == 0:
            a(f"s_memrealtime {sr(SB0,2)}")
            a("s_waitcnt lgkmcnt(0)")
            a(f"s_mov_b32 s{SB0+2}, s{SB0}")
        elif i == TENC: a(f"s_memrealtime {sr(SB0+2,2)}")
        return
    if STAMP: a(f"{'s_memrealtime' if real else 's_memtime'} {sr(SB0+2*i,2)}")
def stamp_out(a):
    if TENC is not None:
        L = uid("Ltenc")
        a("s_waitcnt vmcnt(0) lgkmcnt(0)")
        stamp(a, 13)
        a("s_waitcnt lgkmcnt(0)")
        if isinstance(TENC, tuple):
            a(f"s_sub_u32 s70, s{SB0+2}, s{SB0+6}")
            if TENC[2]:
                a("s_mul_i32 s70, s70, 13")
                a("s_lshr_b32 s70, s70, 8")
            if len(TENC) > 3:
                a(f"s_cmp_eq_u32 s2, {TENC[3]}")
                a("s_cselect_b32 s70, s70, 0")
        else: a(f"s_sub_u32 s70, s{SB0+2}, s{SB0}")
        a("s_lshl_b32 s70, s70, 2")
        a("s_add_u32 s70, s70, 3000")
        a("s_min_u32 s70, s70, 20000")
        a.label(L)
        a("s_sleep 4")
        a(f"s_memrealtime {sr(SB0+4,2)}")
        a("s_waitcnt lgkmcnt(0)")
        a(f"s_sub_u32 s71, s{SB0+4}, s{SB0}")
        a("s_cmp_lt_u32 s71, s70")
        a(f"s_cbranch_scc1 {L}")
        return
    if not STAMP: return
    a("s_waitcnt vmcnt(0) lgkmcnt(0)")
    stamp(a, 13); stamp(a, 14, True)
    a("s_waitcnt lgkmcnt(0)")
    for i in range(15): a(f"v_writelane_b32 v1, s{SB0+2*i}, {i}")
    a("v_lshlrev_b32 v2, 2, v0")
    a("s_lshl_b32 s70, s2, 9")
    a("s_lshl_b32 s71, s54, 6")
    a("s_add_u32 s70, s70, s71")
    a(f"s_add_u32 s70, s70, {ST_OFF:#x}")
    a("v_add_u32 v2, s70, v2")
    a("s_mov_b64 exec, 0xffff")
    a("global_store_dword v2, v1, s[14:15]")

def srd(a, d, base, size):
    a(f"s_mov_b32 s{d}, s{base}")
    a(f"s_mov_b32 s{d+1}, s{base+1}")
    a(f"s_mov_b32 s{d+2}, {size:#x}")
    a(f"s_mov_b32 s{d+3}, 0x20000")
def csel(a, d, x, y):
    a(f"s_mov_b32 s{d}, {y:#x}")
    a(f"s_cselect_b32 s{d}, {x:#x}, s{d}")
def perm23(a, dst, src, t1, t2):
    a(f"v_and_b32 v{t1}, 0x13, v{src}")
    a(f"v_and_b32 v{t2}, 4, v{src}")
    a(f"v_lshl_or_b32 v{t1}, v{t2}, 1, v{t1}")
    a(f"v_and_b32 v{t2}, 8, v{src}")
    a(f"v_lshrrev_b32 v{t2}, 1, v{t2}")
    a(f"v_or_b32 v{dst}, v{t1}, v{t2}")
def mfma(D, A, B, C=None):
    return f"v_mfma_f32_32x32x16_bf16 {vr(D,16)}, {vr(A,4)}, {vr(B,4)}, {vr(D,16) if C is None else C}"
_uid = [0]
def uid(p):
    _uid[0] += 1; return f"{p}{_uid[0]}"

def poll(a, load, vdata, first_loaded=False, sleep=0, pre=()):
    L = uid("Lpoll")
    a("s_mov_b32 s48, 0")
    if first_loaded: a(f"s_branch {L}c")
    if sleep and not first_loaded: a(f"s_branch {L}l")
    a.label(L)
    if sleep: a(f"s_sleep {sleep}")
    a.label(L + "l")
    a(load)
    a("s_waitcnt vmcnt(0)")
    a.label(L + "c")
    for x in pre: a(x)
    a(f"v_cmp_eq_u32 vcc, 0, v{vdata}")
    a("s_add_u32 s48, s48, 1")
    a(f"s_cmp_ge_u32 s48, {SPIN_MAX}")
    a(f"s_cbranch_scc1 {L}x")
    a("s_and_b64 exec, exec, vcc")
    a(f"s_cbranch_scc1 {L}")
    a.label(L + "x")
    a("s_mov_b64 exec, -1")

def p3_ids(a, t1, et, tau, tmp):
    a(f"s_and_b32 s{tau}, s2, 7")
    a(f"s_lshl_b32 s{tau}, s{tau}, 1")
    a(f"s_bfe_u32 s{tmp}, s2, 0x10003")
    a(f"s_or_b32 s{tau}, s{tau}, s{tmp}")
    a(f"s_sub_u32 s{tmp}, 32, s{tau}")
    a(f"s_cmp_eq_u32 s{tau}, 0")
    a(f"s_cselect_b32 s{tmp}, 16, s{tmp}")
    a("s_bitcmp1_b32 s2, 4")
    a(f"s_cselect_b32 s{t1}, s{tmp}, s{tau}")
    a(f"s_lshr_b32 s{et}, s2, 5")

def phase1(a):
    XO, BO, AX, AB, PV, ST = 10, 14, 18, 22, 24, 25
    F = [28, 48]
    ACC, T, PK, AC2 = 68, 132, 140, 172
    a("s_bfe_u32 s17, s2, 0x20001")
    a("s_and_b32 s18, s2, 1")
    a("s_lshl_b32 s18, s18, 3")
    a("s_bfe_u32 s39, s2, 0x30003")
    a("s_or_b32 s18, s18, s39")
    a("s_lshr_b32 s19, s2, 6")
    a("s_and_b32 s16, s54, 3")
    a("s_and_b32 s45, s16, 1")
    a("s_lshr_b32 s46, s16, 1")
    a("s_cmp_lt_u32 s54, 4")
    a("s_cbranch_scc1 P1_compute")
    a("s_lshl_b32 s40, s18, 7")
    a("s_lshl_b32 s41, s16, 5")
    a("s_add_u32 s40, s40, s41")
    a("s_lshl_b32 s41, s18, 2")
    a("s_add_u32 s41, s41, s16")
    a("s_cmp_eq_u32 s17, 3")
    a("s_cselect_b32 s40, s41, s40")
    a("s_cselect_b32 s41, 16, 10")
    csel(a, 42, 0x7fc00, 0x1c00)
    csel(a, 43, 0x400, 0xc00)
    a("s_lshl_b32 s40, s40, 10")
    a("v_lshrrev_b32 v2, 3, v0")
    a("v_and_b32 v3, 7, v0")
    a("v_lshlrev_b32 v4, s41, v2")
    a("v_add_u32 v4, s40, v4")
    a("v_lshrrev_b32 v5, 1, v2")
    a("v_xor_b32 v6, v3, v5")
    a("v_lshl_add_u32 v%d, v6, 4, v4" % XO)
    a("v_xor_b32 v6, 4, v6")
    a("v_lshl_add_u32 v%d, v6, 4, v4" % (XO + 1))
    a("v_add_u32 v%d, s42, v%d" % (XO + 1, XO + 1))
    a("s_lshl_b32 s44, s42, 1")
    a("v_add_u32 v%d, s44, v%d" % (XO + 2, XO))
    a("v_add_u32 v%d, s44, v%d" % (XO + 3, XO + 1))
    a("s_lshl_b32 s47, s17, 10")
    a("s_lshl_b32 s48, s19, 8")
    a("s_add_u32 s47, s47, s48")
    a("s_lshl_b32 s48, s46, 7")
    a("s_add_u32 s47, s47, s48")
    a("s_lshl_b32 s48, s19, 7")
    a("s_cmp_eq_u32 s17, 3")
    a("s_cselect_b32 s47, s48, s47")
    a("s_lshl_b32 s48, s45, 5")
    a("s_mul_i32 s48, s48, s43")
    a("s_add_u32 s47, s47, s48")
    a("v_mul_lo_u32 v4, v2, s43")
    a("v_add_u32 v4, s47, v4")
    a("v_and_b32 v5, 1, v5")
    a("v_lshlrev_b32 v5, 2, v5")
    a("v_xor_b32 v5, v3, v5")
    a("v_lshl_add_u32 v%d, v5, 4, v4" % BO)
    a("s_lshl_b32 s48, s43, 3")
    a("s_sub_u32 s48, s48, 0x400")
    for i in range(1, 4): a("v_add_u32 v%d, s48, v%d" % (BO + i, BO + i - 1))
    a("s_lshl_b32 s34, s43, 6")
    a("s_lshl_b32 s35, s16, 12")
    a("s_lshl_b32 s49, s17, 2")
    a("s_add_u32 s49, s49, s19")
    a("s_add_u32 s32, s49, s18")
    a("s_and_b32 s32, s32, 7")
    a("s_mul_i32 s33, s32, s34")
    a("s_lshl_b32 s32, s32, 7")
    a("s_waitcnt lgkmcnt(0)")
    if TENC is not None: stamp(a, 20)
    srd(a, 20, 4, 2 * MB)
    a("s_cmp_eq_u32 s46, 0")
    a("s_cselect_b32 s24, s8, s10")
    a("s_cselect_b32 s25, s9, s11")
    a("s_cmp_eq_u32 s17, 3")
    a("s_cselect_b32 s24, s24, s12")
    a("s_cselect_b32 s25, s25, s13")
    csel(a, 26, 0x80000, 0x180000)
    a("s_mov_b32 s27, 0x20000")
    ops = []
    def issue(c):
        if c < 8:
            sl = SLOT[c % 3]
            a(f"s_add_u32 m0, s35, {sl:#x}")
            for i in range(4): a(f"buffer_load_dwordx4 v{XO+i}, s[20:23], s32 offen offset:{1024*i} {'nt' if c < K1NT[0] else ''} lds")
            a(f"s_add_u32 m0, s35, {sl+0x4000:#x}")
            for i in range(4): a(f"buffer_load_dwordx4 v{BO+i}, s[24:27], s33 offen offset:{1024*i} {'nt' if c < K1NT[1] else ''} lds")
            if c < 7:
                a("s_add_u32 s33, s33, s34")
                a("s_add_u32 s32, s32, 128")
                a("s_and_b32 s32, s32, 0x3ff")
                a("s_cselect_b32 s33, s33, 0")
        ops.extend([('c', c)] * 8)
    def allowed(tag):
        last = max(i for i, o in enumerate(ops) if o == tag)
        return len(ops) - 1 - last
    a("s_lshl_b32 s44, s17, 3")
    a("s_or_b32 s44, s44, s54")
    a("s_cmp_eq_u32 s44, 7")
    a("s_cselect_b32 s44, 1, 0")
    a("v_lshlrev_b32 v6, 4, v0")
    a("s_cbranch_scc0 P1_ng0")
    srd(a, 40, 6, 1024)
    a(f"s_mov_b32 m0, {WO_L:#x}")
    a("v_lshrrev_b32 v7, 5, v0")
    a("buffer_load_dwordx4 v6, s[40:43], 0 offen lds")
    a("v_lshlrev_b32 v9, 6, v7")
    a("v_add_u32 v9, s32, v9")
    a.label("P1_ng0")
    issue(0); issue(1)
    a("v_lshlrev_b32 v8, 2, v0")
    srd(a, 28, 14, WS_SIZE)
    GA, GD = 44, 52
    a("v_and_b32 v1, 31, v0")
    a("v_lshrrev_b32 v2, 1, v1")
    a("v_and_b32 v2, 7, v2")
    a("v_lshrrev_b32 v3, 5, v0")
    a("v_lshlrev_b32 v3, 2, v3")
    a("v_xor_b32 v2, v2, v3")
    a("s_lshl_b32 s47, s19, 12")
    a("v_lshl_add_u32 v1, v1, 7, s47")
    for i in range(4):
        a(f"v_xor_b32 v3, {i}, v2")
        a(f"v_lshl_add_u32 v{GA+i}, v3, 4, v1")
        a(f"v_add_u32 v{GA+4+i}, 0x10000, v{GA+i}")
    a("v_mov_b32 v1, 0")
    dbgload = "global_load_dword v40, v8, s[62:63] sc1"
    for c in range(8):
        a("s_waitcnt vmcnt(%d)" % allowed(('c', c)))
        if c == 0: stamp(a, 3)
        if c == 7: stamp(a, 4)
        a("s_barrier")
        a("s_cmp_eq_u32 s44, 0")
        a(f"s_cbranch_scc1 P1_nr{c}")
        sl = SLOT[c % 3]
        a(f"v_add_u32 v2, {WO_L:#x}, v9")
        for i in range(4):
            a(f"ds_read_b128 {vr(GD+8*i,4)}, v{GA+i+(4 if sl >= 0x10000 else 0)} offset:{sl & 0xffff}")
            a(f"ds_read_b128 {vr(GD+8*i+4,4)}, v2 offset:{16*i}")
        a("v_add_u32 v9, 0x80, v9")
        a("v_and_b32 v9, 0x3ff, v9")
        a.label(f"P1_nr{c}")
        if c == 6:
            a(dbgload); ops += [('d', 0)]
        if c + 2 < 8: issue(c + 2)
        if c == CLR_AT:
            for i in range(4): a(f"v_mov_b32 v{PK+12+i}, -1")
            a("s_lshl_b32 s47, s2, 13")
            a("s_lshl_b32 s48, s16, 11")
            a("s_add_u32 s47, s47, s48")
            a(f"s_add_u32 s47, s47, {O_OFF:#x}")
            a(f"buffer_store_dwordx4 {vr(PK+12,4)}, v6, s[28:31], s47 offen sc1")
            a(f"buffer_store_dwordx4 {vr(PK+12,4)}, v6, s[28:31], s47 offen offset:1024 sc1")
            ops += [('z', 0)] * 2
        a("s_cmp_eq_u32 s44, 0")
        a(f"s_cbranch_scc1 P1_ng{c+1}")
        for i in range(4):
            a(f"s_waitcnt lgkmcnt({6-2*i})")
            for u in range(4): a(f"v_dot2c_f32_bf16 v1, v{GD+8*i+u}, v{GD+8*i+4+u}")
        if c == 7:
            a("v_mov_b32 v2, v1")
            a("v_permlane32_swap_b32 v2, v1")
            a("v_add_f32 v1, v1, v2")
            a("v_min_f32 v1, 0x41f00000, v1")
            a(f"v_mul_f32 v1, {f2u(math.log2(math.e)):#x}, v1")
            a("v_exp_f32 v1, v1")
            a("s_lshl_b32 s47, s18, 2")
            a("s_add_u32 s47, s47, s19")
            a("s_lshl_b32 s47, s47, 7")
            a(f"s_add_u32 s47, s47, {GT_OFF:#x}")
            a("s_mov_b32 exec_hi, 0")
            a("buffer_store_dword v1, v8, s[28:31], s47 offen sc1")
            a("s_mov_b64 exec, -1")
        a.label(f"P1_ng{c+1}")
    a("s_waitcnt vmcnt(0)")
    poll(a, dbgload, 40, True)
    if WOPF:
        a("s_cmp_ge_u32 s16, 2")
        a("s_cbranch_scc1 P2_start")
        a("s_lshr_b32 s47, s2, 3")
        a("s_lshl_b32 s47, s47, 1")
        a("s_add_u32 s47, s47, s16")
        a("s_lshl_b32 s47, s47, 13")
        a("v_lshl_add_u32 v1, v0, 7, s47")
        a("global_load_dword v41, v1, s[58:59]")
    a("s_branch P2_start")
    a.label("P1_compute")
    a("v_and_b32 v7, 31, v0")
    a("v_lshrrev_b32 v8, 5, v0")
    perm23(a, 9, 7, 4, 5)
    a("s_lshl_b32 s47, s46, 13")
    a("s_cmp_eq_u32 s17, 3")
    a("s_cselect_b32 s48, s47, 0")
    a("s_cselect_b32 s47, 0, s47")
    a(f"s_add_u32 s48, s48, {0x4000 + SLOT[0]:#x}")
    a(f"s_add_u32 s47, s47, {SLOT[0]:#x}")
    a("v_lshlrev_b32 v4, 7, v9")
    a("v_add_u32 v4, s47, v4")
    a("v_lshrrev_b32 v5, 1, v9")
    a("v_and_b32 v5, 7, v5")
    a("v_xor_b32 v5, v5, v8")
    for ks in range(4):
        a(f"v_xor_b32 v6, {2*ks}, v5")
        a(f"v_lshl_add_u32 v{AX+ks}, v6, 4, v4")
    a("v_lshrrev_b32 v4, 2, v0")
    a("v_and_b32 v4, 3, v4")
    a("v_lshl_add_u32 v5, v8, 3, v4")
    a("v_lshlrev_b32 v5, 7, v5")
    a("v_lshrrev_b32 v4, 1, v4")
    a("v_xor_b32 v4, s45, v4")
    a("v_lshl_add_u32 v5, v4, 6, v5")
    a("v_and_b32 v4, 16, v0")
    a("v_lshl_add_u32 v5, v4, 1, v5")
    a("v_and_b32 v4, 1, v0")
    a("v_lshl_add_u32 v5, v4, 4, v5")
    a("v_and_b32 v4, 2, v0")
    a("v_lshl_add_u32 v5, v4, 2, v5")
    a(f"v_add_u32 v{AB}, s48, v5")
    for i in range(64): a(f"v_mov_b32 v{ACC+i}, 0")
    a("v_lshlrev_b32 v4, 4, v0")
    a("s_waitcnt lgkmcnt(0)")
    srd(a, 28, 14, WS_SIZE)
    if TLBW:
        a("s_cmp_lg_u32 s54, 1")
        a("s_cbranch_scc1 P1_notlb")
        a("v_lshlrev_b32 v5, 20, v0")
        a("v_mov_b32 v6, 0")
        a("s_mov_b64 exec, 0x7ff")
        a(f"buffer_load_dword v{AC2}, v5, s[28:31], 0 offen")
        a("s_mov_b64 exec, 1")
        a(f"global_load_dword v{AC2+1}, v6, s[58:59]")
        a(f"global_load_dword v{AC2+2}, v6, s[60:61]")
        a("s_mov_b64 exec, -1")
        a("s_waitcnt vmcnt(0)")
        a.label("P1_notlb")
    a("s_lshl_b32 s48, s54, 8")
    a("s_or_b32 s48, s48, s2")
    a("s_cmp_ge_u32 s48, 64")
    a("s_cbranch_scc1 P1_noinit")
    a("s_lshl_b32 s48, s2, 9")
    a(f"s_add_u32 s48, s48, {FL_OFF:#x}")
    a("s_cmp_lg_u32 s2, 0")
    a("s_cbranch_scc1 P1_init1")
    a(f"s_mov_b32 s47, {FB_OFF:#x}")
    a(f"buffer_store_dwordx4 {vr(ACC,4)}, v4, s[28:31], s47 offen sc1")
    a(f"buffer_store_dwordx4 {vr(ACC,4)}, v4, s[28:31], s47 offen offset:1024 sc1")
    a.label("P1_init1")
    a("s_mov_b32 exec_hi, 0")
    a(f"buffer_store_dwordx4 {vr(ACC,4)}, v4, s[28:31], s48 offen sc1")
    a("v_mov_b32 v5, 1")
    a("s_lshl_b32 s48, s2, 2")
    a("v_mov_b32 v6, s48")
    a("s_waitcnt vmcnt(0)")
    a("s_mov_b64 exec, 1")
    a("global_store_dword v6, v5, s[62:63] sc1")
    a("s_mov_b64 exec, -1")
    a.label("P1_noinit")
    a("s_mov_b32 s36, 0")
    a("s_mov_b32 s38, 1")
    a("s_cmp_lg_u32 s17, 3")
    a("s_cbranch_scc1 P1_noT")
    a("s_lshl_b32 s47, s19, 2")
    a("s_or_b32 s47, s47, s16")
    a("s_cmp_eq_u32 s47, 2")
    a("s_cselect_b32 s56, 1, 0")
    a("s_mov_b32 s57, s56")
    a(f"v_mov_b32 v{PV}, 0xbf803f80")
    a("v_lshrrev_b32 v4, 1, v7")
    a("v_cmp_eq_u32 vcc, 1, v7")
    a("v_and_b32 v5, 1, v7")
    a("v_lshlrev_b32 v6, 3, v8")
    a("v_cndmask_b32 v4, v4, 16, vcc")
    a("v_cndmask_b32 v5, v5, 0, vcc")
    a("v_cvt_f32_u32 v4, v4")
    a(f"v_mul_f32 v4, {f2u(1/32):#x}, v4")
    a("v_cvt_f32_u32 v5, v5")
    a("v_mul_f32 v5, 0x3e800000, v5")
    a("v_cvt_f32_u32 v6, v6")
    a("v_fma_f32 v5, v6, v4, v5")
    a("v_mul_f32 v6, 0x41100000, v4")
    for kk in range(2):
        for u in range(4):
            a(f"v_cos_f32 v{F[0]}, v5")
            a("v_add_f32 v5, v5, v4")
            a(f"v_cos_f32 v{F[0]+1}, v5")
            a(f"v_add_f32 v5, v5, v{6 if u == 3 else 4}")
            a(f"v_cvt_pk_bf16_f32 v{T+4*kk+u}, v{F[0]}, v{F[0]+1}")
    a.label("P1_noT")

    def reads(var, f, ks):
        if var < 2:
            x = [f"ds_read_b128 {vr(f+4*b,4)}, v{AX+ks} offset:{4096*b}" for b in range(2)]
            t = [f"ds_read_b64_tr_b16 {vr(f+8+4*j+2*q,2)}, v{AB} offset:{8192*j+2048*ks+512*q}" for j in range(2) for q in range(2)]
            return [x[0], t[0], t[1], x[1], t[2], t[3]]
        x = [f"ds_read_b128 {vr(f+4*b,4)}, v{AX+ks} offset:{4096*b}" for b in range(4)]
        t = [f"ds_read_b64_tr_b16 {vr(f+16+2*q,2)}, v{AB} offset:{2048*ks+512*q}" for q in range(2)]
        return [t[0], t[1], x[0], x[1], x[2], x[3]]
    def mf(var, f, n):
        D = ACC + 16 * n
        if var == 2: return mfma(D, f + 4 * n, f + 16)
        b, j = n & 1, n >> 1
        X, B = f + 4 * b, f + 8 + 4 * j
        return mfma(D, B, X) if var == 0 else mfma(D, X, B)
    def fixb(var, f):
        if var == 2:
            for u in range(4): a(f"v_cndmask_b32 v{f+16+u}, v{f+16+u}, v{PV}, s[56:57]")
    W = {0: [3, 5, 6, None], 1: [3, 5, 6, None], 2: [3, 5, 7, 6]}
    if PRETOUCH:
        a("v_lshlrev_b32 v4, 7, v7")
        a("v_lshl_add_u32 v4, v8, 16, v4")
        a("s_lshl_b32 s47, s17, 21")
        a("s_lshl_b32 s48, s19, 19")
        a("s_add_u32 s47, s47, s48")
        a("s_lshl_b32 s48, s18, 12")
        a("s_add_u32 s47, s47, s48")
        a("s_lshl_b32 s48, s16, 17")
        a("s_add_u32 s47, s47, s48")
        a("v_and_b32 v5, 7, v0")
        a("v_lshlrev_b32 v5, 7, v5")
        a("v_and_b32 v6, 8, v0")
        a("v_lshl_add_u32 v5, v6, 9, v5")
        a("v_lshrrev_b32 v6, 4, v0")
        a("v_lshl_add_u32 v5, v6, 17, v5")
        a("s_lshl_b32 s48, s16, 19")
        a("s_lshl_b32 s49, s18, 13")
        a("s_add_u32 s48, s48, s49")
        a("s_lshl_b32 s49, s19, 10")
        a("s_add_u32 s48, s48, s49")
        a(f"s_add_u32 s48, s48, {H_OFF:#x}")
        a("s_cmp_eq_u32 s17, 3")
        a("s_cselect_b32 s47, s48, s47")
        a("s_cselect_b64 vcc, -1, 0")
        a("v_cndmask_b32 v4, v4, v5, vcc")
    a("s_waitcnt vmcnt(0)")
    a("s_barrier")
    if PRETOUCH: a(f"buffer_store_dword v4, v4, s[28:31], s47 offen {'sc1' if PRETOUCH == 1 else ''}")
    stamp(a, 3)
    if STAMP: a("s_waitcnt lgkmcnt(0)")
    a("s_cmp_eq_u32 s17, 3")
    a("s_cbranch_scc1 P1_pre2")
    for r in reads(0, F[0], 0): a(r)
    a("s_cmp_eq_u32 s17, 2")
    a("s_cbranch_scc1 P1_loop1")
    for var in (0, 1, 2):
        L = f"P1_loop{var}"
        if var == 2:
            a.label("P1_pre2")
            for r in reads(2, F[0], 0): a(r)
        a.label(L)
        for ks in range(3):
            cur, nxt = F[ks & 1], F[(ks + 1) & 1]
            rd = reads(var, nxt, ks + 1)
            if var == 2:
                a("s_waitcnt lgkmcnt(4)")
                fixb(var, cur)
            a(f"s_waitcnt lgkmcnt({W[var][0]})")
            a(mf(var, cur, 0))
            for r in rd[:3]: a(r)
            a(f"s_waitcnt lgkmcnt({W[var][1]})")
            a(mf(var, cur, 1))
            for r in rd[3:]: a(r)
            if ks == 0 and PRETOUCH:
                a("s_cmp_lg_u32 s36, 6")
                a(f"s_cbranch_scc1 {L}_pt")
                a("s_waitcnt vmcnt(0)")
                a.label(f"{L}_pt")
            if ks == 1:
                a("s_add_u32 s38, s38, 1")
                a("s_cmp_lg_u32 s38, 3")
                csel(a, 37, 0x8000, (-0x10000) & 0xffffffff)
                a("s_cselect_b32 s38, s38, 0")
            a(f"s_waitcnt lgkmcnt({W[var][2]})")
            a(mf(var, cur, 2))
            if ks == 2:
                a("s_add_u32 s36, s36, 1")
                for k2 in range(4): a(f"v_add_u32 v{AX+k2}, s37, v{AX+k2}")
                a(f"v_add_u32 v{AB}, s37, v{AB}")
                a("s_cmp_eq_u32 s36, 8")
            if W[var][3] is not None: a(f"s_waitcnt lgkmcnt({W[var][3]})")
            a(mf(var, cur, 3))
        cur, nxt = F[1], F[0]
        if var == 2:
            a("s_waitcnt lgkmcnt(4)")
            fixb(var, cur)
        a(f"s_cbranch_scc1 {L}_last")
        a("s_waitcnt lgkmcnt(3)")
        a(mf(var, cur, 0))
        a("s_waitcnt lgkmcnt(0)")
        a("s_barrier")
        rd = reads(var, nxt, 0)
        for r in rd[:3]: a(r)
        a(mf(var, cur, 1))
        for r in rd[3:]: a(r)
        a(mf(var, cur, 2))
        a(mf(var, cur, 3))
        a(f"s_branch {L}")
        a.label(f"{L}_last")
        a("s_waitcnt lgkmcnt(0)")
        stamp(a, 5)
        for n in range(4): a(mf(var, cur, n))
        if var < 2:
            a("s_lshl_b32 s47, s46, 11")
            a("s_lshl_b32 s48, s45, 17")
            a("s_add_u32 s47, s47, s48")
            if var == 0:
                a(f"v_lshl_add_u32 v{ST}, v0, 4, s47")
            else:
                a("v_and_b32 v4, 15, v0")
                a("v_lshlrev_b32 v4, 4, v4")
                a("v_lshl_add_u32 v4, v8, 8, v4")
                a("v_lshrrev_b32 v5, 4, v7")
                a("v_lshl_add_u32 v4, v5, 16, v4")
                a(f"v_add_u32 v{ST}, s47, v4")
            a("s_lshl_b32 s47, s17, 21")
            a("s_lshl_b32 s48, s19, 19")
            a("s_add_u32 s47, s47, s48")
            a("s_lshl_b32 s48, s18, 12")
            a("s_add_u32 s50, s47, s48")
            a("s_add_u32 s51, s50, 0x10000")
            a("s_add_u32 s52, s50, 0x40000")
            a("s_add_u32 s53, s50, 0x50000")
            for n in range(4):
                b, j = n & 1, n >> 1
                for hh in range(2):
                    d = PK + 4 * (2 * n + hh)
                    for u in range(4):
                        s = ACC + 16 * n + 8 * hh + 2 * u
                        a(f"v_cvt_pk_bf16_f32 v{d+u}, v{s}, v{s+1}")
                    if var == 0: a(f"buffer_store_dwordx4 {vr(d,4)}, v{ST}, s[28:31], s{50+2*j+hh} offen offset:{1024*b} sc1")
                    else: a(f"buffer_store_dwordx4 {vr(d,4)}, v{ST}, s[28:31], s{50+2*j} offen offset:{512*(2*b+hh)} sc1")
            stamp(a, 6)
            a("s_branch P2_start")
        else:
            a("s_lshl_b32 s47, s46, 12")
            a("s_lshl_b32 s48, s19, 10")
            a("s_add_u32 s47, s47, s48")
            a("s_lshl_b32 s48, s45, 9")
            a("s_add_u32 s47, s47, s48")
            a("v_lshlrev_b32 v4, 18, v8")
            a("v_lshl_add_u32 v4, v9, 4, v4")
            a(f"v_add_u32 v{ST}, s47, v4")
            a("s_lshl_b32 s50, s18, 13")
            a(f"s_add_u32 s50, s50, {H_OFF:#x}")
            for b in range(4):
                for u in range(8):
                    s = ACC + 16 * b + 2 * u
                    a(f"v_cvt_pk_bf16_f32 v{PK+8*b+u}, v{s}, v{s+1}")
                a(mfma(AC2 + 16 * b, T, PK + 8 * b, "0"))
                a(mfma(AC2 + 16 * b, T + 4, PK + 8 * b + 4))
            for i in range(8):
                d = ACC + 4 * i
                for pq in range(2):
                    for bp in range(2):
                        a(f"v_cvt_pk_bf16_f32 v{d+2*pq+bp}, v{AC2+32*bp+2*i+pq}, v{AC2+32*bp+16+2*i+pq}")
                a(f"buffer_store_dwordx4 {vr(d,4)}, v{ST}, s[28:31], s50 offen sc1")
                if i < 7: a(f"s_add_u32 s50, s50, {(3 if i & 1 else 1) * 0x20000:#x}")
            stamp(a, 6)

GTT = 247
def phase2(a, ool):
    KF, VF, QF, SD = 8, 44, 116, 120
    SB = [136, 152, 168]
    Z, PM = 184, 200
    P = [208, 216]
    O, GX, GQ, M, NINF = 224, 240, 246, 248, 249
    VH, VL, VQ, AK, AV, VGQ, VGT = 250, 251, 252, 253, 254, 244, 245
    VFL = 255
    if STAMP: MKL = [4, 6, 8, 10, 12, 20, 22, 24, 26, 40, 42, 44, 50, 52, 64, 66]
    else: MKL = [64 + 2 * r for r in range(16)]
    WSRD = 68 if STAMP else 96
    pf = []
    if not WO_IN_P1:
        for i in range(8):
            x = []
            if i == 0: x.append("s_mov_b32 m0, s1")
            if i == 4: x.append("s_add_u32 m0, s1, 0x1000")
            x.append(f"buffer_load_dwordx4 v7, {sr(WSRD,4)}, s0 offen offset:{1024*(i&3)} lds")
            if i < 7: x.append(f"s_add_u32 s0, s0, {(8192 + 3072) if i == 3 else 7168}")
            pf.append(x)
    def pfnext(n=1):
        for _ in range(n):
            if pf:
                for x in pf.pop(0): a(x)
    a.label("P2_start")
    a("s_and_b32 s17, s2, 7")
    a("s_lshl_b32 s17, s17, 2")
    a("s_bfe_u32 s18, s2, 0x20003")
    a("s_or_b32 s17, s17, s18")
    a("s_lshr_b32 s19, s2, 5")
    a("s_lshl_b32 s18, s19, 3")
    a("s_add_u32 s18, s18, s54")
    a(f"v_lshlrev_b32 v{VL}, 4, v0")
    a("s_lshl_b32 s32, s17, 16")
    a("s_lshl_b32 s33, s18, 10")
    a("s_add_u32 s33, s32, s33")
    a("s_cmp_eq_u32 s19, 0")
    a("s_cselect_b32 s34, 0, 0x2000")
    a("s_cselect_b32 s55, 0xff800000, 0")
    a("s_sub_u32 s34, s33, s34")
    a(f"s_add_u32 s35, s33, {K_OFF:#x}")
    a(f"s_add_u32 s36, s34, {K_OFF:#x}")
    a(f"s_add_u32 s37, s33, {V_OFF:#x}")
    a(f"s_add_u32 s38, s34, {V_OFF:#x}")
    a("s_lshl_b32 s39, s54, 10")
    a("s_mov_b32 s46, 0x3f803f80")
    for i in range(4): a(f"v_mov_b32 v{GX+i}, s46")
    a("s_lshl_b32 s46, s54, 11")
    a(f"v_add_u32 v6, s46, v{VL}")
    a(f"ds_write_b128 v6, {vr(GX,4)} offset:0x8000")
    a(f"ds_write_b128 v6, {vr(GX,4)} offset:0x8400")
    a("v_and_b32 v4, 31, v0")
    a("v_lshrrev_b32 v3, 5, v0")
    perm23(a, VQ, 4, 5, 6)
    a("v_lshlrev_b32 v5, 3, v3")
    a(f"v_sub_u32 v5, v{VQ}, v5")
    for r in range(16): a(f"v_cmp_le_i32 {sr(MKL[r],2)}, {16*(r>>3)+(r&7)}, v5")
    a("v_mov_b32 v1, 0xffff")
    a(f"v_mov_b32 v{M}, 0xffff0000")
    for u in range(8):
        a(f"v_cndmask_b32 v{PM+u}, 0, v1, {sr(MKL[2*u],2)}")
        a(f"v_cndmask_b32 v{P[0]}, 0, v{M}, {sr(MKL[2*u+1],2)}")
        a(f"v_or_b32 v{PM+u}, v{PM+u}, v{P[0]}")
    for i in range(16): a(f"v_mov_b32 v{Z+i}, {'s55' if STANDIN else '0'}")
    a(f"v_mov_b32 v{NINF}, 0xff800000")
    a(f"v_add_u32 v{AK}, s39, v{VL}")
    a("v_and_b32 v5, 15, v0")
    a("v_lshl_add_u32 v5, v3, 4, v5")
    a("v_lshl_add_u32 v5, v5, 4, s39")
    a("v_and_b32 v6, 16, v0")
    a(f"v_lshl_add_u32 v{AV}, v6, 10, v5")
    p3_ids(a, 46, 47, 48, 49)
    a("s_and_b32 s49, s54, 1")
    a("s_lshl_b32 s49, s49, 12")
    a("s_lshl_b32 s56, s46, 2")
    a("s_add_u32 s49, s49, s56")
    a(f"v_lshl_add_u32 v{VGT}, v4, 7, s49")
    a("v_and_b32 v5, 4, v0")
    a("v_lshlrev_b32 v5, 2, v5")
    a("v_bfe_u32 v6, v0, 3, 2")
    a("v_lshl_add_u32 v5, v6, 2, v5")
    a("v_and_b32 v6, 3, v0")
    a("v_add_u32 v5, v5, v6")
    a("s_lshl_b32 s56, s47, 6")
    a("s_bfe_u32 s57, s54, 0x10001")
    a("s_lshl_b32 s57, s57, 5")
    a("s_add_u32 s56, s56, s57")
    a("v_add_u32 v5, s56, v5")
    a("v_sub_u32 v6, 0x200, v5")
    a("v_min_u32 v6, v5, v6")
    a("v_and_b32 v5, 0xff, v5")
    a("s_lshr_b32 s57, s54, 2")
    a("s_sub_u32 s56, s57, 1")
    a("v_cmp_eq_u32 vcc, s56, v5")
    a("v_lshlrev_b32 v5, 16, v3")
    a(f"v_lshl_add_u32 v{VH}, v6, 4, v5")
    a("v_mov_b32 v5, 0x7f000000")
    a(f"v_cndmask_b32 v{VH}, v{VH}, v5, vcc")
    a("s_lshl_b32 s57, s57, 12")
    a("s_lshl_b32 s56, s48, 17")
    a("s_add_u32 s56, s56, s57")
    a("s_and_b32 s57, s54, 1")
    a("s_lshl_b32 s57, s57, 15")
    a("s_add_u32 s56, s56, s57")
    a(f"s_add_u32 s56, s56, {H_OFF:#x}")
    a("s_lshl_b32 s57, s54, 12")
    a(f"s_add_u32 s57, s57, {H_L:#x}")
    if not WO_IN_P1:
        a("v_lshrrev_b32 v5, 3, v0")
        a("v_bfe_u32 v6, v0, 4, 1")
        a("v_lshlrev_b32 v6, 2, v6")
        a("v_and_b32 v7, 7, v0")
        a("v_xor_b32 v7, v7, v6")
        a("v_lshlrev_b32 v7, 4, v7")
        a("v_lshl_add_u32 v7, v5, 10, v7")
        a("s_bfe_u32 s3, s2, 0x20003")
        a(f"s_mul_i32 s3, s3, {2 * WOROT}")
        a("s_add_u32 s3, s3, s54")
        a("s_and_b32 s3, s3, 7")
        a("s_lshl_b32 s0, s3, 16")
        a("s_lshl_b32 s1, s47, 7")
        a("s_add_u32 s0, s0, s1")
        a("s_lshl_b32 s1, s3, 13")
        a(f"s_add_u32 s1, s1, {WO_L:#x}")
        srd(a, WSRD, 58, 512 * 1024)
    a("s_lshr_b32 s47, s18, 2")
    a("s_cmp_eq_u32 s19, 0")
    a("s_cselect_b32 s48, 0, 2")
    a("s_sub_u32 s48, s47, s48")
    for r in (47, 48):
        a(f"s_lshr_b32 s49, s{r}, 3")
        a(f"s_and_b32 s{r}, s{r}, 7")
        a(f"s_lshl_b32 s{r}, s{r}, 3")
        a(f"s_or_b32 s{r}, s{r}, s49")
    a("s_sub_u32 s48, s48, 4")
    a("v_mov_b32 v4, s47")
    a("v_mov_b32 v5, s48")
    a("v_cmp_gt_u32 vcc, 3, v0")
    a("s_lshr_b32 s47, s17, 3")
    a("s_lshl_b32 s47, s47, 6")
    a("v_cndmask_b32 v4, v5, v4, vcc")
    a("v_lshl_add_u32 v4, v0, 1, v4")
    a("v_add_lshl_u32 v2, v4, s47, 7")
    a(f"s_mov_b32 s16, {FB_OFF:#x}")
    a(f"v_and_b32 v{VFL}, 7, v0")
    a(f"v_lshlrev_b32 v{VFL}, 7, v{VFL}")
    a(f"s_mov_b32 s46, {f2u(0.25*math.log2(math.e)):#x}")
    a("s_cmp_ge_u32 s54, 4")
    a("s_cbranch_scc1 P2_arr")
    a("s_waitcnt vmcnt(0)")
    a.label("P2_arr")
    a("s_barrier")
    stamp(a, 2)
    a("s_cmp_lg_u32 s54, 0")
    a("s_cbranch_scc1 P2_nf")
    a("v_mov_b32 v1, 1")
    a("s_lshl_b32 s47, s2, 7")
    a(f"s_add_u32 s47, s47, {FL_OFF:#x}")
    a("s_mov_b64 exec, 1")
    a(f"buffer_store_dword v1, v{VL}, s[28:31], s47 offen sc1")
    a("s_lshl_b32 s49, s19, 7")
    a("s_add_u32 s49, s49, s16")
    a("v_mov_b32 v3, 1")
    a(f"buffer_atomic_add v3, v{VL}, s[28:31], s49 offen offset:1024 sc0 sc1")
    a.label("P2_nf")
    a(f"s_mov_b32 s47, {FL_OFF:#x}")
    a("s_mov_b64 exec, 0x1f")
    poll(a, "buffer_load_dword v4, v2, s[28:31], s47 offen sc1", 4, sleep=SLEEP1)
    stamp(a, 7)
    a("s_cmp_lg_u32 s54, 0")
    a("s_cbranch_scc1 P2_nl")
    a("v_readfirstlane_b32 s47, v3")
    a("s_cmp_lg_u32 s47, 31")
    a("s_cbranch_scc1 P2_nl")
    a("s_mov_b64 exec, 1")
    a(f"buffer_store_dword v1, v{VL}, s[28:31], s49 offen sc1")
    a("s_mov_b64 exec, -1")
    a.label("P2_nl")
    a("s_add_u32 m0, s39, 0x2000")
    a(f"buffer_load_dwordx4 v{VL}, s[28:31], s35 offen sc1 lds")
    a(f"buffer_load_dwordx4 {vr(QF,4)}, v{VL}, s[28:31], s33 offen sc1")
    a("s_mov_b32 m0, s39")
    a(f"buffer_load_dwordx4 v{VL}, s[28:31], s36 offen sc1 lds")
    a("s_add_u32 m0, s39, 0x6000")
    a(f"buffer_load_dwordx4 v{VL}, s[28:31], s37 offen sc1 lds")
    a("s_add_u32 m0, s39, 0x4000")
    a(f"buffer_load_dwordx4 v{VL}, s[28:31], s38 offen sc1 lds")
    a("s_waitcnt vmcnt(3)")
    for i in range(4):
        a(f"v_lshlrev_b32 v{GX}, 16, v{QF+i}")
        a(f"v_and_b32 v{GX+1}, 0xffff0000, v{QF+i}")
        a(f"v_mul_f32 v{GX}, s46, v{GX}")
        a(f"v_mul_f32 v{GX+1}, s46, v{GX+1}")
        a(f"v_cvt_pk_bf16_f32 v{QF+i}, v{GX}, v{GX+1}")
    a("s_waitcnt vmcnt(2)")
    stamp(a, 8)
    a("s_waitcnt lgkmcnt(0)")
    a("s_barrier")
    korder = [0, 8, 1, 2, 3, 4, 5, 6, 7]
    for j in korder: a(f"ds_read_b128 {vr(KF+4*j,4)}, v{AK} offset:{(8-j)*1024}")
    def smf(D, j, C): return mfma(D, KF + 4 * j, QF, C)
    def zswitch(a, j, tag):
        a(f"s_cmp_eq_u32 s18, {j-1}")
        a(f"s_cbranch_scc1 P2_o{tag}{j}")
        a.label(f"P2_z{tag}{j}")
        def emit(a, t=f"{tag}{j}"):
            a.label(f"P2_o{t}")
            a("s_nop 6")
            for i in range(16): a(f"v_mov_b32 v{Z+i}, v{NINF}")
            a("s_nop 0")
            a(f"s_branch P2_z{t}")
        ool.append(emit)
    def maxtile(a, S, first):
        if first:
            a(f"v_max3_f32 v{M}, v{S}, v{S+1}, v{S+2}")
            rest = list(range(3, 16))
        else: rest = list(range(16))
        while len(rest) >= 2:
            a(f"v_max3_f32 v{M}, v{M}, v{S+rest[0]}, v{S+rest[1]}"); rest = rest[2:]
        if rest: a(f"v_max_f32 v{M}, v{M}, v{S+rest[0]}")
    def vread(j):
        for u in range(2): a(f"ds_read_b128 {vr(VF+8*j+4*u,4)}, v{AV} offset:{0x4000+(8-j)*1024+512*u}")
    def pv(j, Pb, u, first=False): return mfma(O, VF + 8 * j + 4 * u, Pb + 4 * u, "0" if first else None)
    def truemax(a, tag):
        for i in range(16): a(f"v_mov_b32 v{Z+i}, 0")
        for j in range(1, 8):
            zswitch(a, j, tag)
            a(smf(SB[j % 3], j, vr(Z, 16)))
            if j >= 2: maxtile(a, SB[(j - 1) % 3], j == 2)
        maxtile(a, SB[7 % 3], False)
        for i in range(16): a(f"v_mov_b32 v{Z+i}, s55")
    fbload = f"buffer_load_dword v{GX}, v{VFL}, s[28:31], s16 offen sc1"
    fbpre = []
    def hissue():
        a("s_mov_b32 m0, s57")
        a(f"s_mov_b32 s47, {GT_OFF:#x}")
        a(f"buffer_load_dword v{GTT}, v{VGT}, s[28:31], s47 offen sc1")
        for i in range(4):
            a(f"buffer_load_dwordx4 v{VH}, s[28:31], s56 offen offset:{1024*i} sc1 lds")
            if i < 3: a("s_add_u32 s56, s56, 7168")
    def core(a, main, havemax, tag):
        if main: a("s_waitcnt lgkmcnt(8)")
        a(smf(SD, 0, "0"))
        if main: a("s_waitcnt lgkmcnt(7)")
        a(smf(SB[0], 8, vr(Z, 16)))
        for r in range(16): a(f"v_cndmask_b32 v{SD+r}, v{SB[0]+r}, v{SD+r}, {sr(MKL[r],2)}")
        maxtile(a, SD, not havemax)
        a(f"v_mov_b32 v1, v{M}")
        a(f"v_permlane32_swap_b32 v1, v{M}")
        a(f"v_max_f32 v{M}, v1, v{M}")
        for i in range(16): a(f"v_sub_f32 v{Z+i}, 0, v{M}")
        if main: a("s_waitcnt lgkmcnt(0)")
        zswitch(a, 1, tag)
        a(smf(SB[1], 1, vr(Z, 16)))
        zswitch(a, 2, tag)
        a(smf(SB[2], 2, vr(Z, 16)))
        if main:
            a("s_waitcnt vmcnt(0)")
            a("s_barrier")
            stamp(a, 9)
            if STAMP: a("s_waitcnt lgkmcnt(0)")
            for j in korder[:7]: vread(j)
            if EARLYJ: a(fbload)
            pfnext(2)
        for r in range(16): a(f"v_sub_f32 v{SD+r}, v{SD+r}, v{M}")
        for r in range(16): a(f"v_exp_f32 v{SD+r}, v{SD+r}")
        Pd, Po = P[0], P[1]
        for u in range(8): a(f"v_cvt_pk_bf16_f32 v{Po+u}, v{SD+2*u}, v{SD+2*u+1}")
        for u in range(8): a(f"v_and_b32 v{Pd+u}, v{Po+u}, v{PM+u}")
        if main:
            a("s_waitcnt lgkmcnt(0)")
            for j in korder[7:]: vread(j)
            pfnext(2)
        a(pv(0, Pd, 0, True))
        for u in range(8): a(f"v_xor_b32 v{Po+u}, v{Po+u}, v{Pd+u}")
        a(pv(0, Pd, 1))
        pend = [pv(8, Po, 0), pv(8, Po, 1)]
        for n, j in enumerate(range(1, 8)):
            S = SB[j % 3]; Pb = P[n & 1]
            if main and j == MIDJ:
                if EARLYJ:
                    a("s_cmp_lg_u32 s49, 0")
                    a("s_cbranch_scc1 P2_m1")
                a(fbload)
                a.label("P2_m1")
            if main and j == 6: a("s_waitcnt lgkmcnt(0)")
            for r in range(4): a(f"v_exp_f32 v{S+r}, v{S+r}")
            a(pend.pop(0))
            for r in range(4, 8): a(f"v_exp_f32 v{S+r}, v{S+r}")
            if pend: a(pend.pop(0))
            for u in range(4): a(f"v_cvt_pk_bf16_f32 v{Pb+u}, v{S+2*u}, v{S+2*u+1}")
            if main: pfnext(2)
            for r in range(8, 16): a(f"v_exp_f32 v{S+r}, v{S+r}")
            a(pv(j, Pb, 0))
            for u in range(4, 8): a(f"v_cvt_pk_bf16_f32 v{Pb+u}, v{S+2*u}, v{S+2*u+1}")
            pend.append(pv(j, Pb, 1))
            if j + 2 <= 7:
                zswitch(a, j + 2, tag)
                a(smf(SB[(j + 2) % 3], j + 2, vr(Z, 16)))
            if main and EARLYJ and j == EARLYJ:
                a("s_waitcnt vmcnt(%d)" % (8 - len(pf)))
                for x in fbpre: a(x)
                a(f"v_cmp_eq_u32 vcc, 0, v{GX}")
                a("s_mov_b32 s49, 0")
                a("s_cbranch_vccnz P2_e1")
                a("s_mov_b32 s49, m0")
                hissue()
                a("s_mov_b32 m0, s49")
                a.label("P2_e1")
            if main and j == MIDJ:
                if EARLYJ:
                    a("s_cmp_lg_u32 s49, 0")
                    a("s_cbranch_scc1 P2_m2")
                a("s_waitcnt vmcnt(0)")
                poll(a, fbload, GX, True, sleep=4, pre=fbpre)
                hissue()
                a.label("P2_m2")
        a(pend.pop(0))
    if not STANDIN:
        a("s_waitcnt lgkmcnt(0)")
        truemax(a, "m")
    core(a, True, not STANDIN, "b")
    a("v_and_b32 v4, 7, v0")
    a("v_xor_b32 v5, s54, v4")
    a("v_lshlrev_b32 v5, 4, v5")
    a("v_lshl_add_u32 v5, v0, 7, v5")
    a("v_lshrrev_b32 v6, 3, v0")
    a("v_xor_b32 v4, v4, v6")
    a("s_and_b32 s32, s54, 3")
    a("s_lshl_b32 s32, s32, 3")
    a("v_add_u32 v6, s32, v6")
    perm23(a, 6, 6, 7, 2)
    a("v_lshlrev_b32 v4, 4, v4")
    a("v_lshl_add_u32 v4, v6, 16, v4")
    a("s_lshl_b32 s32, s17, 11")
    a("s_lshr_b32 s33, s19, 2")
    a("s_lshl_b32 s33, s33, 10")
    a("s_add_u32 s32, s32, s33")
    a("s_lshr_b32 s33, s54, 2")
    a("s_lshl_b32 s33, s33, 9")
    a("s_add_u32 s32, s32, s33")
    a("s_and_b32 s33, s19, 3")
    a("s_lshl_b32 s33, s33, 7")
    a("s_add_u32 s32, s32, s33")
    a(f"s_add_u32 s32, s32, {O_OFF:#x}")
    if STANDIN:
        a(f"v_add_f32 v1, |v{O}|, |v{O+1}|")
        a(f"v_add_f32 v2, |v{O+2}|, |v{O+3}|")
        for i in (4, 6):
            a(f"v_add_f32 v1, v1, |v{O+i}|")
            a(f"v_add_f32 v2, v2, |v{O+i+1}|")
        a(f"s_mov_b32 s33, {f2u(2.0**-20):#x}")
        a(f"v_add_f32 v1, v1, v2")
        a(f"v_fma_f32 v1, v1, s33, v{O+8}")
        a(f"v_cmp_ngt_f32 vcc, {f2u(2.0**120):#x}, v1")
        if FORCE_FB: a("s_mov_b64 vcc, -1")
        a("s_cbranch_vccnz P2_fb")
        a.label("P2_fbret")
        def emit(a):
            a.label("P2_fb")
            truemax(a, "f")
            core(a, False, True, "g")
            a("s_nop 11")
            a("s_branch P2_fbret")
        ool.append(emit)
    a(f"v_rcp_f32 v1, v{O+8}")
    for i in range(8): a(f"v_mul_f32 v{O+i}, v{O+i}, v1")
    for u in range(4): a(f"v_cvt_pk_bf16_f32 v{P[0]+u}, v{O+2*u}, v{O+2*u+1}")
    a(f"v_min_u32 v{P[0]}, -2, v{P[0]}")
    a(f"v_min_u32 v{P[0]+3}, -2, v{P[0]+3}")
    a(f"ds_write_b128 v5, {vr(P[0],4)} offset:{OTR_L:#x}")
    stamp(a, 10)
    a("s_waitcnt lgkmcnt(0)" if HBAR else "s_waitcnt vmcnt(0) lgkmcnt(0)")
    a("s_barrier")
    a(f"ds_read_b128 {vr(P[0],4)}, v{AK} offset:{OTR_L:#x}")
    a("s_waitcnt lgkmcnt(0)")
    a(f"buffer_store_dwordx4 {vr(P[0],4)}, v4, s[28:31], s32 offen sc1")

def phase3(a):
    OF, WOF, HF, WF, AC = 8, 40, 104, 136, 152
    RD = 184
    p3_ids(a, 17, 18, 19, 20)
    a("s_and_b32 s20, s54, 1")
    a("s_lshr_b32 s21, s54, 1")
    a("s_lshl_b32 s22, s17, 16")
    a("s_lshl_b32 s23, s21, 14")
    a("s_add_u32 s22, s22, s23")
    a("s_lshl_b32 s24, s20, 10")
    a("s_add_u32 s22, s22, s24")
    a(f"s_add_u32 s22, s22, {O_OFF:#x}")
    a(f"s_mul_i32 s16, s18, {2048 * OROT}")
    a("s_or_b32 s22, s22, s16")
    OS = [32, 33, 34, 35, 44, 45, 46, 47]
    a("v_lshlrev_b32 v7, 4, v0")
    def oload(k): return f"buffer_load_dwordx4 {vr(OF+4*k,4)}, v7, s[28:31], s{OS[k]} offen sc1"
    for k in range(8):
        a(f"s_xor_b32 s{OS[k]}, s22, {2048*k}")
        a(oload(k))
    stamp(a, 11)
    if STAMP: a("s_waitcnt lgkmcnt(0)")
    a("s_and_b32 s25, s21, 1")
    a("s_lshr_b32 s26, s21, 1")
    a("s_lshl_b32 s27, s25, 8")
    a("v_xor_b32 v1, s27, v7")
    a("s_lshl_b32 s27, s21, 11")
    a(f"s_add_u32 s27, s27, {H_L:#x}")
    a("s_lshl_b32 s36, s26, 13")
    a("s_add_u32 s37, s27, s36")
    a("s_xor_b32 s36, s36, 0x2000")
    a("s_add_u32 s36, s27, s36")
    a("v_add_u32 v2, s37, v1")
    a("v_add_u32 v1, s36, v1")
    if HBAR:
        a("s_waitcnt vmcnt(9)")
        a("s_barrier")
    for p in range(2):
        for i in range(2):
            for iw in range(2):
                a(f"ds_read_b128 {vr(HF+16*p+8*i+4*iw,4)}, v{2-iw} offset:{0x4000*p + 1024*i}")
    a("v_and_b32 v2, 31, v0")
    a("v_lshrrev_b32 v3, 5, v0")
    a("s_add_u32 s23, s24, s17")
    a("v_lshl_add_u32 v4, v2, 5, s23")
    a("v_cvt_f32_u32 v5, v4")
    a("s_cmp_gt_u32 s17, 16")
    csel(a, 36, f2u(-1/2048), f2u(1/2048))
    a("s_cselect_b32 s37, 1, 0")
    a("s_lshr_b32 s38, s18, 2")
    a("s_xor_b32 s37, s37, s38")
    a("s_cselect_b32 s38, 0x80008000, 0")
    a("s_xor_b32 s39, s38, 0x80008000")
    a("v_mul_f32 v5, s36, v5")
    a("s_lshl_b32 s36, s21, 3")
    a("v_lshl_add_u32 v6, v3, 5, s36")
    a("v_cvt_f32_u32 v6, v6")
    a("v_mul_f32 v6, v6, v5")
    a("v_fract_f32 v6, v6")
    WA, WB = WF, WF + 8
    for i in range(2):
        for pr in range(2):
            a(f"v_cos_f32 v{RD}, v6")
            a(f"v_sin_f32 v{RD+2}, v6")
            a("v_add_f32 v6, v6, v5")
            a(f"v_cos_f32 v{RD+1}, v6")
            a(f"v_sin_f32 v{RD+3}, v6")
            a("v_add_f32 v6, v6, v5")
            for q in range(4): a(f"v_mul_f32 v{RD+q}, v{GTT}, v{RD+q}")
            a(f"v_cvt_pk_bf16_f32 v{WA+4*i+pr}, v{RD}, v{RD+1}")
            a(f"v_cvt_pk_bf16_f32 v{WA+4*i+2+pr}, v{RD+2}, v{RD+3}")
            a(f"v_xor_b32 v{WB+4*i+2+pr}, s39, v{WA+4*i+pr}")
            a(f"v_xor_b32 v{WB+4*i+pr}, s38, v{WA+4*i+2+pr}")
    a("s_cmp_lg_u32 s19, 0")
    a("s_cbranch_scc1 P3_wdone")
    a("s_cmp_eq_u32 s17, 0")
    a("s_cselect_b64 vcc, -1, 0")
    for q in range(4):
        for pr in range(2):
            a(f"v_cndmask_b32 v{WF+4*q+2+pr}, v{WF+4*q+pr}, 0, vcc")
            a(f"v_cndmask_b32 v{WF+4*q+pr}, 0, v{WF+4*q+pr}, vcc")
    a.label("P3_wdone")
    a("v_lshrrev_b32 v1, 2, v0")
    a("v_and_b32 v1, 3, v1")
    a("v_lshl_add_u32 v5, v3, 3, v1")
    a("v_lshlrev_b32 v5, 7, v5")
    a("v_lshrrev_b32 v1, 1, v1")
    a("v_xor_b32 v1, s26, v1")
    a("v_lshl_add_u32 v5, v1, 6, v5")
    a("v_and_b32 v1, 1, v0")
    a("v_lshl_add_u32 v5, v1, 5, v5")
    a("s_lshl_b32 s36, s25, 4")
    a("v_and_b32 v1, 16, v0")
    a("v_xor_b32 v1, s36, v1")
    a("v_add_u32 v5, v1, v5")
    a("v_and_b32 v1, 2, v0")
    a("v_lshl_add_u32 v5, v1, 2, v5")
    a("s_lshl_b32 s36, s21, 14")
    a(f"s_add_u32 s36, s36, {WO_L:#x}")
    a("s_or_b32 s36, s36, s16")
    a("v_add_u32 v5, s36, v5")
    for k in range(8):
        for iw in range(2): a(f"v_xor_b32 v{RD+2*k+iw}, {2048*k + 64*iw}, v5")
    a("s_waitcnt lgkmcnt(0)")
    wr = []
    for k in range(8):
        for iw in range(2):
            for q in range(2):
                wr.append(f"ds_read_b64_tr_b16 {vr(WOF+8*k+4*iw+2*q,2)}, v{RD+2*k+iw} offset:{512*q}")
    n = 0
    for p in range(2):
        for i in range(2):
            for iw in range(2):
                a(mfma(AC + 16 * iw, HF + 16 * p + 8 * i + 4 * iw, WF + 8 * p + 4 * i, "0" if (p == 0 and i == 0) else None))
                for x in wr[4*n:4*n+4]: a(x)
                n += 1
                if n in (3, 6): a("s_waitcnt lgkmcnt(3)")
    a("v_lshlrev_b32 v4, 10, v4")
    a("v_lshl_add_u32 v4, v3, 5, v4")
    a("s_lshl_b32 s22, s18, 7")
    a("s_lshl_b32 s23, s26, 6")
    a("s_add_u32 s22, s22, s23")
    a("s_lshl_b32 s23, s25, 4")
    a("s_add_u32 s22, s22, s23")
    srd(a, 40, 60, 2 * MB)
    a("s_lshl_b32 s23, s20, 2")
    for i in range(4):
        a(f"s_xor_b32 s36, s21, {i}")
        a("s_add_u32 s36, s36, s23")
        a("s_mul_i32 s36, s36, 0x1800")
        a(f"v_add_u32 v{(1, 2, 3, 5)[i]}, s36, v7")
    a(f"v_add_f32 v{GTT}, 1.0, v{GTT}")
    a(f"v_rcp_f32 v{GTT}, v{GTT}")
    a("s_mov_b32 s36, 0")
    a("s_mov_b32 s48, 0")
    a("s_waitcnt lgkmcnt(0)")
    MS = [4, 6, 8, 10, 12, 24, 26, 38]
    a.label("P3_sweep")
    a("s_mov_b32 s37, s36")
    a("s_waitcnt vmcnt(0)")
    for k in range(8):
        o = OF + 4 * k
        a(f"s_bitcmp1_b32 s36, {k}")
        a(f"s_cbranch_scc1 P3_s{k}")
        a(f"v_max_u32 v6, v{o}, v{o+3}")
        a("v_cmp_eq_u32 vcc, -1, v6")
        a(f"s_mov_b64 {sr(MS[k],2)}, vcc")
        a(f"s_cbranch_vccnz P3_s{k}")
        a(mfma(AC, WOF + 8 * k, o))
        a(mfma(AC + 16, WOF + 8 * k + 4, o))
        a(f"s_bitset1_b32 s36, {k}")
        a.label(f"P3_s{k}")
    a("s_cmp_eq_u32 s36, 0xff")
    a("s_cbranch_scc1 P3_red")
    a("s_add_u32 s48, s48, 1")
    a(f"s_cmp_ge_u32 s48, {SPIN_MAX}")
    a("s_cbranch_scc1 P3_red")
    if PROBE:
        a("s_ff0_i32_b32 s49, s36")
        a("s_lshl_b32 s49, 1, s49")
        a("s_not_b32 s49, s49")
        a("s_cmp_lg_u32 s37, s36")
        a("s_cselect_b32 s37, s36, s49")
    else: a("s_mov_b32 s37, s36")
    if SLEEP3: a(f"s_sleep {SLEEP3}")
    for k in range(8):
        a(f"s_bitcmp1_b32 s37, {k}")
        a(f"s_cbranch_scc1 P3_r{k}")
        a(f"s_mov_b64 exec, {sr(MS[k],2)}")
        a(oload(k))
        a.label(f"P3_r{k}")
    a("s_mov_b64 exec, -1")
    a("s_branch P3_sweep")
    a.label("P3_red")
    stamp(a, 12)
    for i in (1, 2, 3):
        for hf in range(2):
            a(f"ds_write_b128 v{(1, 2, 3, 5)[i]}, {vr(AC+8*i+4*hf,4)} offset:{2048*(i-1)+1024*hf}")
    a("s_waitcnt lgkmcnt(0)")
    a("s_barrier")
    for i in range(6): a(f"ds_read_b128 {vr(RD+4*i,4)}, v1 offset:{1024*i}")
    for i in range(3):
        a(f"s_waitcnt lgkmcnt({4-2*i})")
        for r in range(8): a(f"v_add_f32 v{AC+r}, v{AC+r}, v{RD+8*i+r}")
    for r in range(8): a(f"v_mul_f32 v{AC+r}, v{GTT}, v{AC+r}")
    for u in range(4): a(f"v_cvt_pk_bf16_f32 v{RD+u}, v{AC+2*u}, v{AC+2*u+1}")
    a(f"buffer_store_dwordx4 {vr(RD,4)}, v4, s[40:43], s22 offen {OUTF}")
    stamp_out(a)

def gen():
    a = Asm(); ool = []
    a("s_cmp_ge_u32 s2, 256")
    a("s_cbranch_scc1 F_done")
    stamp(a, 0, True); stamp(a, 1)
    a("s_load_dwordx2 s[4:5], s[0:1], 0")
    a("s_load_dwordx4 s[8:11], s[0:1], 24")
    a("s_load_dwordx2 s[12:13], s[0:1], 48")
    a("s_load_dwordx2 s[58:59], s[0:1], 56")
    a("s_load_dwordx2 s[6:7], s[0:1], 64")
    a("s_load_dwordx4 s[60:63], s[0:1], 72")
    a("s_load_dwordx2 s[14:15], s[0:1], 88")
    if CODEPF:
        a("s_getpc_b64 s[64:65]")
        a.label("F_pc")
        a("v_cmp_gt_u32 vcc, 32, v0")
        a("s_bfe_u32 s66, s2, 0x20003")
        a("s_lshl_b32 s66, s66, 12")
        a("v_lshl_add_u32 v2, v0, 7, s66")
        a("v_min_u32 v2, %s-F_pc, v2" % ("P2_fb" if STANDIN else "F_done"))
        a("s_and_saveexec_b64 s[66:67], vcc")
        a("s_cbranch_execz F_nopf")
        a("global_load_dword v255, v2, s[64:65]")
        a.label("F_nopf")
        a("s_mov_b64 exec, s[66:67]")
    a("v_lshrrev_b32 v1, 6, v0")
    a("v_and_b32 v0, 63, v0")
    a("v_readfirstlane_b32 s54, v1")
    phase1(a)
    phase2(a, ool)
    phase3(a)
    a.label("F_done")
    a("s_endpgm")
    i = 0
    while i < len(ool):
        ool[i](a); i += 1
    return a.lines

def build(path):
    head = open(f"cdna_kernels/{NAME}.s.ref").read().split("; Override launch")[0]
    out = head + "; @launch grid=(256,1,1) block=(512,1,1) lds=163840\n" + '.amdgcn_target "amdgcn-amd-amdhsa--gfx950"\n'
    lines = gen()
    lines = fix_hazards(lines, VERB)
    print("lines", len(lines))
    code, kd = kernel_text(NAME + "_kernel", lines, 256, 102)
    open(path, "w").write(out + code + '.section .rodata,"a"\n' + kd)

if __name__ == "__main__":
    for x in list(sys.argv):
        if x.startswith("-D"):
            exec(x[2:], globals()); sys.argv.remove(x)
    if "--stamp" in sys.argv: STAMP = True; sys.argv.remove("--stamp")
    build(sys.argv[1] if len(sys.argv) > 1 else f"cdna_kernels/{NAME}.s")
```
